```python
import torch

def _softmax(x, axis=-1):
    return torch.softmax(x, dim=axis)
def _gelu(x):
    return torch.nn.functional.gelu(x, approximate="tanh")
def _silu(x):
    return torch.nn.functional.silu(x)
def _sigmoid(x):
    return torch.sigmoid(x)
def _layernorm(x, axis=-1, eps=1e-5):
    m = x.mean(dim=axis, keepdim=True)
    v = x.var(dim=axis, keepdim=True, unbiased=False)
    return (x - m) / torch.sqrt(v + eps)
def _scatter_add(tgt, idx, src, axis=0):
    return tgt.clone().index_add_(axis, idx, src)
def _segment_sum(src, seg, n):
    out = torch.zeros((n,) + src.shape[1:], dtype=src.dtype)
    return out.index_add_(0, seg, src)
def _pad(x, pw):
    flat = tuple(v for pair in reversed(pw) for v in pair)
    return torch.nn.functional.pad(x, flat)

kernel_name = 'gather_scatter__edge_featured_mpnn_gatedgcn__graph'

def setup_inputs():

    _w = (lambda a: (lambda t: t.to(torch.bfloat16) if t.is_floating_point() else t)(torch.as_tensor(a)))
    N, deg, D, De = 25000, 32, 64, max(4, 1)
    E = N * deg
    return {
        "x": _w((lambda *s: torch.randn(*s, dtype=torch.bfloat16) * 0.8)(N, D)),
        "e_attr": _w((lambda *s: torch.randn(*s, dtype=torch.bfloat16) * 0.8)(E, De)),
        "src": _w((lambda lo, hi, *s: torch.randint(lo, hi, s))(0, N, E).to(torch.int64)),
        "dst": _w((lambda lo, hi, *s: torch.randint(lo, hi, s))(0, N, E).to(torch.int64)),
        "w_a": _w((lambda *s: torch.randn(*s, dtype=torch.bfloat16) * 0.8)(D, D)),
        "w_b": _w((lambda *s: torch.randn(*s, dtype=torch.bfloat16) * 0.8)(D, D)),
        "w_c": _w((lambda *s: torch.randn(*s, dtype=torch.bfloat16) * 0.8)(De, D)),
        "w_u": _w((lambda *s: torch.randn(*s, dtype=torch.bfloat16) * 0.05)(D, D)),
        "w_v": _w((lambda *s: torch.randn(*s, dtype=torch.bfloat16) * 0.05)(D, D)),
    }

def reference(x, e_attr, src, dst, w_a, w_b, w_c, w_u, w_v):
    N, D = x.shape
    hv = x @ w_v
    g = x[dst] @ w_a + x[src] @ w_b + e_attr @ w_c
    eta = _sigmoid(g)
    denom = _segment_sum(eta, dst, N) + 1e-6
    eta_n = eta / denom[dst]
    agg = _segment_sum(eta_n * hv[src], dst, N)
    z = x @ w_u + agg
    relu_z = torch.where(z > 0, z, 0 * z)
    return x + relu_z
```

```python
class Asm:
    def __init__(self):
        self.lines=[]
        self.uid=0
    def __call__(self, s):
        for l in s.strip("\n").split("\n"):
            l=l.strip()
            if not l: continue
            if l.endswith(":") or l.startswith("."):
                self.lines.append(l)
            else:
                self.lines.append("    "+l)
    def label(self, base="L"):
        self.uid+=1
        return f"{base}_{self.uid}"
    def text(self):
        return "\n".join(self.lines)+"\n"
def vr(a,n): return f"v[{a}:{a+n-1}]" if n>1 else f"v{a}"
def sr(a,n): return f"s[{a}:{a+n-1}]" if n>1 else f"s{a}"
def kd(name, vgpr, sgpr):
    acc=(vgpr+3)//4*4
    return f""".section .rodata,"a"
.p2align 6
.amdhsa_kernel {name}
  .amdhsa_next_free_vgpr {vgpr}
  .amdhsa_next_free_sgpr {sgpr}
  .amdhsa_accum_offset {acc}
  .amdhsa_group_segment_fixed_size 0
  .amdhsa_kernarg_size 96
  .amdhsa_user_sgpr_count 2
  .amdhsa_user_sgpr_kernarg_segment_ptr 1
  .amdhsa_system_sgpr_workgroup_id_x 1
.end_amdhsa_kernel
"""
def khead(name):
    return f""".text
.globl {name}
.p2align 8
.type {name},@function
{name}:
"""
```

```python
N=25000; E=800000; NB=98; NCHUNK=256; NBUCK=256
CH_QUADS=782; CH_BYTES=CH_QUADS*4*12
K1_THREADS=832
BMAGIC=42800; BSHIFT=22
WS_IMG=0; WS_IMG_WC=32768
WS_OFF=65536
WS_REC=1<<20
WS_TOT=16<<20
WS_SIZE=32<<20
NLOG2E=0xbfb8aa3b
BIG16=0x7f00
FLAG16=0x3f80
for d in range(N): assert (d*BMAGIC)>>BSHIFT == d//NB
ROWB=640
NROWS=115
R_PART=98
R_ZERO=114
CAP=3840
L_EA=NROWS*ROWB
L_HIST=L_EA+CAP*8
L_PMAX=L_HIST+512
L_FLAG=L_PMAX+512
L_ZEND=L_FLAG+16
L_QI=L_ZEND
L_SF=L_QI+CAP//4*8
L_PMIN=L_SF+CAP*4+16
L_FEND=L_PMIN+512
L_QN=L_FEND
L_SB=L_QN+CAP//4+16
L_STG=L_SB+512
L_END=L_STG+32768
NZIT=(L_ZEND+8191)//8192
NFIT=(L_FEND-L_SF+8191)//8192
assert NZIT*8192<=L_SF and L_SF+NFIT*8192<=L_STG
assert L_END<=163840, L_END
for v in (L_STG,L_EA,L_SF,L_QI,L_QN,L_HIST,L_SB,L_PMIN,L_PMAX,L_FLAG): assert v%16==0,v
SLOWR=13
assert 256*SLOWR+3*NB+32<=CAP
```

```python
from asmlib import *
from consts import *

def gen_k1(a, opts):
    name="gsm_part_kernel"
    a(khead(name))
    ST = opts.get("k1_store","")
    HIST=CH_BYTES
    BASE=HIST+1024
    a(f"""
    s_cmp_ge_u32 s2, {NCHUNK}
    s_cbranch_scc1 K1_END
    s_load_dwordx4 s[4:7], s[0:1], 8
    s_load_dwordx2 s[8:9], s[0:1], 24
    s_load_dwordx2 s[10:11], s[0:1], 88
    v_lshrrev_b32 v1, 6, v0
    s_mul_i32 s12, s2, {CH_QUADS}
    v_readfirstlane_b32 s3, v1
    v_add_u32 v2, s12, v0
    v_lshlrev_b32 v3, 4, v2
    v_lshlrev_b32 v4, 5, v2
    s_cmp_eq_u32 s3, 13
    s_cbranch_scc1 K1_IMG
    v_cmp_gt_u32 vcc, {CH_QUADS}, v0
    s_mov_b64 s[20:21], vcc
    v_cmp_gt_u32 vcc, {E//4}, v2
    s_and_b64 s[20:21], s[20:21], vcc
    s_cmp_lg_u32 s3, 12
    s_cbranch_scc1 K1_NOZ
    v_and_b32 v5, 63, v0
    v_lshlrev_b32 v5, 4, v5
    v_mov_b32 v8, 0
    v_mov_b32 v9, 0
    v_mov_b32 v10, 0
    v_mov_b32 v11, 0
    ds_write_b128 v5, v[8:11] offset:{HIST}
K1_NOZ:
    s_waitcnt lgkmcnt(0)
    s_mov_b32 s24, s8
    s_and_b32 s25, s9, 0xffff
    s_mov_b32 s26, {E*4}
    s_mov_b32 s27, 0x20000
    s_mov_b32 s28, s6
    s_and_b32 s29, s7, 0xffff
    s_mov_b32 s30, {E*4}
    s_mov_b32 s31, 0x20000
    s_mov_b32 s32, s4
    s_and_b32 s33, s5, 0xffff
    s_mov_b32 s34, {E*8}
    s_mov_b32 s35, 0x20000
    s_mov_b64 exec, s[20:21]
    buffer_load_dwordx4 v[8:11], v3, s[24:27], 0 offen
    buffer_load_dwordx4 v[12:15], v3, s[28:31], 0 offen
    buffer_load_dwordx4 v[16:19], v4, s[32:35], 0 offen
    buffer_load_dwordx4 v[20:23], v4, s[32:35], 0 offen offset:16
    s_mul_i32 s13, s2, {CH_BYTES}
    s_add_u32 s13, s13, {WS_REC}
    s_add_u32 s36, s10, s13
    s_addc_u32 s37, s11, 0
    s_and_b32 s37, s37, 0xffff
    s_mov_b32 s38, {CH_BYTES}
    s_mov_b32 s39, 0x20000
    v_mov_b32 v7, 1
    s_barrier
    s_waitcnt vmcnt(3)
    """)
    for i in range(4):
        a(f"v_mul_u32_u24 v{24+i}, {BMAGIC}, v{8+i}")
    for i in range(4):
        a(f"v_lshrrev_b32 v{24+i}, {BSHIFT}, v{24+i}")
    for i in range(4):
        a(f"v_mul_u32_u24 v{28+i}, {NB}, v{24+i}")
    for i in range(4):
        a(f"v_lshlrev_b32 v{24+i}, 2, v{24+i}")
    for i in range(4):
        a(f"ds_add_rtn_u32 v{32+i}, v{24+i}, v7 offset:{HIST}")
    for i in range(4):
        a(f"v_sub_u32 v{8+i}, v{8+i}, v{28+i}")
    a("s_waitcnt vmcnt(2)")
    for i in range(4):
        a(f"v_lshl_or_b32 v{12+i}, v{8+i}, 16, v{12+i}")
    a(f"""
    s_mov_b64 exec, -1
    v_and_b32 v5, 63, v0
    v_lshlrev_b32 v5, 4, v5
    s_waitcnt lgkmcnt(0)
    s_barrier
    ds_read_b128 v[36:39], v5 offset:{HIST}
    s_waitcnt lgkmcnt(0)
    v_add_u32 v41, v36, v37
    v_add_u32 v42, v41, v38
    v_add_u32 v43, v42, v39
    v_mov_b32 v44, v43
    s_nop 1
    v_add_u32_dpp v44, v44, v44 row_shr:1 row_mask:0xf bank_mask:0xf bound_ctrl:0
    s_nop 1
    v_add_u32_dpp v44, v44, v44 row_shr:2 row_mask:0xf bank_mask:0xf bound_ctrl:0
    s_nop 1
    v_add_u32_dpp v44, v44, v44 row_shr:4 row_mask:0xf bank_mask:0xf bound_ctrl:0
    s_nop 1
    v_add_u32_dpp v44, v44, v44 row_shr:8 row_mask:0xf bank_mask:0xf bound_ctrl:0
    s_nop 1
    v_add_u32_dpp v44, v44, v44 row_bcast:15 row_mask:0xa bank_mask:0xf
    s_nop 1
    v_add_u32_dpp v44, v44, v44 row_bcast:31 row_mask:0xc bank_mask:0xf
    v_sub_u32 v48, v44, v43
    v_add_u32 v49, v48, v36
    v_add_u32 v50, v48, v41
    v_add_u32 v51, v48, v42
    ds_write_b128 v5, v[48:51] offset:{BASE}
    s_mov_b64 exec, s[20:21]
    """)
    for i in range(4):
        a(f"ds_read_b32 v{28+i}, v{24+i} offset:{BASE}")
    a(f"""
    s_cmp_lg_u32 s3, 0
    s_cbranch_scc1 K1_NOOFF
    s_mov_b64 exec, -1
    v_lshl_or_b32 v52, v36, 16, v48
    v_lshl_or_b32 v53, v37, 16, v49
    v_lshl_or_b32 v54, v38, 16, v50
    v_lshl_or_b32 v55, v39, 16, v51
    s_lshl_b32 s13, s2, 10
    s_add_u32 s13, s13, {WS_OFF}
    s_add_u32 s40, s10, s13
    s_addc_u32 s41, s11, 0
    s_and_b32 s41, s41, 0xffff
    s_mov_b32 s42, 1024
    s_mov_b32 s43, 0x20000
    buffer_store_dwordx4 v[52:55], v5, s[40:43], 0 offen {ST}
    s_mov_b64 exec, s[20:21]
K1_NOOFF:
    s_waitcnt lgkmcnt(0)
    """)
    for i in range(4):
        a(f"v_add_u32 v{28+i}, v{28+i}, v{32+i}")
    for i in range(4):
        a(f"v_mul_u32_u24 v{28+i}, 12, v{28+i}")
    a("s_waitcnt vmcnt(0)" if False else "")
    a("s_waitcnt vmcnt(0)")
    for i in range(4):
        a(f"ds_write2_b32 v{28+i}, v{16+2*i}, v{17+2*i} offset0:0 offset1:1")
        a(f"ds_write_b32 v{28+i}, v{12+i} offset:8")
    a(f"""
    s_mov_b64 exec, -1
    v_lshlrev_b32 v5, 4, v0
    v_add_u32 v6, {K1_THREADS*16}, v5
    v_add_u32 v7, {2*K1_THREADS*16}, v5
    s_waitcnt lgkmcnt(0)
    s_barrier
    ds_read_b128 v[8:11], v5
    ds_read_b128 v[12:15], v6
    ds_read_b128 v[16:19], v7
    s_waitcnt lgkmcnt(2)
    buffer_store_dwordx4 v[8:11], v5, s[36:39], 0 offen {ST}
    s_waitcnt lgkmcnt(1)
    buffer_store_dwordx4 v[12:15], v6, s[36:39], 0 offen {ST}
    s_waitcnt lgkmcnt(0)
    buffer_store_dwordx4 v[16:19], v7, s[36:39], 0 offen {ST}
    s_endpgm
    """)
    a(f"""
K1_IMG:
    s_load_dwordx2 s[14:15], s[0:1], 0
    s_load_dwordx4 s[16:19], s[0:1], 32
    s_load_dwordx4 s[44:47], s[0:1], 48
    s_load_dwordx2 s[48:49], s[0:1], 64
    v_and_b32 v1, 63, v0
    v_lshlrev_b32 v2, 4, v1
    s_mul_i32 s13, s2, {NB*128}
    v_add_u32 v3, s13, v2
    s_waitcnt lgkmcnt(0)
    s_mov_b32 s24, s14
    s_and_b32 s25, s15, 0xffff
    s_mov_b32 s26, {N*128}
    s_mov_b32 s27, 0x20000
    """)
    if opts.get("k1_prefetch_x",1):
        for i in range(4):
            for j in range(4):
                if i*4+j<13 and (i*4+j)*1024 < NB*128:
                    a(f"buffer_load_dwordx4 v[{8+4*j}:{11+4*j}], v3, s[24:27], 0 offen offset:{j*1024}")
            a(f"v_add_u32 v3, 4096, v3")
    a(f"""
    s_cmp_ge_u32 s2, 34
    s_cbranch_scc1 K1_IMGEND
    s_mov_b32 s28, s10
    s_and_b32 s29, s11, 0xffff
    s_mov_b32 s30, 65536
    s_mov_b32 s31, 0x20000
    v_and_b32 v4, 31, v1
    v_lshrrev_b32 v5, 5, v1
    s_and_b32 s50, s2, 1
    s_lshl_b32 s50, s50, 6
    v_lshlrev_b32 v4, 1, v4
    v_add_u32 v4, s50, v4
    s_cmp_ge_u32 s2, 32
    s_cbranch_scc1 K1_WC
    s_lshr_b32 s51, s2, 3
    s_mov_b32 s32, s18
    s_mov_b32 s33, s19
    s_cmp_eq_u32 s51, 1
    s_cselect_b32 s32, s48, s32
    s_cselect_b32 s33, s49, s33
    s_cmp_eq_u32 s51, 2
    s_cselect_b32 s32, s16, s32
    s_cselect_b32 s33, s17, s33
    s_cmp_eq_u32 s51, 3
    s_cselect_b32 s32, s46, s32
    s_cselect_b32 s33, s47, s33
    s_and_b32 s33, s33, 0xffff
    s_mov_b32 s34, 8192
    s_mov_b32 s35, 0x20000
    s_cmp_eq_u32 s51, 0
    s_cselect_b32 s52, {NLOG2E}, 1.0
    s_lshr_b32 s53, s2, 1
    s_and_b32 s53, s53, 3
    s_lshl_b32 s53, s53, 11
    v_lshlrev_b32 v5, 10, v5
    v_add_u32 v4, v4, v5
    v_add_u32 v4, s53, v4
    """)
    for j in range(8):
        a(f"buffer_load_ushort v{24+j}, v4, s[32:35], 0 offen offset:{j*128}")
    a("s_waitcnt vmcnt(0)")
    for j in range(8):
        a(f"v_lshlrev_b32 v{24+j}, 16, v{24+j}")
    for j in range(8):
        a(f"v_mul_f32 v{24+j}, s52, v{24+j}")
    for j in range(4):
        a(f"v_cvt_pk_bf16_f32 v{32+j}, v{24+2*j}, v{25+2*j}")
    a(f"""
    s_lshl_b32 s13, s2, 10
    buffer_store_dwordx4 v[32:35], v2, s[28:31], s13 offen
    s_branch K1_IMGEND
K1_WC:
    s_mov_b32 s32, s44
    s_and_b32 s33, s45, 0xffff
    s_mov_b32 s34, 512
    s_mov_b32 s35, 0x20000
    """)
    for j in range(4):
        a(f"buffer_load_ushort v{24+j}, v4, s[32:35], 0 offen offset:{j*128}")
    a("s_waitcnt vmcnt(0)")
    for j in range(4):
        a(f"v_lshlrev_b32 v{24+j}, 16, v{24+j}")
    for j in range(4):
        a(f"v_mul_f32 v{24+j}, {NLOG2E}, v{24+j}")
    a(f"""
    v_cvt_pk_bf16_f32 v32, v24, v25
    v_cvt_pk_bf16_f32 v33, v26, v27
    v_cmp_lt_u32 s[54:55], 31, v1
    v_mov_b32 v34, {BIG16<<16}
    v_mov_b32 v35, 0
    s_nop 1
    v_cndmask_b32_e64 v32, v32, v34, s[54:55]
    v_cndmask_b32_e64 v33, v33, v35, s[54:55]
    s_and_b32 s13, s2, 1
    s_lshl_b32 s13, s13, 9
    s_add_u32 s13, s13, {WS_IMG_WC}
    v_lshlrev_b32 v2, 3, v1
    buffer_store_dwordx2 v[32:33], v2, s[28:31], s13 offen
K1_IMGEND:
    s_waitcnt vmcnt(0)
K1_END:
    s_endpgm
    """)
    a(kd(name, 56, 64))
    return f"; @launch kernel={name} grid=({NCHUNK},1,1) block=({K1_THREADS+64},1,1) lds={CH_BYTES+2048}"
```

```python
from asmlib import *
from consts import *

QI=[4,12]
SFV=20
DV=24
SWZ=28
AAD=32
AEA=36; AEI=37; SRA=38; QIA=39; L4N=40
ACD=[[41,42],[43,44]]
ACN=[[45,46],[47,48]]
AE=50
BX=52
WC=[60,62]
WB=64; WV=96
G=[128,144]; H=[160,176]
A=192; XU=208
AOH=[224,228]
XR=232
def wb(s,cb): return WB+(s*2+cb)*4
def wv(s,cb): return WV+(s*2+cb)*4
REC12=128
REC3=4
WAU=4
XAC=36
OFFV=52
TMP=224
MASK=40
def rec(r,p): return (REC12+(r*8+p)*4) if r<2 else (REC3+p*4)
def msk(r,p): return MASK+2*(r*8+p)

def dpp_scan(a, v):
    for sh in (1,2,4,8):
        a(f"s_nop 1\nv_add_u32_dpp v{v}, v{v}, v{v} row_shr:{sh} row_mask:0xf bank_mask:0xf bound_ctrl:0")
    a(f"s_nop 1\nv_add_u32_dpp v{v}, v{v}, v{v} row_bcast:15 row_mask:0xa bank_mask:0xf")
    a(f"s_nop 1\nv_add_u32_dpp v{v}, v{v}, v{v} row_bcast:31 row_mask:0xc bank_mask:0xf")

def interleave(main, extra):
    out=[]
    for i,m in enumerate(main):
        out+=extra.get(i,[])
        out.append(m)
    out+=extra.get(len(main),[])
    return out

def g_mfmas(cb):
    g=vr(G[cb],16)
    l=[]
    for s in range(4):
        l.append(f"v_mfma_f32_32x32x16_bf16 {g}, {vr(A+4*s,4)}, {vr(wb(s,cb),4)}, {'0' if s==0 else g}")
    l.append(f"v_mfma_f32_32x32x16_bf16 {g}, {vr(AOH[cb],4)}, {vr(BX,4)}, {g}")
    l.append(f"v_mfma_f32_32x32x8_bf16 {g}, {vr(AE,2)}, {vr(WC[cb],2)}, {g}")
    return l
def h_mfmas(cb):
    h=vr(H[cb],16)
    return [f"v_mfma_f32_32x32x16_bf16 {h}, {vr(A+4*s,4)}, {vr(wv(s,cb),4)}, {'0' if s==0 else h}" for s in range(4)]
def dma_issue():
    l=[f"v_lshl_add_u32 v{DV+k}, v{SFV+k}, 7, v{SWZ+k}" for k in range(4)]
    d=[]
    for k in range(4):
        d.append([f"s_add_u32 m0, s24, {k*1024}" if k else "s_mov_b32 m0, s24", "s_nop 0", f"buffer_load_dwordx4 v{DV+k}, s[4:7], 0 offen lds"])
    return l,d
def feed_reads(par):
    l=[f"ds_read_b128 {vr(A+4*s,4)}, v{AAD+s}" for s in range(4)]
    l.append(f"ds_read2_b32 {vr(AE,2)}, v{AEA} offset0:0 offset1:1")
    q=QI[par]
    for m in range(4):
        l.append(f"v_add_u32 v{q+2*m}, v{q+2*m}, v{L4N}")
    for m in range(4):
        l.append(f"ds_read_b32 v{BX+m}, v{q+2*m} offset:512")
    return l
def qi_read(par):
    q=QI[par]
    return [f"ds_read_b128 {vr(q,4)}, v{QIA}", f"ds_read_b128 {vr(q+4,4)}, v{QIA} offset:16", f"v_add_u32 v{QIA}, 32, v{QIA}"]
def src_read():
    return [f"ds_read_b128 {vr(SFV,4)}, v{SRA}", f"v_add_u32 v{SRA}, 64, v{SRA}"]
def chains(cb,par):
    g=G[cb]; h=H[cb]; q=QI[par]
    l=[]
    for m in range(4):
        d0=ACD[cb][(m+1)&1]; d=ACD[cb][m&1]; n0=ACN[cb][(m+1)&1]; n=ACN[cb][m&1]
        k=q+2*m+1
        l.append(f"v_mul_f32 v{n}, v{n0}, v{k}")
        l.append(f"v_fma_f32 v{d}, v{d0}, v{k}, v{g+4*m}")
        for r in range(4):
            l.append(f"v_fmac_f32 v{n}, v{g+4*m+r}, v{h+4*m+r}")
            if r<3: l.append(f"v_add_f32 v{d}, v{d}, v{g+4*m+r+1}")
        l.append(f"ds_write2_b32 v{q+2*m}, v{d}, v{n} offset0:{32*cb} offset1:{64+32*cb}")
    return l

def slot(a, cb, par, last=False, opts={}):
    cn=cb^1
    has_next = not (last and cb==1)
    rc=[f"v_rcp_f32 v{G[cb]+i}, v{G[cb]+i}" for i in range(16)]
    ex=[f"v_exp_f32 v{G[cn]+i}, v{G[cn]+i}" for i in range(16)]
    a("s_setprio 1")
    if has_next:
        gm=g_mfmas(cn); hm=h_mfmas(cn)
        pre=[]
        fill=[]
        if cb==1:
            pre=["s_waitcnt lgkmcnt(4)"]
            addr,d=dma_issue()
            lab=a.label("SKD")
            fill=addr+["s_cmp_lt_u32 s25, 2", f"s_cbranch_scc1 {lab}"]+sum(d,[])+[f"{lab}:"]
        elif not last:
            fill=qi_read(par^1)
        extra={0:pre+[gm[0]],3:[gm[1]],6:[gm[2]],9:[gm[3]],12:[gm[4]],15:[gm[5]]}
        seq=interleave(rc,extra)
        seq+=fill
        nfill=len([f for f in fill if not f.endswith(":")])
        if cb==1: nfill=4+2
        need=12-1-nfill-1
        seq.append(hm[0])
        if need>0: seq.append(f"s_nop {need-1}")
        seq+=interleave(ex,{4:[hm[1]],8:[hm[2]],12:[hm[3]]})
    else:
        seq=rc
    for s in seq: a(s)
    a("s_setprio 0")
    pl=[]
    if has_next:
        if cb==0 and not last:
            pl+=["s_waitcnt vmcnt(0) lgkmcnt(0)"]+feed_reads(par^1)+src_read()+[f"v_add_u32 v{AEA}, v{AEA}, v{AEI}"]
        pl+=[f"v_add_f32 v{G[cn]+i}, 1.0, v{G[cn]+i}" for i in range(16)]
    else:
        pl+=["s_nop 0"]
    pl+=chains(cb,par)
    for s in pl: a(s)

def gen_k2(a, opts):
    name="gsm_main_kernel"
    a(khead(name))
    a(f"""
    s_cmp_ge_u32 s2, {NBUCK}
    s_cbranch_scc1 K2_END
    s_load_dwordx2 s[88:89], s[0:1], 0
    s_load_dwordx2 s[90:91], s[0:1], 72
    s_load_dwordx2 s[92:93], s[0:1], 88
    v_lshrrev_b32 v2, 6, v0
    v_and_b32 v1, 63, v0
    v_readfirstlane_b32 s3, v2
    s_mov_b32 s16, 0
    s_mov_b32 s17, 0xffff
    s_mov_b32 s18, 0
K2_BATCH:
    v_lshlrev_b32 v2, 4, v0
    v_add_u32 v3, 0x10000, v2
    v_mov_b32 v4, 0
    v_mov_b32 v5, 0
    v_mov_b32 v6, 0
    v_mov_b32 v7, 0
    v_mov_b32 v8, {FLAG16<<16}
    v_mov_b32 v9, {FLAG16<<16}
    v_mov_b32 v10, {FLAG16<<16}
    v_mov_b32 v11, {FLAG16<<16}
    v_lshrrev_b32 v12, 4, v1
    s_lshl_b32 s26, s3, 2
    v_add_u32 v12, s26, v12
    v_lshlrev_b32 v13, 10, v12
    v_mul_u32_u24 v14, {CH_BYTES}, v12
    v_and_b32 v15, 15, v1
    v_add_u32 v15, s16, v15
    s_waitcnt lgkmcnt(0)
    s_mov_b32 s4, s88
    s_and_b32 s5, s89, 0xffff
    s_mov_b32 s6, {N*128}
    s_mov_b32 s7, 0x20000
    s_mov_b32 s8, s90
    s_and_b32 s9, s91, 0xffff
    s_mov_b32 s10, {N*128}
    s_mov_b32 s11, 0x20000
    s_mov_b32 s12, s92
    s_and_b32 s13, s93, 0xffff
    s_mov_b32 s14, {WS_SIZE}
    s_mov_b32 s15, 0x20000
    s_lshl_b32 s26, s2, 2
    s_add_u32 s26, s26, {WS_OFF}
    """)
    for p in range(8):
        a(f"buffer_load_dword v{OFFV+p}, v13, s[12:15], s26 offen")
        if p<7: a("s_add_u32 s26, s26, 32768")
    a(f"""
    s_lshr_b32 s27, s3, 1              ; nt
    s_and_b32 s28, s3, 1               ; cb
    v_lshrrev_b32 v16, 3, v1           ; r3
    v_and_b32 v17, 7, v1               ; c
    v_lshrrev_b32 v18, 2, v16          ; r3>>2
    v_xor_b32 v17, v17, v18            ; c ^ (r3>>2)
    v_lshlrev_b32 v17, 4, v17          ; swz0
    s_mul_i32 s29, s2, {NB}
    s_lshl_b32 s30, s27, 5
    s_add_u32 s29, s29, s30
    s_lshl_b32 s30, s28, 1
    s_add_u32 s29, s29, s30
    s_lshl_b32 s29, s29, 7
    v_lshlrev_b32 v18, 9, v16          ; 4*r3*128
    v_add_u32 v18, s29, v18
    s_lshl_b32 s30, s28, 6             ; (k0<<1)<<4 = cb*64
    v_xor_b32 v19, s30, v17
    v_add_u32 v20, v18, v19            ; k0 voff
    v_xor_b32 v19, 32, v19
    v_add_u32 v21, v18, v19
    v_add_u32 v21, 128, v21            ; k0+1 voff
    s_lshl_b32 s30, s3, 11             ; nt*4096 + k0*1024 = w*2048
    s_add_u32 s30, s30, {L_STG}
    s_mov_b32 m0, s30
    v_lshlrev_b32 v22, 4, v1           ; l*16
    buffer_load_dwordx4 v20, s[4:7], 0 offen lds
    s_add_u32 m0, s30, 1024
    s_lshl_b32 s31, s3, 11
    buffer_load_dwordx4 v21, s[4:7], 0 offen lds
    s_add_u32 m0, s30, 16384
    s_nop 0
    buffer_load_dwordx4 v22, s[12:15], s31 offen lds
    buffer_load_dwordx4 v22, s[12:15], s31 offen offset:1024 lds
    """)
    for i in range(NZIT):
        if i<8: a(f"ds_write_b128 v2, v[4:7] offset:{i*8192}")
        else: a(f"ds_write_b128 v3, v[4:7] offset:{(i-8)*8192}")
    for i in range(NFIT):
        a(f"ds_write_b128 v3, v[8:11] offset:{L_SF-65536+i*8192}")
    a(f"""
    v_mov_b32 v{TMP}, v14
    v_mov_b32 v{TMP+1}, v15
    s_lshl_b32 s31, s28, 10
    v_add_u32 v{TMP+2}, s31, v22       ; l*16 + cb*1024
    v_lshlrev_b32 v{TMP+3}, 3, v1      ; l*8
    s_waitcnt lgkmcnt(0)
    """)
    for m in range(2):
        for s in range(4):
            a(f"s_mov_b32 s31, {16384+m*8192+s*2048}")
            a(f"buffer_load_dwordx4 {vr(WAU+(m*4+s)*4,4)}, v{TMP+2}, s[12:15], s31 offen")
    a(f"""
    s_mov_b32 s31, {WS_IMG_WC}
    buffer_load_dwordx2 {vr(WC[0],2)}, v{TMP+3}, s[12:15], s31 offen
    buffer_load_dwordx2 {vr(WC[1],2)}, v{TMP+3}, s[12:15], s31 offen offset:512
    v_mov_b32 v{TMP+4}, 0
    s_waitcnt vmcnt(14)
    """)
    for p in range(8):
        o=OFFV+p
        a(f"""
        v_lshrrev_b32 v{TMP+5}, 16, v{o}
        v_and_b32 v{o}, 0xffff, v{o}
        v_max_u32 v{TMP+4}, v{TMP+4}, v{TMP+5}
        v_min_u32 v{TMP+5}, s17, v{TMP+5}
        v_add_u32 v{o}, v{o}, v{TMP+1}
        v_sub_u32 v{TMP+5}, v{TMP+5}, v{TMP+1}
        v_mad_u32_u24 v{o}, v{o}, 12, v{TMP}
        v_cmp_lt_i32 {sr(msk(0,p),2)}, 0, v{TMP+5}
        v_cmp_lt_i32 {sr(msk(1,p),2)}, 16, v{TMP+5}
        v_cmp_lt_i32 {sr(msk(2,p),2)}, 32, v{TMP+5}
        s_mov_b32 s31, {WS_REC+p*32*CH_BYTES}
        s_mov_b64 exec, {sr(msk(0,p),2)}
        buffer_load_dwordx3 {vr(rec(0,p),3)}, v{o}, s[12:15], s31 offen
        s_mov_b64 exec, {sr(msk(1,p),2)}
        buffer_load_dwordx3 {vr(rec(1,p),3)}, v{o}, s[12:15], s31 offen offset:192
        s_mov_b64 exec, -1
        """)
    a(f"""
    v_and_b32 v{TMP+6}, 31, v1         ; i
    v_lshrrev_b32 v{TMP+7}, 5, v1      ; hA
    v_and_b32 v{TMP+12}, 3, v{TMP+6}   ; k
    v_lshrrev_b32 v{TMP+13}, 2, v{TMP+6} ; r3
    v_lshlrev_b32 v{TMP+14}, 10, v{TMP+12}
    v_lshl_add_u32 v{TMP+14}, v{TMP+13}, 7, v{TMP+14}  ; pos*128
    v_lshrrev_b32 v{TMP+13}, 2, v{TMP+13}
    v_lshl_or_b32 v{TMP+12}, v{TMP+12}, 1, v{TMP+13}   ; f
    v_xor_b32 v{TMP+12}, v{TMP+12}, v{TMP+7}           ; f ^ hA
    v_lshl_add_u32 v{TMP+8}, v{TMP+12}, 4, v{TMP+14}
    v_xor_b32 v{TMP+9}, 32, v{TMP+8}
    v_xor_b32 v{TMP+10}, 64, v{TMP+8}
    v_xor_b32 v{TMP+11}, 96, v{TMP+8}
    s_lshl_b32 s31, s27, 12
    s_add_u32 s31, s31, {L_STG}
    v_add_u32 v{TMP+12}, s31, v{TMP+8}
    v_add_u32 v{TMP+13}, s31, v{TMP+9}
    v_add_u32 v{TMP+14}, s31, v{TMP+10}
    v_add_u32 v{TMP+15}, s31, v{TMP+11}
    v_lshlrev_b32 v{TMP+16}, 4, v1
    v_add_u32 v{TMP+16}, {L_STG+16384}, v{TMP+16}
    v_mov_b32 v{TMP+17}, {L_FLAG}
    s_waitcnt vmcnt(16)
    s_barrier
    """)
    for s in range(4):
        a(f"ds_read_b128 {vr(A+4*s,4)}, v{TMP+12+s}")
    a(f"ds_max_u32 v{TMP+17}, v{TMP+4}")
    for f in range(8):
        a(f"ds_read_b128 {vr(WB+4*f,4)}, v{TMP+16} offset:{f*1024}")
    a("s_waitcnt lgkmcnt(9)")
    for s in range(4):
        a(f"v_mfma_f32_32x32x16_bf16 {vr(XAC,16)}, {vr(A+4*s,4)}, {vr(WAU+4*s,4)}, {'0' if s==0 else vr(XAC,16)}")
    for f in range(8,16):
        a(f"ds_read_b128 {vr(WB+4*f,4)}, v{TMP+16} offset:{f*1024}")
    for s in range(4):
        a(f"v_mfma_f32_32x32x16_bf16 {vr(XU,16)}, {vr(A+4*s,4)}, {vr(WAU+16+4*s,4)}, {'0' if s==0 else vr(XU,16)}")
    a(f"""
    v_lshlrev_b32 v{TMP+18}, 2, v{TMP+6}
    v_mul_u32_u24 v{TMP+19}, {4*ROWB}, v{TMP+7}
    v_add_u32 v{TMP+18}, v{TMP+18}, v{TMP+19}
    s_mul_i32 s31, s27, {32*ROWB}
    s_lshl_b32 s30, s28, 1
    s_add_u32 s31, s31, s30
    s_add_u32 s31, s31, 512
    v_add_u32 v{TMP+18}, s31, v{TMP+18}
    s_or_b64 s[32:33], {sr(msk(2,0),2)}, {sr(msk(2,1),2)}
    """)
    for p in range(2,8):
        a(f"s_or_b64 s[32:33], s[32:33], {sr(msk(2,p),2)}")
    a(f"""
    s_cbranch_scc0 K2_NOR3
    """)
    for p in range(8):
        a(f"""
        s_mov_b32 s31, {WS_REC+p*32*CH_BYTES}
        s_mov_b64 exec, {sr(msk(2,p),2)}
        buffer_load_dwordx3 {vr(rec(2,p),3)}, v{OFFV+p}, s[12:15], s31 offen offset:384
        """)
    a(f"""
    s_mov_b64 exec, -1
K2_NOR3:
    s_nop 7
    """)
    for i in range(16):
        a(f"v_mul_f32 v{XAC+i}, {NLOG2E}, v{XAC+i}")
    for i in range(16):
        a(f"v_cvt_pk_bf16_f32 v{XAC+i}, v{XAC+i}, v{XAC+i}")
    a(f"""
    s_cmp_eq_u32 s27, 3
    s_cbranch_scc1 K2_XA3
    """)
    for i in range(16):
        a(f"ds_write_b16 v{TMP+18}, v{XAC+i} offset:{((i>>2)*8+(i&3))*ROWB}")
    a(f"""
    s_branch K2_XAD
K2_XA3:
    s_mov_b32 exec_hi, 0
    ds_write_b16 v{TMP+18}, v{XAC} offset:0
    ds_write_b16 v{TMP+18}, v{XAC+1} offset:{ROWB}
    s_mov_b64 exec, -1
K2_XAD:
    v_mov_b32 v{TMP+31}, 1
    s_waitcnt vmcnt(0)
    """)
    def ha(r,p): return (TMP+ (r*8+p)) if r<2 else (XAC+p)
    def hist(r):
        for p in range(8):
            q=rec(r,p)
            a(f"""
            s_mov_b64 exec, {sr(msk(r,p),2)}
            v_lshrrev_b32 v{ha(r,p)}, 16, v{q+2}
            v_lshlrev_b32 v{ha(r,p)}, 2, v{ha(r,p)}
            v_add_u32 v{ha(r,p)}, {L_HIST}, v{ha(r,p)}
            ds_add_rtn_u32 v{q+3}, v{ha(r,p)}, v{TMP+31}
            """)
    a("s_waitcnt lgkmcnt(0)")
    hist(0); hist(1)
    a(f"""
    s_cmp_eq_u64 s[32:33], 0
    s_cbranch_scc1 K2_NOH3
    """)
    hist(2)
    a(f"""
K2_NOH3:
    s_mov_b64 exec, -1
    v_lshlrev_b32 v{TMP+16}, 3, v1
    v_add_u32 v{TMP+17}, {L_HIST}, v{TMP+16}
    v_add_u32 v{TMP+16}, {L_SB}, v{TMP+16}
    v_mov_b32 v{TMP+18}, {L_FLAG}
    s_waitcnt lgkmcnt(0)
    s_barrier
    ds_read_b64 v[{TMP+20}:{TMP+21}], v{TMP+17}
    ds_read_b32 v{TMP+19}, v{TMP+18}
    s_waitcnt lgkmcnt(0)
    v_add_u32 v{TMP+20}, 3, v{TMP+20}
    v_add_u32 v{TMP+21}, 3, v{TMP+21}
    v_and_b32 v{TMP+20}, 0xfffffffc, v{TMP+20}
    v_and_b32 v{TMP+21}, 0xfffffffc, v{TMP+21}
    v_add_u32 v{TMP+22}, v{TMP+20}, v{TMP+21}
    v_mov_b32 v{TMP+23}, v{TMP+22}
    v_readfirstlane_b32 s19, v{TMP+19}
    """)
    dpp_scan(a, TMP+23)
    a(f"""
    v_sub_u32 v{TMP+24}, v{TMP+23}, v{TMP+22}
    v_add_u32 v{TMP+25}, v{TMP+24}, v{TMP+20}
    v_readlane_b32 s20, v{TMP+23}, 63
    ds_write_b64 v{TMP+16}, v[{TMP+24}:{TMP+25}]
    s_lshr_b32 s20, s20, 2              ; Q quads
    s_cmp_lg_u32 s18, 0
    s_cbranch_scc1 K2_OK
    s_cmp_gt_u32 s19, 48
    s_cbranch_scc1 K2_GOSLOW
    s_cmp_le_u32 s20, {CAP//4}
    s_cbranch_scc1 K2_OK
K2_GOSLOW:
    s_mov_b32 s18, 1
    s_mov_b32 s17, {SLOWR}
    s_waitcnt lgkmcnt(0)
    s_barrier
    s_branch K2_BATCH
K2_OK:
    """)
    def sbread(r):
        for p in range(8):
            a(f"""
            s_mov_b64 exec, {sr(msk(r,p),2)}
            ds_read_b32 v{ha(r,p)}, v{ha(r,p)} offset:{L_SB-L_HIST}
            """)
    def scat(r):
        for p in range(8):
            q=rec(r,p); h=ha(r,p)
            a(f"""
            s_mov_b64 exec, {sr(msk(r,p),2)}
            v_add_u32 v{h}, v{h}, v{q+3}
            v_lshlrev_b32 v{q+3}, 3, v{h}
            v_add_u32 v{q+3}, {L_EA}, v{q+3}
            ds_write_b64 v{q+3}, v[{q}:{q+1}]
            v_lshlrev_b32 v{q+3}, 2, v{h}
            v_add_u32 v{q+3}, {L_SF}, v{q+3}
            v_and_b32 v{q}, 0xffff, v{q+2}
            ds_write_b32 v{q+3}, v{q}
            v_lshrrev_b32 v{h}, 2, v{h}
            v_add_u32 v{h}, {L_QN}, v{h}
            v_lshrrev_b32 v{q+2}, 16, v{q+2}
            ds_write_b8 v{h}, v{q+2}
            """)
    sbread(0); a("s_waitcnt lgkmcnt(7)" if False else ""); sbread(1)
    a("s_waitcnt lgkmcnt(0)")
    scat(0); scat(1)
    a(f"""
    s_cmp_eq_u64 s[32:33], 0
    s_cbranch_scc1 K2_NOS3
    """)
    sbread(2); a("s_waitcnt lgkmcnt(0)"); scat(2)
    a(f"""
K2_NOS3:
    s_mov_b64 exec, -1
    s_add_u32 s26, s20, 7
    s_lshr_b32 s26, s26, 3             ; TT
    s_lshr_b32 s27, s26, 3             ; NT0
    s_and_b32 s26, s26, 7              ; rem
    s_mul_i32 s22, s3, s27
    s_min_u32 s28, s3, s26
    s_add_u32 s22, s22, s28            ; tilebase
    s_lshl_b32 s22, s22, 3             ; qs0
    s_cmp_lt_u32 s3, s26
    s_cselect_b32 s28, 1, 0
    s_add_u32 s21, s27, s28            ; NT
    s_lshl_b32 s28, s21, 2             ; 4NT
    s_add_u32 s23, s22, s28            ; qs1
    s_lshl_b32 s24, s3, 12
    s_add_u32 s24, s24, {L_STG}
    ; statics
    v_and_b32 v2, 31, v1               ; i / n
    v_lshrrev_b32 v3, 5, v1            ; h
    v_lshlrev_b32 v{L4N}, 2, v2
    v_and_b32 v{TMP+12}, 3, v2         ; k=r
    v_lshrrev_b32 v{TMP+13}, 2, v2     ; r3=quadidx
    v_lshlrev_b32 v{TMP+14}, 10, v{TMP+12}
    v_lshl_add_u32 v{TMP+14}, v{TMP+13}, 7, v{TMP+14}
    v_lshrrev_b32 v{TMP+15}, 2, v{TMP+13}
    v_lshl_or_b32 v{TMP+15}, v{TMP+12}, 1, v{TMP+15}
    v_xor_b32 v{TMP+15}, v{TMP+15}, v3
    v_lshl_add_u32 v{TMP+14}, v{TMP+15}, 4, v{TMP+14}
    v_add_u32 v{AAD}, s24, v{TMP+14}
    v_xor_b32 v{TMP+15}, 32, v{TMP+14}
    v_add_u32 v{AAD+1}, s24, v{TMP+15}
    v_xor_b32 v{TMP+15}, 64, v{TMP+14}
    v_add_u32 v{AAD+2}, s24, v{TMP+15}
    v_xor_b32 v{TMP+15}, 96, v{TMP+14}
    v_add_u32 v{AAD+3}, s24, v{TMP+15}
    v_and_b32 v{TMP+15}, 1, v{TMP+13}
    v_mul_u32_u24 v{TMP+15}, s28, v{TMP+15}
    v_lshrrev_b32 v{TMP+16}, 1, v{TMP+13}
    v_add3_u32 v{TMP+15}, v{TMP+15}, v{TMP+16}, s22
    v_lshl_add_u32 v{TMP+15}, v{TMP+15}, 2, v{TMP+12}    ; slot0
    v_lshlrev_b32 v{TMP+16}, 3, v{TMP+15}
    v_add_u32 v{TMP+16}, {L_EA}, v{TMP+16}
    v_lshlrev_b32 v{TMP+17}, 2, v{TMP+15}
    v_add_u32 v{TMP+17}, {L_SF}, v{TMP+17}
    v_cmp_lt_u32 s[34:35], 31, v1
    v_mov_b32 v{TMP+18}, 128
    v_mov_b32 v{TMP+19}, 64
    v_cndmask_b32_e64 v{AEA}, v{TMP+16}, v{TMP+17}, s[34:35]
    v_cndmask_b32_e64 v{AEI}, v{TMP+18}, v{TMP+19}, s[34:35]
    v_and_b32 v{TMP+16}, 1, v{TMP+13}
    v_lshrrev_b32 v{TMP+17}, 1, v{TMP+13}
    v_cmp_eq_u32 s[36:37], v{TMP+16}, v3
    v_mov_b32 v{TMP+18}, 7
    v_mov_b32 v{TMP+19}, 0x3f80
    v_cndmask_b32_e64 v{TMP+17}, v{TMP+18}, v{TMP+17}, s[36:37]   ; m or 7
    v_mov_b32 v{TMP+18}, 0
    """)
    a(f"""
    v_lshrrev_b32 v{TMP+20}, 3, v1     ; r3
    v_and_b32 v{TMP+21}, 7, v1
    v_lshrrev_b32 v{TMP+22}, 2, v{TMP+20}
    v_xor_b32 v{TMP+21}, v{TMP+21}, v{TMP+22}
    v_lshlrev_b32 v{SWZ}, 4, v{TMP+21}
    v_xor_b32 v{SWZ+1}, 32, v{SWZ}
    v_xor_b32 v{SWZ+2}, 64, v{SWZ}
    v_xor_b32 v{SWZ+3}, 96, v{SWZ}
    v_and_b32 v{TMP+21}, 1, v{TMP+20}
    v_mul_u32_u24 v{TMP+21}, s28, v{TMP+21}
    v_lshrrev_b32 v{TMP+22}, 1, v{TMP+20}
    v_add3_u32 v{TMP+21}, v{TMP+21}, v{TMP+22}, s22
    v_lshlrev_b32 v{TMP+21}, 4, v{TMP+21}
    v_add_u32 v{SRA}, {L_SF}, v{TMP+21}
    v_mul_u32_u24 v{TMP+21}, s28, v3
    v_add_u32 v{TMP+21}, s22, v{TMP+21}      ; qs[h]
    v_lshlrev_b32 v{QIA}, 3, v{TMP+21}
    v_add_u32 v{QIA}, {L_QI}, v{QIA}
    v_add_u32 v{TMP+22}, {L_QN-1}, v{TMP+21} ; &QN[qs-1]
    v_add_u32 v{TMP+23}, v{TMP+22}, v2       ; &QN[qs+j-1]
    """)
    for j in range(4):
        a(f"""
        v_cmp_eq_u32 s[36:37], {j}, v{TMP+17}
        s_nop 1
        v_cndmask_b32_e64 v{TMP+24+j}, v{TMP+18}, v{TMP+19}, s[36:37]
        """)
    for c in range(2):
        for x in range(2):
            a(f"v_mov_b32 v{ACD[c][x]}, 0\nv_mov_b32 v{ACN[c][x]}, 0")
    a(f"""
    s_waitcnt lgkmcnt(0)
    s_barrier
    s_cmp_eq_u32 s21, 0
    s_cbranch_scc1 K2_LOOPDONE
    ds_read_b128 {vr(SFV,4)}, v{SRA}
    ds_read_u8 v4, v{TMP+22}             ; hprev
    ds_read_u8 v5, v{TMP+22} offset:1    ; head
    ds_read_u8 v6, v{TMP+23}             ; prev (j)
    ds_read_u8 v7, v{TMP+23} offset:1    ; node (j)
    ds_read_u8 v8, v{TMP+23} offset:32   ; prev (j+32)
    ds_read_u8 v9, v{TMP+23} offset:33   ; node (j+32)
    v_add_u32 v{SRA}, 64, v{SRA}
    """)
    for j in range(4):
        a(f"v_mov_b32 v{AOH[0]+j}, v{TMP+24+j}" if AOH[0]+j!=TMP+24+j else "")
    for j in range(4):
        a(f"v_lshlrev_b32 v{AOH[1]+j}, 16, v{TMP+24+j}")
    a("s_waitcnt lgkmcnt(6)")
    addr,d=dma_issue()
    for s in addr+sum(d,[]): a(s)
    a(f"""
    ds_read_b128 {vr(SFV,4)}, v{SRA}
    v_add_u32 v{SRA}, 64, v{SRA}
    s_lshl_b32 s26, s3, 1
    s_add_u32 s26, s26, {R_PART}
    v_add_u32 v10, s26, v3
    v_add_u32 v11, v{TMP+21}, v2         ; u (j)
    v_add_u32 v12, 32, v11               ; u (j+32)
    v_mov_b32 v13, {R_PART}
    v_mov_b32 v14, 1.0
    v_mov_b32 v15, 0
    s_waitcnt lgkmcnt(1)
    v_cmp_eq_u32 s[34:35], v4, v5
    v_cmp_lt_u32 s[36:37], 0, v{TMP+21}
    v_cmp_gt_u32 s[38:39], s20, v{TMP+21}
    s_and_b64 s[34:35], s[34:35], s[36:37]
    s_and_b64 s[34:35], s[34:35], s[38:39]   ; cont
    """)
    for (prev,node,u,first) in ((6,7,11,True),(8,9,12,False)):
        a(f"""
        v_cmp_eq_u32 s[36:37], v{node}, v5
        v_cmp_eq_u32 s[38:39], v{node}, v{prev}
        s_and_b64 s[36:37], s[36:37], s[34:35]
        v_cmp_gt_u32 s[94:95], s20, v{u}
        s_and_b64 s[38:39], s[38:39], s[94:95]
        v_cndmask_b32_e64 v16, v{node}, v10, s[36:37]
        """)
        if first:
            a(f"""
            v_cmp_lt_u32 s[36:37], 0, v2
            s_and_b64 s[38:39], s[38:39], s[36:37]
            """)
        a(f"""
        v_cndmask_b32_e64 v16, v13, v16, s[94:95]
        v_cndmask_b32_e64 v17, v15, v14, s[38:39]
        v_mul_u32_u24 v16, {ROWB}, v16
        v_lshlrev_b32 v18, 3, v{u}
        v_add_u32 v18, {L_QI}, v18
        v_cmp_gt_u32 s[36:37], s28, v2
        """ if first else f"""
        v_cndmask_b32_e64 v16, v13, v16, s[94:95]
        v_cndmask_b32_e64 v17, v15, v14, s[38:39]
        v_mul_u32_u24 v16, {ROWB}, v16
        v_lshlrev_b32 v18, 3, v{u}
        v_add_u32 v18, {L_QI}, v18
        v_add_u32 v19, 32, v2
        v_cmp_gt_u32 s[36:37], s28, v19
        """)
        a(f"""
        s_mov_b64 exec, s[36:37]
        ds_write_b64 v18, v[16:17]
        s_mov_b64 exec, -1
        """)
    a(f"""
    s_mov_b64 exec, s[34:35]
    v_mul_u32_u24 v16, {ROWB}, v5
    v_add_u32 v16, v16, v{L4N}
    ds_read_b32 v17, v16 offset:512
    v_mul_u32_u24 v18, {ROWB}, v10
    v_add_u32 v18, v18, v{L4N}
    v_lshlrev_b32 v19, 2, v5
    v_add_u32 v19, {L_PMAX}, v19
    ds_max_u32 v19, v10
    ds_min_u32 v19, v10 offset:{L_PMIN-L_PMAX}
    s_waitcnt lgkmcnt(2)
    ds_write_b32 v18, v17 offset:512
    s_mov_b64 exec, -1
    """)
    for s in qi_read(0): a(s)
    a("s_waitcnt vmcnt(0) lgkmcnt(0)")
    for s in feed_reads(0): a(s)
    a(f"v_add_u32 v{AEA}, v{AEA}, v{AEI}")
    a("s_waitcnt lgkmcnt(0)")
    a("s_cmp_lt_u32 s21, 2\ns_cbranch_scc1 K2_SKD0")
    addr,d=dma_issue()
    for s in addr+sum(d,[]): a(s)
    a("K2_SKD0:")
    for s in g_mfmas(0)+h_mfmas(0): a(s)
    a("s_nop 7")
    for i in range(16): a(f"v_exp_f32 v{G[0]+i}, v{G[0]+i}")
    for i in range(16): a(f"v_add_f32 v{G[0]+i}, 1.0, v{G[0]+i}")
    a("s_sub_u32 s25, s21, 1")
    a("K2_LOOP:")
    for par in range(2):
        a(f"s_cmp_eq_u32 s25, 0\ns_cbranch_scc1 K2_LAST{par}")
        slot(a,0,par,False,opts); slot(a,1,par,False,opts)
        a("s_sub_u32 s25, s25, 1")
    a("s_branch K2_LOOP")
    for par in range(2):
        a(f"K2_LAST{par}:")
        slot(a,0,par,True,opts); slot(a,1,par,True,opts)
        if par==0: a("s_branch K2_LOOPDONE")
    a(f"""
K2_LOOPDONE:
    s_setprio 0
    v_lshlrev_b32 v4, 4, v0
    s_mul_i32 s26, s2, {NB*128}
    v_add_u32 v4, s26, v4
    v_add_u32 v5, 8192, v4             ; item1
    v_cmp_gt_u32 vcc, {NB*8-512}, v0
    s_mov_b64 s[34:35], vcc
    s_waitcnt vmcnt(0)
    buffer_load_dwordx4 v[{XR}:{XR+3}], v4, s[4:7], 0 offen
    s_mov_b64 exec, s[34:35]
    buffer_load_dwordx4 v[{XR+4}:{XR+7}], v5, s[4:7], 0 offen
    s_mov_b64 exec, -1
    v_lshlrev_b32 v6, 9, v3
    v_add_u32 v6, v6, v{L4N}
    v_add_u32 v6, s24, v6
    """)
    for i in range(16):
        a(f"ds_write_b32 v6, v{XU+i} offset:{((i>>2)*8+(i&3))*128}")
    a(f"""
    s_waitcnt lgkmcnt(0)
    s_barrier
    """)
    for it in range(2):
        xr=XR+4*it
        if it==1:
            a(f"""
            s_cmp_eq_u64 s[34:35], 0
            s_cbranch_scc1 K2_FIN
            s_mov_b64 exec, s[34:35]
            """)
        a(f"""
        v_lshrrev_b32 v8, 3, v0
        {'v_add_u32 v8, 64, v8' if it else ''}
        v_and_b32 v9, 7, v0
        v_lshlrev_b32 v10, 2, v8
        v_add_u32 v10, {L_PMAX}, v10
        ds_read_b32 v11, v10
        ds_read_b32 v12, v10 offset:{L_PMIN-L_PMAX}
        v_mul_u32_u24 v13, {ROWB}, v8
        v_lshlrev_b32 v14, 5, v9            ; c8*32
        v_add_u32 v13, v13, v14
        ds_read_b128 v[16:19], v13
        ds_read_b128 v[20:23], v13 offset:16
        ds_read_b128 v[24:27], v13 offset:256
        ds_read_b128 v[28:31], v13 offset:272
        v_lshrrev_b32 v15, 5, v8
        v_lshlrev_b32 v15, 13, v15          ; nt*8192
        v_and_b32 v10, 31, v8
        v_lshl_add_u32 v15, v10, 7, v15     ; + i*128
        v_lshrrev_b32 v10, 2, v9
        v_lshl_add_u32 v15, v10, 12, v15    ; + cb*4096
        v_and_b32 v10, 3, v9
        v_lshl_add_u32 v15, v10, 5, v15
        v_add_u32 v15, {L_STG}, v15
        ds_read_b128 v[48:51], v15
        ds_read_b128 v[52:55], v15 offset:16
        v_mov_b32 v10, {R_ZERO}
        s_waitcnt lgkmcnt(6)
K2_PL{it}:
        v_cmp_le_u32 s[36:37], v12, v11
        s_nop 1
        v_cndmask_b32_e64 v13, v10, v12, s[36:37]
        v_mul_u32_u24 v13, {ROWB}, v13
        v_add_u32 v13, v13, v14
        ds_read_b128 v[32:35], v13
        ds_read_b128 v[36:39], v13 offset:16
        ds_read_b128 v[40:43], v13 offset:256
        ds_read_b128 v[44:47], v13 offset:272
        v_add_u32 v12, 1, v12
        v_cmp_le_u32 vcc, v12, v11
        s_waitcnt lgkmcnt(0)
        """)
        for i in range(16):
            a(f"v_add_f32 v{16+i}, v{16+i}, v{32+i}")
        a(f"s_cbranch_vccnz K2_PL{it}")
        a(f"""
        s_cmp_eq_u32 s18, 0
        s_cbranch_scc1 K2_NOSLOW{it}
        s_mul_i32 s26, s2, {NB*512}
        s_add_u32 s26, s26, {WS_TOT+it*512*64}
        v_lshlrev_b32 v13, 6, v0
        s_cmp_eq_u32 s16, 0
        s_cbranch_scc1 K2_NOLD{it}
        buffer_load_dwordx4 v[32:35], v13, s[12:15], s26 offen sc1
        buffer_load_dwordx4 v[36:39], v13, s[12:15], s26 offen offset:16 sc1
        buffer_load_dwordx4 v[40:43], v13, s[12:15], s26 offen offset:32 sc1
        buffer_load_dwordx4 v[44:47], v13, s[12:15], s26 offen offset:48 sc1
        s_waitcnt vmcnt(0)
        """)
        for i in range(16):
            a(f"v_add_f32 v{16+i}, v{16+i}, v{32+i}")
        a(f"""
K2_NOLD{it}:
        buffer_store_dwordx4 v[16:19], v13, s[12:15], s26 offen sc1
        buffer_store_dwordx4 v[20:23], v13, s[12:15], s26 offen offset:16 sc1
        buffer_store_dwordx4 v[24:27], v13, s[12:15], s26 offen offset:32 sc1
        buffer_store_dwordx4 v[28:31], v13, s[12:15], s26 offen offset:48 sc1
        s_waitcnt vmcnt(0)
K2_NOSLOW{it}:
        """)
        for i in range(8):
            a(f"v_add_f32 v{16+i}, 0x358637bd, v{16+i}")
        for i in range(8):
            a(f"v_rcp_f32 v{16+i}, v{16+i}")
        a("s_waitcnt vmcnt(0)")
        for i in range(8):
            a(f"v_fma_f32 v{16+i}, v{16+i}, v{24+i}, v{48+i}")
        for i in range(8):
            a(f"v_max_f32 v{16+i}, 0, v{16+i}")
        for i in range(4):
            a(f"v_lshlrev_b32 v{24+2*i}, 16, v{xr+i}")
            a(f"v_and_b32 v{25+2*i}, 0xffff0000, v{xr+i}")
        for i in range(8):
            a(f"v_add_f32 v{16+i}, v{16+i}, v{24+i}")
        for i in range(4):
            a(f"v_cvt_pk_bf16_f32 v{24+i}, v{16+2*i}, v{17+2*i}")
        a(f"buffer_store_dwordx4 v[24:27], v{4+it}, s[8:11], 0 offen")
    a(f"""
K2_FIN:
    s_mov_b64 exec, -1
    s_cmp_eq_u32 s18, 0
    s_cbranch_scc1 K2_END
    s_add_u32 s16, s16, {SLOWR}
    s_add_u32 s17, s17, {SLOWR}
    s_cmp_ge_u32 s16, s19
    s_cbranch_scc1 K2_END
    s_waitcnt vmcnt(0) lgkmcnt(0)
    s_barrier
    s_branch K2_BATCH
K2_END:
    s_endpgm
    """)
    a(kd(name, 256, 96))
    return f"; @launch kernel={name} grid=({NBUCK},1,1) block=(512,1,1) lds={L_END}"
```

```python
import sys
sys.path.insert(0,'gen')
from asmlib import *
from k1 import gen_k1
from k2 import gen_k2
import json
opts=json.loads(sys.argv[2]) if len(sys.argv)>2 else {}
out=sys.argv[1] if len(sys.argv)>1 else 'gather_scatter__edge_featured_mpnn_gatedgcn__graph.s'
ref=open('gather_scatter__edge_featured_mpnn_gatedgcn__graph.s.ref').read().split('\n')
hdr=[l for l in ref if l.startswith(';') and '@launch' not in l and 'Override' not in l and 'grid=ceil' not in l]
a=Asm()
l1=gen_k1(a,opts)
l2=gen_k2(a,opts)
txt="\n".join(hdr)+"\n"+l1+"\n"+l2+"\n"+'.amdgcn_target "amdgcn-amd-amdhsa--gfx950"\n'+a.text()
open(out,'w').write(txt)
print("wrote",out,len(txt))
```

```python
N=25000; E=800000; NB=98; NCHUNK=256; NBUCK=256
CH_QUADS=782; CH_BYTES=CH_QUADS*4*12
K1_THREADS=448
BMAGIC=42800; BSHIFT=22
WS_IMG=0; WS_IMG_WC=32768
WS_OFF=65536
WS_REC=1<<20
WS_TOT=16<<20
WS_SIZE=32<<20
NLOG2E=0xbfb8aa3b
BIG16=0x7f00
FLAG16=0x3f80
for d in range(N): assert (d*BMAGIC)>>BSHIFT == d//NB
ROWB=640
R_PART=97
R_ZERO=113
NROWS=114
CAP=3712
L_Z=R_ZERO*ROWB
L_HIST=NROWS*ROWB
L_PMAX=L_HIST+512
L_FLAG=L_PMAX+512
L_QM=L_FLAG+16
L_ZEND=L_QM+CAP//4+16
L_PMIN=L_ZEND
L_BM=L_PMIN+512
L_ADJ=L_BM+512
L_SB=L_ADJ+1024
L_QI=L_SB+512
L_EA=L_QI+CAP//4*8
L_SF=L_EA+CAP*8+16
L_STG=L_SF+CAP*4+16
L_END=L_STG+32768
assert L_END<=163840, L_END
for v in (L_STG,L_EA,L_SF,L_QI,L_QM,L_HIST,L_SB,L_PMIN,L_PMAX,L_FLAG,L_BM,L_ADJ,L_ZEND): assert v%16==0,v
SLOWR=13
NPASS=8
assert 256*SLOWR+3*NB+32<=CAP
assert 32*SLOWR<=64*NPASS
```

```python
from asmlib import *
from consts import *

def gen_k1(a, opts):
    name="gsm_part_kernel"
    a(khead(name))
    ST = opts.get("k1_store","")
    STAMP=opts.get("stamp1",0)
    cnt=[0]
    SV=100
    def stamp():
        if not STAMP: return
        a(f"s_memtime s[60:61]\ns_waitcnt lgkmcnt(0)\nv_writelane_b32 v{SV}, s60, {cnt[0]}")
        cnt[0]+=1
    if STAMP: a(f"s_memrealtime s[62:63]\ns_waitcnt lgkmcnt(0)\nv_writelane_b32 v{SV}, s62, 61")
    stamp()
    HIST=CH_BYTES
    BASE=HIST+1024
    NT=K1_THREADS
    D=[8,12]; S=[16,20]; EAr=[24,32]; BK=[40,44]; RK=[48,52]; T=[56,60]
    M=[20,22]
    a(f"""
    s_cmp_ge_u32 s2, {NCHUNK}
    s_cbranch_scc1 K1_END
    s_load_dwordx4 s[4:7], s[0:1], 8
    s_load_dwordx2 s[8:9], s[0:1], 24
    s_load_dwordx2 s[10:11], s[0:1], 88
    s_load_dwordx2 s[14:15], s[0:1], 0
    v_lshrrev_b32 v1, 6, v0
    s_mul_i32 s12, s2, {CH_QUADS}
    v_readfirstlane_b32 s3, v1
    v_add_u32 v2, s12, v0
    v_lshlrev_b32 v3, 4, v2
    v_lshlrev_b32 v4, 5, v2
    v_add_u32 v5, {NT}, v2
    v_lshlrev_b32 v6, 4, v5
    v_lshlrev_b32 v7, 5, v5
    v_cmp_gt_u32 vcc, {E//4}, v2
    s_mov_b64 s[20:21], vcc
    v_cmp_gt_u32 vcc, {CH_QUADS-NT}, v0
    s_mov_b64 s[22:23], vcc
    v_cmp_gt_u32 vcc, {E//4}, v5
    s_and_b64 s[22:23], s[22:23], vcc
    v_and_b32 v1, 63, v0
    v_lshlrev_b32 v5, 4, v1
    s_cmp_lg_u32 s3, 6
    s_cbranch_scc1 K1_NOZ
    v_mov_b32 v8, 0
    v_mov_b32 v9, 0
    v_mov_b32 v10, 0
    v_mov_b32 v11, 0
    ds_write_b128 v5, v[8:11] offset:{HIST}
K1_NOZ:
    s_waitcnt lgkmcnt(0)
    s_mov_b32 s24, s8
    s_and_b32 s25, s9, 0xffff
    s_mov_b32 s26, {E*4}
    s_mov_b32 s27, 0x20000
    s_mov_b64 exec, s[20:21]
    buffer_load_dwordx4 v[8:11], v3, s[24:27], 0 offen
    s_mov_b64 exec, s[22:23]
    buffer_load_dwordx4 v[12:15], v6, s[24:27], 0 offen
    s_mov_b32 s28, s6
    s_and_b32 s29, s7, 0xffff
    s_mov_b32 s30, {E*4}
    s_mov_b32 s31, 0x20000
    s_mov_b32 s32, s4
    s_and_b32 s33, s5, 0xffff
    s_mov_b32 s34, {E*8}
    s_mov_b32 s35, 0x20000
    buffer_load_dwordx4 v[20:23], v6, s[28:31], 0 offen
    s_mov_b64 exec, s[20:21]
    buffer_load_dwordx4 v[16:19], v3, s[28:31], 0 offen
    buffer_load_dwordx4 v[24:27], v4, s[32:35], 0 offen
    buffer_load_dwordx4 v[28:31], v4, s[32:35], 0 offen offset:16
    s_mov_b64 exec, s[22:23]
    buffer_load_dwordx4 v[32:35], v7, s[32:35], 0 offen
    buffer_load_dwordx4 v[36:39], v7, s[32:35], 0 offen offset:16
    s_mov_b64 exec, -1
    s_mul_i32 s13, s2, {CH_BYTES}
    s_add_u32 s13, s13, {WS_REC}
    s_add_u32 s36, s10, s13
    s_addc_u32 s37, s11, 0
    s_and_b32 s37, s37, 0xffff
    s_mov_b32 s38, {CH_BYTES}
    s_mov_b32 s39, 0x20000
    s_mov_b32 s40, s10
    s_and_b32 s41, s11, 0xffff
    s_mov_b32 s42, {WS_SIZE}
    s_mov_b32 s43, 0x20000
    s_mov_b32 s44, s14
    s_and_b32 s45, s15, 0xffff
    s_mov_b32 s46, {N*128}
    s_mov_b32 s47, 0x20000
    v_mov_b32 v7, 1
    """)
    stamp()
    a("s_barrier")
    for u in range(2):
        a(f"s_waitcnt vmcnt({7-u})")
        if u==0: stamp()
        a(f"s_mov_b64 exec, {sr(M[u],2)}")
        for i in range(4):
            a(f"v_mul_u32_u24 v{BK[u]+i}, {BMAGIC}, v{D[u]+i}")
        for i in range(4):
            a(f"v_lshrrev_b32 v{BK[u]+i}, {BSHIFT}, v{BK[u]+i}")
        for i in range(4):
            a(f"v_mul_u32_u24 v{T[u]+i}, {NB}, v{BK[u]+i}")
        for i in range(4):
            a(f"v_lshlrev_b32 v{BK[u]+i}, 2, v{BK[u]+i}")
        for i in range(4):
            a(f"ds_add_rtn_u32 v{RK[u]+i}, v{BK[u]+i}, v7 offset:{HIST}")
        for i in range(4):
            a(f"v_sub_u32 v{D[u]+i}, v{D[u]+i}, v{T[u]+i}")
    a(f"""
    s_mov_b64 exec, -1
    s_waitcnt lgkmcnt(0)
    """)
    stamp()
    a("s_barrier")
    a(f"""
    ds_read_b128 v[64:67], v5 offset:{HIST}
    s_waitcnt lgkmcnt(0)
    v_add_u32 v69, v64, v65
    v_add_u32 v70, v69, v66
    v_add_u32 v71, v70, v67
    v_mov_b32 v72, v71
    s_nop 1
    v_add_u32_dpp v72, v72, v72 row_shr:1 row_mask:0xf bank_mask:0xf bound_ctrl:0
    s_nop 1
    v_add_u32_dpp v72, v72, v72 row_shr:2 row_mask:0xf bank_mask:0xf bound_ctrl:0
    s_nop 1
    v_add_u32_dpp v72, v72, v72 row_shr:4 row_mask:0xf bank_mask:0xf bound_ctrl:0
    s_nop 1
    v_add_u32_dpp v72, v72, v72 row_shr:8 row_mask:0xf bank_mask:0xf bound_ctrl:0
    s_nop 1
    v_add_u32_dpp v72, v72, v72 row_bcast:15 row_mask:0xa bank_mask:0xf
    s_nop 1
    v_add_u32_dpp v72, v72, v72 row_bcast:31 row_mask:0xc bank_mask:0xf
    v_sub_u32 v76, v72, v71
    v_add_u32 v77, v76, v64
    v_add_u32 v78, v76, v69
    v_add_u32 v79, v76, v70
    ds_write_b128 v5, v[76:79] offset:{BASE}
    """)
    for u in range(2):
        a(f"s_mov_b64 exec, {sr(M[u],2)}")
        for i in range(4):
            a(f"ds_read_b32 v{T[u]+i}, v{BK[u]+i} offset:{BASE}")
    a("s_mov_b64 exec, -1")
    a(f"""
    s_cmp_gt_u32 s3, 3
    s_cbranch_scc1 K1_NOOFF
    s_cmp_eq_u32 s3, 1
    s_cselect_b64 s[48:49], -1, 0
    v_cndmask_b32_e64 v64, v64, v65, s[48:49]
    v_cndmask_b32_e64 v76, v76, v77, s[48:49]
    s_cmp_eq_u32 s3, 2
    s_cselect_b64 s[48:49], -1, 0
    v_cndmask_b32_e64 v64, v64, v66, s[48:49]
    v_cndmask_b32_e64 v76, v76, v78, s[48:49]
    s_cmp_eq_u32 s3, 3
    s_cselect_b64 s[48:49], -1, 0
    v_cndmask_b32_e64 v64, v64, v67, s[48:49]
    v_cndmask_b32_e64 v76, v76, v79, s[48:49]
    v_lshl_or_b32 v64, v64, 16, v76
    v_lshlrev_b32 v65, 12, v1
    s_lshl_b32 s13, s3, 10
    s_lshl_b32 s16, s2, 2
    s_add_u32 s13, s13, s16
    s_add_u32 s13, s13, {WS_OFF}
    s_waitcnt vmcnt(0)
    buffer_store_dword v64, v65, s[40:43], s13 offen {ST}
K1_NOOFF:
    """)
    stamp()
    a("s_waitcnt vmcnt(1)" if False else "")
    a(f"""
    s_cmp_le_u32 s3, 3
    s_cbranch_scc1 K1_W0
    s_waitcnt vmcnt(0)
K1_W0:
    """)
    stamp()
    if opts.get("k1_prefetch_x",1):
        a(f"""
        s_mul_i32 s13, s2, {NB*128}
        v_lshlrev_b32 v2, 4, v0
        buffer_load_dwordx4 v[80:83], v2, s[44:47], s13 offen
        s_add_u32 s13, s13, {NT*16}
        v_cmp_gt_u32 vcc, {NB*8-NT}, v0
        s_mov_b64 exec, vcc
        buffer_load_dwordx4 v[84:87], v2, s[44:47], s13 offen
        s_mov_b64 exec, -1
        """)
    a(f"""
    s_cmp_lg_u32 s3, 6
    s_cbranch_scc1 K1_NOIMG1
    s_cmp_ge_u32 s2, 34
    s_cbranch_scc1 K1_NOIMG1
    s_load_dwordx4 s[16:19], s[0:1], 32
    s_load_dwordx4 s[52:55], s[0:1], 48
    s_load_dwordx2 s[56:57], s[0:1], 64
    v_and_b32 v2, 31, v1
    v_lshrrev_b32 v3, 5, v1
    s_and_b32 s50, s2, 1
    s_lshl_b32 s50, s50, 6
    v_lshlrev_b32 v2, 1, v2
    v_add_u32 v2, s50, v2
    s_lshr_b32 s51, s2, 3
    s_waitcnt lgkmcnt(0)
    s_mov_b32 s24, s18
    s_mov_b32 s25, s19
    s_cmp_eq_u32 s51, 1
    s_cselect_b32 s24, s56, s24
    s_cselect_b32 s25, s57, s25
    s_cmp_eq_u32 s51, 2
    s_cselect_b32 s24, s16, s24
    s_cselect_b32 s25, s17, s25
    s_cmp_eq_u32 s51, 3
    s_cselect_b32 s24, s54, s24
    s_cselect_b32 s25, s55, s25
    s_cmp_eq_u32 s51, 4
    s_cselect_b32 s24, s52, s24
    s_cselect_b32 s25, s53, s25
    s_mov_b32 s26, 8192
    s_cselect_b32 s26, 512, s26
    s_and_b32 s25, s25, 0xffff
    s_mov_b32 s27, 0x20000
    s_and_b32 s58, s51, 3
    s_cmp_eq_u32 s58, 0
    s_cselect_b32 s58, {NLOG2E}, 1.0
    s_lshr_b32 s53, s2, 1
    s_and_b32 s53, s53, 3
    s_lshl_b32 s53, s53, 11
    v_lshlrev_b32 v3, 10, v3
    v_add_u32 v2, v2, v3
    v_add_u32 v2, s53, v2
    """)
    for j in range(8):
        a(f"buffer_load_ushort v{88+j}, v2, s[24:27], 0 offen offset:{j*128}")
    a("K1_NOIMG1:")
    a("s_waitcnt lgkmcnt(0)")
    for u in range(2):
        a(f"s_mov_b64 exec, {sr(M[u],2)}")
        for i in range(4):
            a(f"v_add_u32 v{T[u]+i}, v{T[u]+i}, v{RK[u]+i}")
        for i in range(4):
            a(f"v_mul_u32_u24 v{T[u]+i}, 12, v{T[u]+i}")
        for i in range(4):
            a(f"v_lshl_or_b32 v{S[u]+i}, v{D[u]+i}, 16, v{S[u]+i}")
        for i in range(4):
            a(f"ds_write2_b32 v{T[u]+i}, v{EAr[u]+2*i}, v{EAr[u]+1+2*i} offset0:0 offset1:1")
            a(f"ds_write_b32 v{T[u]+i}, v{S[u]+i} offset:8")
    NCP=(CH_BYTES//16+NT-1)//NT
    a(f"""
    s_mov_b64 exec, -1
    v_lshlrev_b32 v5, 4, v0
    s_waitcnt lgkmcnt(0)
    """)
    stamp()
    a("s_barrier")
    stamp()
    for i in range(NCP):
        a(f"ds_read_b128 v[{8+4*i}:{11+4*i}], v5 offset:{i*NT*16}")
    for i in range(NCP):
        a(f"s_waitcnt lgkmcnt({NCP-1-i})")
        a(f"s_mov_b32 s13, {i*NT*16}")
        a(f"buffer_store_dwordx4 v[{8+4*i}:{11+4*i}], v5, s[36:39], s13 offen {ST}")
    stamp()
    a(f"""
    s_cmp_lg_u32 s3, 6
    s_cbranch_scc1 K1_FIN
    s_cmp_ge_u32 s2, 34
    s_cbranch_scc1 K1_FIN
    s_waitcnt vmcnt({NCP})
    """)
    for j in range(8):
        a(f"v_lshlrev_b32 v{88+j}, 16, v{88+j}")
    for j in range(8):
        a(f"v_mul_f32 v{88+j}, s58, v{88+j}")
    for j in range(4):
        a(f"v_cvt_pk_bf16_f32 v{96+j}, v{88+2*j}, v{89+2*j}")
    a(f"""
    s_cmp_ge_u32 s2, 32
    s_cbranch_scc1 K1_WC
    s_lshl_b32 s13, s2, 10
    v_lshlrev_b32 v2, 4, v1
    buffer_store_dwordx4 v[96:99], v2, s[40:43], s13 offen
    s_branch K1_FIN
K1_WC:
    v_cmp_lt_u32 s[54:55], 31, v1
    v_mov_b32 v88, {BIG16<<16}
    v_lshlrev_b32 v2, 3, v1
    v_cndmask_b32_e64 v96, v96, v88, s[54:55]
    s_and_b32 s13, s2, 1
    s_lshl_b32 s13, s13, 9
    s_add_u32 s13, s13, {WS_IMG_WC}
    buffer_store_dwordx2 v[96:97], v2, s[40:43], s13 offen
K1_FIN:
    """)
    if STAMP:
        a("s_waitcnt vmcnt(0)")
        stamp()
        a(f"""
        s_memrealtime s[62:63]
        s_waitcnt lgkmcnt(0)
        v_writelane_b32 v{SV}, s62, 62
        s_lshl_b32 s13, s2, 4
        s_add_u32 s13, s13, s3
        s_lshl_b32 s13, s13, 8
        s_add_u32 s13, s13, {28<<20}
        v_lshlrev_b32 v4, 2, v1
        buffer_store_dword v{SV}, v4, s[40:43], s13 offen
        """)
    a("K1_END:\ns_endpgm")
    a(kd(name, 101, 64))
    return f"; @launch kernel={name} grid=({NCHUNK},1,1) block=({NT},1,1) lds={CH_BYTES+2048}"
```

```python
from asmlib import *
from consts import *

QI=[4,12]
SFV=20
DV=24
SWZ=28
AAD=32
AEA=36; AEI=37; SRA=38; QIA=39; L4N=40
ACD=[[41,42],[43,44]]
ACN=[[45,46],[47,48]]
AE=50
BX=52
WC=[60,62]
WB=64; WV=96
G=[128,144]; H=[160,176]
A=192; XU=208
AOH=[224,228]
XR=232
def wb(s,cb): return WB+(s*2+cb)*4
def wv(s,cb): return WV+(s*2+cb)*4
REC=128
HA=160
WAU=4
XAC=176
TMP=224
SV=254
MASK=40
def rec(p): return REC+4*p
def msk(p): return sr(MASK+2*p,2)

def dpp_scan(a, v, op="v_add_u32", full=True):
    for sh in (1,2,4,8):
        a(f"s_nop 1\n{op}_dpp v{v}, v{v}, v{v} row_shr:{sh} row_mask:0xf bank_mask:0xf bound_ctrl:0")
    a(f"s_nop 1\n{op}_dpp v{v}, v{v}, v{v} row_bcast:15 row_mask:0xa bank_mask:0xf")
    if full: a(f"s_nop 1\n{op}_dpp v{v}, v{v}, v{v} row_bcast:31 row_mask:0xc bank_mask:0xf")

def interleave(main, extra):
    out=[]
    for i,m in enumerate(main):
        out+=extra.get(i,[])
        out.append(m)
    out+=extra.get(len(main),[])
    return out

def g_mfmas(cb):
    g=vr(G[cb],16)
    l=[]
    for s in range(4):
        l.append(f"v_mfma_f32_32x32x16_bf16 {g}, {vr(A+4*s,4)}, {vr(wb(s,cb),4)}, {'0' if s==0 else g}")
    l.append(f"v_mfma_f32_32x32x16_bf16 {g}, {vr(AOH[cb],4)}, {vr(BX,4)}, {g}")
    l.append(f"v_mfma_f32_32x32x8_bf16 {g}, {vr(AE,2)}, {vr(WC[cb],2)}, {g}")
    return l
def h_mfmas(cb):
    h=vr(H[cb],16)
    return [f"v_mfma_f32_32x32x16_bf16 {h}, {vr(A+4*s,4)}, {vr(wv(s,cb),4)}, {'0' if s==0 else h}" for s in range(4)]
def dma_issue():
    l=[f"v_lshl_add_u32 v{DV+k}, v{SFV+k}, 7, v{SWZ+k}" for k in range(4)]
    d=[]
    for k in range(4):
        d.append([f"s_add_u32 m0, s24, {k*1024}" if k else "s_mov_b32 m0, s24", "s_nop 0", f"buffer_load_dwordx4 v{DV+k}, s[4:7], 0 offen lds"])
    return l,d
def feed_reads(par):
    l=[f"ds_read_b128 {vr(A+4*s,4)}, v{AAD+s}" for s in range(4)]
    l.append(f"ds_read2_b32 {vr(AE,2)}, v{AEA} offset0:0 offset1:1")
    q=QI[par]
    for m in range(4):
        l.append(f"v_add_u32 v{q+2*m}, v{q+2*m}, v{L4N}")
    for m in range(4):
        l.append(f"ds_read_b32 v{BX+m}, v{q+2*m} offset:512")
    return l
def qi_read(par):
    q=QI[par]
    return [f"ds_read_b128 {vr(q,4)}, v{QIA}", f"ds_read_b128 {vr(q+4,4)}, v{QIA} offset:16", f"v_add_u32 v{QIA}, 32, v{QIA}"]
def src_read():
    return [f"ds_read_b128 {vr(SFV,4)}, v{SRA}", f"v_add_u32 v{SRA}, 64, v{SRA}"]
def chains(cb,par):
    g=G[cb]; h=H[cb]; q=QI[par]
    l=[]
    for m in range(4):
        d0=ACD[cb][(m+1)&1]; d=ACD[cb][m&1]; n0=ACN[cb][(m+1)&1]; n=ACN[cb][m&1]
        k=q+2*m+1
        l.append(f"v_mul_f32 v{n}, v{n0}, v{k}")
        l.append(f"v_fma_f32 v{d}, v{d0}, v{k}, v{g+4*m}")
        for r in range(4):
            l.append(f"v_fmac_f32 v{n}, v{g+4*m+r}, v{h+4*m+r}")
            if r<3: l.append(f"v_add_f32 v{d}, v{d}, v{g+4*m+r+1}")
        l.append(f"ds_write2_b32 v{q+2*m}, v{d}, v{n} offset0:{32*cb} offset1:{64+32*cb}")
    return l

def slot(a, cb, par, last=False, opts={}):
    cn=cb^1
    has_next = not (last and cb==1)
    rc=[f"v_rcp_f32 v{G[cb]+i}, v{G[cb]+i}" for i in range(16)]
    ex=[f"v_exp_f32 v{G[cn]+i}, v{G[cn]+i}" for i in range(16)]
    a("s_setprio 1")
    if has_next:
        gm=g_mfmas(cn); hm=h_mfmas(cn)
        pre=[]
        fill=[]
        if cb==1:
            pre=["s_waitcnt lgkmcnt(4)"]
            addr,d=dma_issue()
            lab=a.label("SKD")
            fill=addr+["s_cmp_lt_u32 s25, 2", f"s_cbranch_scc1 {lab}"]+sum(d,[])+[f"{lab}:"]
        elif not last:
            fill=qi_read(par^1)
        extra={0:pre+[gm[0]],3:[gm[1]],6:[gm[2]],9:[gm[3]],12:[gm[4]],15:[gm[5]]}
        seq=interleave(rc,extra)
        seq+=fill
        nfill=len([f for f in fill if not f.endswith(":")])
        if cb==1: nfill=4+2
        need=12-1-nfill-1
        seq.append(hm[0])
        if need>0: seq.append(f"s_nop {need-1}")
        seq+=interleave(ex,{4:[hm[1]],8:[hm[2]],12:[hm[3]]})
    else:
        seq=rc
    for s in seq: a(s)
    a("s_setprio 0")
    pl=[]
    if has_next:
        if cb==0 and not last:
            pl+=["s_waitcnt vmcnt(0) lgkmcnt(0)"]+feed_reads(par^1)+src_read()+[f"v_add_u32 v{AEA}, v{AEA}, v{AEI}"]
        pl+=[f"v_add_f32 v{G[cn]+i}, 1.0, v{G[cn]+i}" for i in range(16)]
    else:
        pl+=["s_nop 0"]
    pl+=chains(cb,par)
    for s in pl: a(s)

def gen_k2(a, opts):
    name="gsm_main_kernel"
    a(khead(name))
    STAMP=opts.get("stamp",0)
    cnt=[0]
    def stamp():
        if not STAMP: return
        a(f"s_memtime s[96:97]\ns_waitcnt lgkmcnt(0)\nv_writelane_b32 v{SV}, s96, {cnt[0]}")
        cnt[0]+=1
    T=TMP
    a(f"""
    s_cmp_ge_u32 s2, {NBUCK}
    s_cbranch_scc1 K2_END
    s_load_dwordx2 s[88:89], s[0:1], 0
    s_load_dwordx2 s[90:91], s[0:1], 72
    s_load_dwordx2 s[92:93], s[0:1], 88
    v_lshrrev_b32 v2, 6, v0
    v_and_b32 v1, 63, v0
    v_readfirstlane_b32 s3, v2
    s_mov_b32 s16, 0
    s_mov_b32 s17, 0xffff
    s_mov_b32 s18, 0
    """)
    if STAMP: a(f"s_memrealtime s[98:99]\ns_waitcnt lgkmcnt(0)\nv_writelane_b32 v{SV}, s98, 61")
    stamp()
    a(f"""
K2_BATCH:
    v_mov_b32 v4, 0
    v_mov_b32 v5, 0
    v_mov_b32 v6, 0
    v_mov_b32 v7, 0
    v_lshlrev_b32 v22, 4, v1           ; l*16
    s_lshl_b32 s26, s3, 6
    s_add_u32 s26, s26, {L_BM}
    v_lshl_add_u32 v{T}, v1, 2, s26    ; BM_w + 4l
    v_lshlrev_b32 v2, 4, v0
    v_add_u32 v2, {L_Z}, v2
    v_cmp_gt_u32 s[34:35], 16, v1
    v_cmp_gt_u32 vcc, {(L_ZEND-L_Z)//16}, v0
    s_mov_b64 exec, s[34:35]
    ds_write_b32 v{T}, v4
    s_and_b64 exec, vcc, vcc
    s_cbranch_execz K2_NOZ
    ds_write_b128 v2, v[4:7]
K2_NOZ:
    s_mov_b64 exec, -1
    s_cmp_lg_u32 s3, 7
    s_cbranch_scc1 K2_NOP
    v_mov_b32 v8, 0x10000
    v_mov_b32 v9, 0x10000
    v_lshlrev_b32 v2, 3, v1
    v_add_u32 v2, {L_PMIN}, v2
    ds_write_b64 v2, v[8:9]
K2_NOP:
    s_lshr_b32 s27, s3, 1              ; nt
    s_and_b32 s28, s3, 1               ; cb
    v_lshrrev_b32 v16, 3, v1           ; r3
    v_and_b32 v17, 7, v1               ; c
    v_lshrrev_b32 v18, 2, v16          ; r3>>2
    v_xor_b32 v17, v17, v18            ; c ^ (r3>>2)
    v_lshlrev_b32 v17, 4, v17          ; swz0
    s_mul_i32 s29, s2, {NB}
    s_lshl_b32 s30, s27, 5
    s_add_u32 s29, s29, s30
    s_lshl_b32 s30, s28, 1
    s_add_u32 s29, s29, s30
    s_lshl_b32 s29, s29, 7
    v_lshlrev_b32 v18, 9, v16          ; 4*r3*128
    v_add_u32 v18, s29, v18
    s_lshl_b32 s30, s28, 6
    v_xor_b32 v19, s30, v17
    v_add_u32 v20, v18, v19            ; k0 voff
    v_xor_b32 v19, 32, v19
    v_add_u32 v21, v18, v19
    v_add_u32 v21, 128, v21            ; k0+1 voff
    v_and_b32 v13, 31, v1
    v_lshlrev_b32 v12, 2, v13
    s_lshl_b32 s26, s3, 5
    v_add_u32 v13, s26, v13
    v_mul_u32_u24 v{T+1}, {CH_BYTES}, v13
    v_add_u32 v{T+1}, {WS_REC}, v{T+1}
    v_lshlrev_b32 v{T+3}, 3, v1        ; l*8
    s_lshl_b32 s26, s2, 10
    s_lshl_b32 s29, s3, 7
    s_add_u32 s26, s26, s29
    s_add_u32 s26, s26, {WS_OFF}
    s_waitcnt lgkmcnt(0)
    s_mov_b32 s12, s92
    s_and_b32 s13, s93, 0xffff
    s_mov_b32 s14, {WS_SIZE}
    s_mov_b32 s15, 0x20000
    buffer_load_dword v{T+2}, v12, s[12:15], s26 offen
    s_mov_b32 s4, s88
    s_and_b32 s5, s89, 0xffff
    s_mov_b32 s6, {N*128}
    s_mov_b32 s7, 0x20000
    s_lshl_b32 s30, s3, 11             ; w*2048
    s_add_u32 s31, s30, {L_STG}
    s_mov_b32 m0, s31
    s_mov_b32 s8, s90
    buffer_load_dwordx4 v20, s[4:7], 0 offen lds
    s_add_u32 m0, s31, 1024
    s_and_b32 s9, s91, 0xffff
    buffer_load_dwordx4 v21, s[4:7], 0 offen lds
    s_add_u32 m0, s30, {L_EA}
    s_add_u32 s29, s30, 16384
    buffer_load_dwordx4 v22, s[12:15], s29 offen lds
    buffer_load_dwordx4 v22, s[12:15], s29 offen offset:1024 lds
    s_add_u32 m0, s31, 16384
    s_mov_b32 s10, {N*128}
    buffer_load_dwordx4 v22, s[12:15], s30 offen lds
    buffer_load_dwordx4 v22, s[12:15], s30 offen offset:1024 lds
    s_mov_b32 s11, 0x20000
    s_mov_b32 s31, {WS_IMG_WC}
    buffer_load_dwordx2 {vr(WC[0],2)}, v{T+3}, s[12:15], s31 offen
    buffer_load_dwordx2 {vr(WC[1],2)}, v{T+3}, s[12:15], s31 offen offset:512
    v_and_b32 v2, 31, v1               ; i
    v_lshrrev_b32 v3, 5, v1            ; hA
    v_and_b32 v{T+12}, 3, v2           ; k
    v_lshrrev_b32 v{T+13}, 2, v2       ; r3
    v_lshlrev_b32 v{T+14}, 10, v{T+12}
    v_lshl_add_u32 v{T+14}, v{T+13}, 7, v{T+14}
    v_lshrrev_b32 v{T+13}, 2, v{T+13}
    v_lshl_or_b32 v{T+12}, v{T+12}, 1, v{T+13}
    v_xor_b32 v{T+12}, v{T+12}, v3
    v_lshl_add_u32 v{T+8}, v{T+12}, 4, v{T+14}
    v_xor_b32 v{T+9}, 32, v{T+8}
    v_xor_b32 v{T+10}, 64, v{T+8}
    v_xor_b32 v{T+11}, 96, v{T+8}
    s_lshl_b32 s31, s27, 12
    s_add_u32 s31, s31, {L_STG}
    v_add_u32 v{T+12}, s31, v{T+8}
    v_add_u32 v{T+13}, s31, v{T+9}
    v_add_u32 v{T+14}, s31, v{T+10}
    v_add_u32 v{T+15}, s31, v{T+11}
    v_add_u32 v{T+16}, {L_STG+16384}, v22
    s_lshl_b32 s31, s28, 10
    s_add_u32 s31, s31, {L_EA}
    v_add_u32 v{T+17}, s31, v22
    v_lshlrev_b32 v{L4N}, 2, v2
    v_mul_u32_u24 v{T+19}, {4*ROWB}, v3
    v_add_u32 v{T+18}, v{L4N}, v{T+19}
    s_mul_i32 s31, s27, {32*ROWB}
    s_lshl_b32 s30, s28, 1
    s_add_u32 s31, s31, s30
    s_add_u32 s31, s31, 512
    v_add_u32 v{T+18}, s31, v{T+18}
    v_mul_u32_u24 v{T+4}, 12, v1       ; l*12
    s_lshl_b32 s29, s3, 7
    s_add_u32 s29, s29, {L_ADJ}        ; ADJ_w
    s_lshl_b32 s30, s3, 6
    s_add_u32 s30, s30, {L_BM}         ; BM_w
    v_mov_b32 v{T+5}, s30
    """)
    stamp()
    a(f"""
    s_waitcnt vmcnt(8)
    """)
    stamp()
    a(f"""
    v_lshrrev_b32 v8, 16, v{T+2}       ; cnt
    v_and_b32 v9, 0xffff, v{T+2}       ; start
    v_mov_b32 v{T+6}, v8
    v_min_u32 v8, s17, v8
    v_subrev_u32 v8, s16, v8
    v_max_i32 v8, 0, v8
    s_mov_b32 exec_lo, 0
    v_mov_b32 v8, 0
    s_mov_b32 exec_lo, -1
    v_mov_b32 v10, v8
    v_add_u32 v9, s16, v9
    """)
    dpp_scan(a, 10, full=False)
    a(f"""
    v_cmp_lt_u32 s[34:35], 0, v8       ; nonempty
    v_sub_u32 v11, v10, v8             ; P
    v_readlane_b32 s20, v10, 31        ; T_w
    v_sub_u32 v9, v9, v11
    v_mul_i32_i24 v9, 12, v9
    v_add_u32 v9, v9, v{T+1}           ; adj
    v_mbcnt_lo_u32_b32 v12, s34, 0     ; ordinal
    v_lshl_add_u32 v12, v12, 2, s29
    v_add_u32 v13, -1, v11             ; P-1
    v_lshrrev_b32 v14, 5, v13
    v_min_u32 v14, 15, v14
    v_lshl_add_u32 v14, v14, 2, s30
    v_and_b32 v13, 31, v13
    v_lshlrev_b32 v13, v13, 1
    v_cmp_lt_u32 s[36:37], 0, v11
    s_mov_b64 exec, s[34:35]
    ds_write_b32 v12, v9
    s_and_b64 exec, s[34:35], s[36:37]
    ds_or_b32 v14, v13
    s_mov_b64 exec, -1
    ds_read_b128 v[16:19], v{T+5}
    ds_read_b128 v[20:23], v{T+5} offset:16
    ds_read_b128 v[24:27], v{T+5} offset:32
    ds_read_b128 v[28:31], v{T+5} offset:48
    v_mov_b32 v15, 0
    """)
    for p in range(NPASS):
        a(f"""
        s_sub_i32 s31, s20, {64*p}
        v_cmp_gt_i32 {msk(p)}, s31, v1
        """)
    for p in range(NPASS):
        if p%2==0: a(f"s_waitcnt lgkmcnt({3-p//2})")
        lo=16+2*p; hi=lo+1
        a(f"""
        v_mbcnt_lo_u32_b32 v{HA+p}, v{lo}, v15
        v_mbcnt_hi_u32_b32 v{HA+p}, v{hi}, v{HA+p}
        v_bcnt_u32_b32 v15, v{lo}, v15
        v_and_b32 v{HA+p}, 31, v{HA+p}
        v_bcnt_u32_b32 v15, v{hi}, v15
        v_lshl_add_u32 v{HA+p}, v{HA+p}, 2, s29
        ds_read_b32 v{HA+p}, v{HA+p}
        """)
    for p in range(NPASS):
        a(f"""
        s_waitcnt lgkmcnt({NPASS-1-p})
        v_add_u32 v{HA+p}, v{HA+p}, v{T+4}
        s_mov_b32 s31, {768*p}
        s_mov_b64 exec, {msk(p)}
        buffer_load_dwordx3 {vr(rec(p),3)}, v{HA+p}, s[12:15], s31 offen
        s_mov_b64 exec, -1
        """)
    PF=opts.get("pf",0)
    if PF:
        a(f"""
        s_lshr_b32 s31, s2, 3
        s_mul_i32 s31, s31, 102400
        s_mul_i32 s26, s3, 12800
        s_add_u32 s31, s31, s26
        """)
        if PF==4:
            a(f"v_lshlrev_b32 v8, 6, v1")
            for i in range(4):
                a(f"buffer_load_dword v{168+i}, v8, s[4:7], s31 offen")
                if i<3: a("s_add_u32 s31, s31, 4096")
        elif PF==2:
            a(f"v_lshlrev_b32 v8, 7, v1")
            for i in range(2):
                a(f"buffer_load_dword v{168+i}, v8, s[4:7], s31 offen")
                if i<1: a("s_add_u32 s31, s31, 8192")
        else:
            a(f"v_lshlrev_b32 v8, 4, v1")
            for i in range(13):
                a(f"buffer_load_dwordx4 v[168:171], v8, s[4:7], s31 offen offset:{(i%4)*1024}")
                if i%4==3: a("s_add_u32 s31, s31, 4096")
    a(f"""
    s_cmp_gt_u32 s20, {64*NPASS}
    s_cselect_b32 s65, 0x10000, 0
    v_or_b32 v{T+6}, s65, v{T+6}
    v_mov_b32 v{T+7}, {L_FLAG}
    """)
    stamp()
    a(f"s_waitcnt vmcnt({NPASS+PF})\ns_barrier")
    stamp()
    for s in range(4):
        a(f"ds_read_b128 {vr(A+4*s,4)}, v{T+12+s}")
    for f in range(8):
        a(f"ds_read_b128 {vr(WAU+4*f,4)}, v{T+17} offset:{f*2048}")
    a("s_waitcnt lgkmcnt(4)")
    for s in range(4):
        a(f"v_mfma_f32_32x32x16_bf16 {vr(XAC,16)}, {vr(A+4*s,4)}, {vr(WAU+4*s,4)}, {'0' if s==0 else vr(XAC,16)}")
    a("s_waitcnt lgkmcnt(0)")
    for s in range(4):
        a(f"v_mfma_f32_32x32x16_bf16 {vr(XU,16)}, {vr(A+4*s,4)}, {vr(WAU+16+4*s,4)}, {'0' if s==0 else vr(XU,16)}")
    for f in range(0,16):
        a(f"ds_read_b128 {vr(WB+4*f,4)}, v{T+16} offset:{f*1024}")
    for i in range(16):
        a(f"v_mul_f32 v{XAC+i}, {NLOG2E}, v{XAC+i}")
    for i in range(16):
        a(f"v_cvt_pk_bf16_f32 v{XAC+i}, v{XAC+i}, v{XAC+i}")
    a(f"""
    s_cmp_eq_u32 s27, 3
    s_cbranch_scc1 K2_XA3
    """)
    for i in range(16):
        a(f"ds_write_b16 v{T+18}, v{XAC+i} offset:{((i>>2)*8+(i&3))*ROWB}")
    a(f"""
    s_branch K2_XAD
K2_XA3:
    s_mov_b32 exec_hi, 0
    ds_write_b16 v{T+18}, v{XAC} offset:0
    ds_write_b16 v{T+18}, v{XAC+1} offset:{ROWB}
    s_mov_b64 exec, -1
K2_XAD:
    s_or_b32 s31, s65, s18
    s_cbranch_scc0 K2_NOMAX
    ds_max_u32 v{T+7}, v{T+6}
K2_NOMAX:
    v_mov_b32 v{T+29}, 1
    v_add_u32 v{T+17}, {L_HIST}, v{T+3}
    v_add_u32 v{T+16}, {L_SB}, v{T+3}
    """)
    stamp()
    for p in range(NPASS):
        q=rec(p)
        a(f"""
        s_waitcnt vmcnt({NPASS-1-p+PF})
        s_mov_b64 exec, {msk(p)}
        {'s_cbranch_execz K2_HD' if p>=5 else ''}
        v_lshrrev_b32 v{HA+p}, 14, v{q+2}
        v_and_b32 v{HA+p}, 0x1fc, v{HA+p}
        v_add_u32 v{HA+p}, {L_HIST}, v{HA+p}
        ds_add_rtn_u32 v{q+3}, v{HA+p}, v{T+29}
        """)
    a(f"""
K2_HD:
    s_mov_b64 exec, -1
    s_waitcnt vmcnt({PF}) lgkmcnt(0)
    """)
    stamp()
    a("s_barrier")
    stamp()
    a(f"""
    ds_read_b64 v[{T+20}:{T+21}], v{T+17}
    ds_read_b32 v{T+19}, v{T+7}
    s_waitcnt lgkmcnt(0)
    v_add_u32 v{T+22}, 3, v{T+20}
    v_add_u32 v{T+23}, 3, v{T+21}
    v_and_b32 v{T+22}, 0xfffffffc, v{T+22}
    v_and_b32 v{T+23}, 0xfffffffc, v{T+23}
    v_add_u32 v{T+23}, v{T+22}, v{T+23}
    v_mov_b32 v{T+26}, v{T+23}
    v_readfirstlane_b32 s19, v{T+19}
    """)
    dpp_scan(a, T+26)
    a(f"""
    v_sub_u32 v{T+24}, v{T+26}, v{T+23}
    v_add_u32 v{T+25}, v{T+24}, v{T+22}
    v_readlane_b32 s20, v{T+26}, 63     ; 4Q
    ds_write_b64 v{T+16}, v[{T+24}:{T+25}]
    s_cmp_lg_u32 s18, 0
    s_cbranch_scc1 K2_OK
    s_cmp_ge_u32 s19, 0x10000
    s_cbranch_scc1 K2_GOSLOW
    s_cmp_le_u32 s20, {CAP}
    s_cbranch_scc1 K2_OK
K2_GOSLOW:
    s_mov_b32 s18, 1
    s_mov_b32 s17, {SLOWR}
    s_waitcnt lgkmcnt(0)
    s_barrier
    s_branch K2_BATCH
K2_OK:
    s_and_b32 s19, s19, 0xffff
    """)
    for p in range(NPASS):
        a(f"""
        s_mov_b64 exec, {msk(p)}
        ds_read_b32 v{HA+p}, v{HA+p} offset:{L_SB-L_HIST}
        """)
    a(f"""
    s_mov_b64 exec, -1
    s_add_u32 s26, s20, 31
    s_lshr_b32 s26, s26, 5             ; TT
    s_lshl_b32 s29, s26, 5             ; 32TT
    s_lshr_b32 s27, s26, 3             ; NT0
    s_and_b32 s26, s26, 7              ; rem
    s_mul_i32 s22, s3, s27
    s_min_u32 s28, s3, s26
    s_add_u32 s22, s22, s28            ; tilebase
    s_lshl_b32 s22, s22, 3             ; qs0
    s_cmp_lt_u32 s3, s26
    s_cselect_b32 s28, 1, 0
    s_add_u32 s21, s27, s28            ; NT
    s_lshl_b32 s28, s21, 2             ; 4NT
    s_add_u32 s23, s22, s28            ; qs1
    s_lshl_b32 s24, s3, 12
    s_add_u32 s24, s24, {L_STG}
    s_bitcmp1_b32 s3, 0
    s_cselect_b64 s[34:35], -1, 0
    v_cndmask_b32_e64 v4, v{T+20}, v{T+21}, s[34:35]   ; cnt
    v_cndmask_b32_e64 v5, v{T+24}, v{T+25}, s[34:35]   ; SB
    s_lshr_b32 s27, s3, 1
    v_mov_b32 v8, 0
    v_mov_b32 v9, 0
    v_mov_b32 v10, {FLAG16<<16}
    s_cmp_lg_u32 s27, 0
    s_cbranch_scc1 K2_PADJOB
    s_and_b32 s30, s3, 1
    s_add_u32 s30, s30, 1
    v_lshl_add_u32 v6, v1, 1, s30      ; node+1
    v_lshrrev_b32 v7, 2, v5
    v_add_u32 v7, {L_QM}, v7
    v_cmp_lt_u32 vcc, 0, v4
    s_mov_b64 exec, vcc
    ds_write_b8 v7, v6
    s_mov_b64 exec, -1
    s_cmp_lg_u32 s3, 0
    s_cbranch_scc1 K2_JOBD
    v_add_u32 v5, s20, v1
    v_cmp_ge_u32 vcc, s29, v5
    s_branch K2_PADW
K2_PADJOB:
    v_sub_u32 v6, 0, v4
    v_and_b32 v6, 3, v6
    v_add3_u32 v5, v5, v4, s27
    v_add_u32 v5, -1, v5
    v_cmp_le_u32 vcc, s27, v6
K2_PADW:
    v_lshlrev_b32 v6, 3, v5
    v_add_u32 v6, {L_EA}, v6
    v_lshlrev_b32 v7, 2, v5
    v_add_u32 v7, {L_SF}, v7
    s_mov_b64 exec, vcc
    ds_write_b64 v6, v[8:9]
    ds_write_b32 v7, v10
    s_mov_b64 exec, -1
K2_JOBD:
    s_lshl_b32 s30, s22, 2
    s_lshl_b32 s31, s23, 2
    v_cmp_ge_u32 s[34:35], s30, v{T+24}
    v_cmp_ge_u32 s[36:37], s30, v{T+25}
    v_cmp_ge_u32 s[38:39], s31, v{T+24}
    v_cmp_ge_u32 s[94:95], s31, v{T+25}
    s_bcnt1_i32_b64 s30, s[34:35]
    s_bcnt1_i32_b64 s31, s[36:37]
    s_add_u32 s56, s30, s31            ; head0+1
    s_bcnt1_i32_b64 s30, s[38:39]
    s_bcnt1_i32_b64 s31, s[94:95]
    s_add_u32 s57, s30, s31            ; head1+1
    s_waitcnt lgkmcnt(0)
    """)
    for p in range(NPASS):
        q=rec(p); h=HA+p
        a(f"""
        s_mov_b64 exec, {msk(p)}
        {'s_cbranch_execz K2_SD' if p>=5 else ''}
        v_add_u32 v{h}, v{h}, v{q+3}
        v_lshlrev_b32 v{q+3}, 3, v{h}
        v_add_u32 v{q+3}, {L_EA}, v{q+3}
        ds_write_b64 v{q+3}, v[{q}:{q+1}]
        v_lshlrev_b32 v{h}, 2, v{h}
        v_add_u32 v{h}, {L_SF}, v{h}
        v_and_b32 v{q+2}, 0xffff, v{q+2}
        ds_write_b32 v{h}, v{q+2}
        """)
    a(f"""
K2_SD:
    s_mov_b64 exec, -1
    ; statics
    v_add_u32 v{AAD}, s24, v{T+8}
    v_add_u32 v{AAD+1}, s24, v{T+9}
    v_add_u32 v{AAD+2}, s24, v{T+10}
    v_add_u32 v{AAD+3}, s24, v{T+11}
    v_and_b32 v{T+12}, 3, v2           ; r
    v_lshrrev_b32 v{T+13}, 2, v2       ; quadidx
    v_and_b32 v{T+14}, 1, v{T+13}      ; hs
    v_lshrrev_b32 v{T+16}, 1, v{T+13}  ; m
    v_mul_u32_u24 v{T+15}, s28, v{T+14}
    v_add3_u32 v{T+15}, v{T+15}, v{T+16}, s22
    v_lshl_add_u32 v{T+15}, v{T+15}, 2, v{T+12}    ; slot0
    v_cmp_eq_u32 s[36:37], v{T+14}, v3
    v_lshlrev_b32 v{T+17}, 3, v{T+15}
    v_add_u32 v{T+17}, {L_EA}, v{T+17}
    v_lshlrev_b32 v{T+18}, 2, v{T+15}
    v_add_u32 v{T+18}, {L_SF}, v{T+18}
    s_mov_b32 s34, 0
    s_mov_b32 s35, -1
    v_mov_b32 v{T+19}, 7
    v_cndmask_b32_e64 v{AEA}, v{T+17}, v{T+18}, s[34:35]
    v_cndmask_b32_e64 v{T+16}, v{T+19}, v{T+16}, s[36:37]   ; m or 7
    v_lshlrev_b32 v{AEI}, 6, v3
    v_sub_u32 v{AEI}, 128, v{AEI}
    v_lshrrev_b32 v{T+20}, 3, v1       ; r3
    v_and_b32 v{T+21}, 7, v1
    v_lshrrev_b32 v{T+22}, 2, v{T+20}
    v_xor_b32 v{T+21}, v{T+21}, v{T+22}
    v_lshlrev_b32 v{SWZ}, 4, v{T+21}
    v_xor_b32 v{SWZ+1}, 32, v{SWZ}
    v_xor_b32 v{SWZ+2}, 64, v{SWZ}
    v_xor_b32 v{SWZ+3}, 96, v{SWZ}
    v_and_b32 v{T+21}, 1, v{T+20}
    v_mul_u32_u24 v{T+21}, s28, v{T+21}
    v_lshrrev_b32 v{T+22}, 1, v{T+20}
    v_add3_u32 v{T+21}, v{T+21}, v{T+22}, s22
    v_lshlrev_b32 v{T+21}, 4, v{T+21}
    v_add_u32 v{SRA}, {L_SF}, v{T+21}
    v_mul_u32_u24 v{T+21}, s28, v3
    v_add_u32 v{T+21}, s22, v{T+21}      ; qs[h]
    v_lshlrev_b32 v{QIA}, 3, v{T+21}
    v_add_u32 v{QIA}, {L_QI}, v{QIA}
    v_lshl_add_u32 v{T+22}, v2, 1, v{T+21} ; u_a = qs+2j
    v_add_u32 v{T+23}, {L_QM}, v{T+22}
    v_mov_b32 v{T+17}, s56
    v_mov_b32 v{T+18}, s57
    v_cndmask_b32_e64 v{T+24}, v{T+17}, v{T+18}, s[34:35]   ; head+1
    v_mov_b32 v{T+19}, 0x3f80
    v_mov_b32 v{T+18}, 0
    """)
    for j in range(4):
        a(f"""
        v_cmp_eq_u32 s[36:37], {j}, v{T+16}
        v_mov_b32 v{ACD[j>>1][j&1]}, 0
        v_mov_b32 v{ACN[j>>1][j&1]}, 0
        v_cndmask_b32_e64 v{AOH[0]+j}, v{T+18}, v{T+19}, s[36:37]
        v_lshlrev_b32 v{AOH[1]+j}, 16, v{AOH[0]+j}
        """)
    a("s_waitcnt lgkmcnt(0)")
    stamp()
    a("s_barrier")
    stamp()
    a(f"""
    s_cmp_eq_u32 s21, 0
    s_cbranch_scc1 K2_LOOPDONE
    ds_read_b128 {vr(SFV,4)}, v{SRA}
    ds_read_u16 v4, v{T+23}
    v_add_u32 v{SRA}, 64, v{SRA}
    s_lshr_b32 s20, s20, 2               ; Q
    s_mov_b32 s64, {512-ROWB}
    s_lshl_b32 s26, s3, 1
    s_add_u32 s26, s26, {R_PART}
    v_add_u32 v10, s26, v3
    v_lshlrev_b32 v11, 1, v2             ; 2j
    v_cmp_gt_u32 s[38:39], s28, v11
    s_waitcnt lgkmcnt(1)
    """)
    addr,d=dma_issue()
    for s in addr+sum(d,[]): a(s)
    if STAMP>1: stamp()
    a(f"""
    ds_read_b128 {vr(SFV,4)}, v{SRA}
    v_add_u32 v{SRA}, 64, v{SRA}
    s_waitcnt lgkmcnt(1)
    v_cndmask_b32_e64 v4, 0, v4, s[38:39]
    v_and_b32 v5, 0xff, v4               ; m_a
    v_lshrrev_b32 v6, 8, v4              ; m_b
    v_max_u32 v7, v5, v6
    v_readlane_b32 s30, v5, 0
    v_readlane_b32 s31, v5, 32
    """)
    dpp_scan(a, 7, op="v_max_u32", full=False)
    a(f"""
    v_mov_b32 v8, 0
    s_cmp_eq_u32 s30, 0
    s_cselect_b32 s34, -1, 0
    s_cmp_lt_u32 s22, s20
    s_cselect_b32 s34, s34, 0
    v_mov_b32_dpp v8, v7 wave_shr:1 row_mask:0xf bank_mask:0xf
    s_cmp_eq_u32 s31, 0
    s_cselect_b32 s35, -1, 0
    s_cmp_lt_u32 s23, s20
    s_cselect_b32 s35, s35, 0
    v_max3_u32 v8, v8, v5, v{T+24}       ; node_a+1
    v_max_u32 v7, v7, v{T+24}            ; node_b+1
    v_add_u32 v12, 1, v10
    v_cmp_eq_u32 s[36:37], v8, v{T+24}
    v_cmp_eq_u32 s[94:95], v7, v{T+24}
    s_and_b64 s[36:37], s[36:37], s[34:35]
    s_and_b64 s[94:95], s[94:95], s[34:35]
    v_cndmask_b32_e64 v8, v8, v12, s[36:37]
    v_cndmask_b32_e64 v7, v7, v12, s[94:95]
    v_add_u32 v13, 1, v{T+22}            ; u_b
    v_mov_b32 v12, {R_ZERO+1}
    v_cmp_gt_u32 s[36:37], s20, v{T+22}
    v_cmp_gt_u32 s[94:95], s20, v13
    v_cmp_eq_u32 s[58:59], 0, v5
    v_cmp_eq_u32 s[60:61], 0, v6
    v_cmp_lt_u32 s[62:63], 0, v2
    v_cndmask_b32_e64 v8, v12, v8, s[36:37]
    v_cndmask_b32_e64 v7, v12, v7, s[94:95]
    s_and_b64 s[58:59], s[58:59], s[36:37]
    s_and_b64 s[58:59], s[58:59], s[62:63]
    s_and_b64 s[60:61], s[60:61], s[94:95]
    v_mul_u32_u24 v16, {ROWB}, v8
    v_mul_u32_u24 v18, {ROWB}, v7
    v_add_u32 v16, {-ROWB}, v16
    v_add_u32 v18, {-ROWB}, v18
    v_cndmask_b32_e64 v17, 0, 1.0, s[58:59]
    v_cndmask_b32_e64 v19, 0, 1.0, s[60:61]
    v_lshlrev_b32 v13, 3, v{T+22}
    v_add_u32 v13, {L_QI}, v13
    s_mov_b64 exec, s[38:39]
    ds_write_b128 v13, v[16:19]
    s_mov_b64 exec, s[34:35]
    v_mul_u32_u24 v14, {ROWB}, v{T+24}
    v_add3_u32 v14, v14, v{L4N}, s64
    ds_read_b32 v15, v14
    v_mul_u32_u24 v14, {ROWB}, v10
    v_add_u32 v14, v14, v{L4N}
    v_lshlrev_b32 v13, 2, v{T+24}
    v_add_u32 v13, {L_PMAX-4}, v13
    s_waitcnt lgkmcnt(0)
    ds_write_b32 v14, v15 offset:512
    s_and_b32 exec_lo, exec_lo, 1
    s_and_b32 exec_hi, exec_hi, 1
    ds_max_u32 v13, v10
    ds_min_u32 v13, v10 offset:{L_PMIN-L_PMAX}
    s_mov_b64 exec, -1
    """)
    for s in qi_read(0): a(s)
    if STAMP>1: stamp()
    a("s_waitcnt vmcnt(0) lgkmcnt(0)")
    if STAMP>1: stamp()
    for s in feed_reads(0): a(s)
    a(f"v_add_u32 v{AEA}, v{AEA}, v{AEI}")
    a("s_waitcnt lgkmcnt(0)")
    a("s_cmp_lt_u32 s21, 2\ns_cbranch_scc1 K2_SKD0")
    addr,d=dma_issue()
    for s in addr+sum(d,[]): a(s)
    a("K2_SKD0:")
    if STAMP>1: stamp()
    for s in g_mfmas(0)+h_mfmas(0): a(s)
    a("s_nop 7")
    for i in range(16): a(f"v_exp_f32 v{G[0]+i}, v{G[0]+i}")
    for i in range(16): a(f"v_add_f32 v{G[0]+i}, 1.0, v{G[0]+i}")
    stamp()
    a("s_sub_u32 s25, s21, 1")
    a("K2_LOOP:")
    for par in range(2):
        a(f"s_cmp_eq_u32 s25, 0\ns_cbranch_scc1 K2_LAST{par}")
        slot(a,0,par,False,opts); slot(a,1,par,False,opts)
        a("s_sub_u32 s25, s25, 1")
    a("s_branch K2_LOOP")
    for par in range(2):
        a(f"K2_LAST{par}:")
        slot(a,0,par,True,opts); slot(a,1,par,True,opts)
        if par==0: a("s_branch K2_LOOPDONE")
    a(f"""
K2_LOOPDONE:
    s_setprio 0
    """)
    stamp()
    a(f"""
    v_lshlrev_b32 v4, 4, v0
    s_mul_i32 s26, s2, {NB*128}
    v_add_u32 v4, s26, v4
    v_add_u32 v5, 8192, v4             ; item1
    v_cmp_gt_u32 vcc, {NB*8-512}, v0
    s_mov_b64 s[34:35], vcc
    s_waitcnt vmcnt(0)
    buffer_load_dwordx4 v[{XR}:{XR+3}], v4, s[4:7], 0 offen
    s_mov_b64 exec, s[34:35]
    buffer_load_dwordx4 v[{XR+4}:{XR+7}], v5, s[4:7], 0 offen
    s_mov_b64 exec, -1
    v_lshlrev_b32 v6, 9, v3
    v_add_u32 v6, v6, v{L4N}
    v_add_u32 v6, s24, v6
    """)
    for i in range(16):
        a(f"ds_write_b32 v6, v{XU+i} offset:{((i>>2)*8+(i&3))*128}")
    a(f"""
    s_waitcnt lgkmcnt(0)
    s_barrier
    """)
    stamp()
    if opts.get("dump") is not None:
        a(f"""
        s_cmp_lg_u32 s2, {opts['dump']}
        s_cbranch_scc1 K2_NODUMP
        v_lshlrev_b32 v8, 4, v0
        s_mov_b32 s26, {24<<20}
        s_mov_b32 s27, 20
K2_DUMPL:
        ds_read_b128 v[12:15], v8
        s_waitcnt lgkmcnt(0)
        buffer_store_dwordx4 v[12:15], v8, s[12:15], s26 offen
        s_waitcnt vmcnt(0)
        v_add_u32 v8, 8192, v8
        s_sub_u32 s27, s27, 1
        s_cmp_lg_u32 s27, 0
        s_cbranch_scc1 K2_DUMPL
K2_NODUMP:
        """)
    for it in range(2):
        xr=XR+4*it
        if it==1:
            a(f"""
            s_cmp_eq_u64 s[34:35], 0
            s_cbranch_scc1 K2_FIN
            s_mov_b64 exec, s[34:35]
            """)
        a(f"""
        v_lshrrev_b32 v8, 3, v0
        {'v_add_u32 v8, 64, v8' if it else ''}
        v_and_b32 v9, 7, v0
        v_lshlrev_b32 v10, 2, v8
        v_add_u32 v10, {L_PMAX}, v10
        v_add_u32 v10, {L_HIST-L_PMAX}, v10
        ds_read_b32 v13, v10
        ds_read_b32 v11, v10 offset:{L_PMAX-L_HIST}
        ds_read_b32 v12, v10 offset:{L_PMIN-L_HIST}
        v_lshrrev_b32 v15, 5, v8
        v_lshlrev_b32 v15, 13, v15          ; nt*8192
        v_and_b32 v10, 31, v8
        v_lshl_add_u32 v15, v10, 7, v15     ; + i*128
        v_lshrrev_b32 v10, 2, v9
        v_lshl_add_u32 v15, v10, 12, v15    ; + cb*4096
        v_and_b32 v10, 3, v9
        v_lshl_add_u32 v15, v10, 5, v15
        v_add_u32 v15, {L_STG}, v15
        ds_read_b128 v[48:51], v15
        ds_read_b128 v[52:55], v15 offset:16
        v_mov_b32 v10, {R_ZERO}
        v_lshlrev_b32 v14, 5, v9            ; c8*32
        s_waitcnt lgkmcnt(4)
        v_cmp_eq_u32 s[36:37], 0, v13
        s_nop 1
        v_cndmask_b32_e64 v13, v8, v10, s[36:37]
        v_mul_u32_u24 v13, {ROWB}, v13
        v_add_u32 v13, v13, v14
        ds_read_b128 v[16:19], v13
        ds_read_b128 v[20:23], v13 offset:16
        ds_read_b128 v[24:27], v13 offset:256
        ds_read_b128 v[28:31], v13 offset:272
        s_waitcnt lgkmcnt(6)
K2_PL{it}:
        v_cmp_le_u32 s[36:37], v12, v11
        s_nop 1
        v_cndmask_b32_e64 v13, v10, v12, s[36:37]
        v_mul_u32_u24 v13, {ROWB}, v13
        v_add_u32 v13, v13, v14
        ds_read_b128 v[32:35], v13
        ds_read_b128 v[36:39], v13 offset:16
        ds_read_b128 v[40:43], v13 offset:256
        ds_read_b128 v[44:47], v13 offset:272
        v_add_u32 v12, 1, v12
        v_cmp_le_u32 vcc, v12, v11
        s_waitcnt lgkmcnt(0)
        """)
        for i in range(16):
            a(f"v_add_f32 v{16+i}, v{16+i}, v{32+i}")
        a(f"s_cbranch_vccnz K2_PL{it}")
        a(f"""
        s_cmp_eq_u32 s18, 0
        s_cbranch_scc1 K2_NOSLOW{it}
        s_mul_i32 s26, s2, {NB*512}
        s_add_u32 s26, s26, {WS_TOT+it*512*64}
        v_lshlrev_b32 v13, 6, v0
        s_cmp_eq_u32 s16, 0
        s_cbranch_scc1 K2_NOLD{it}
        buffer_load_dwordx4 v[32:35], v13, s[12:15], s26 offen sc1
        buffer_load_dwordx4 v[36:39], v13, s[12:15], s26 offen offset:16 sc1
        buffer_load_dwordx4 v[40:43], v13, s[12:15], s26 offen offset:32 sc1
        buffer_load_dwordx4 v[44:47], v13, s[12:15], s26 offen offset:48 sc1
        s_waitcnt vmcnt(0)
        """)
        for i in range(16):
            a(f"v_add_f32 v{16+i}, v{16+i}, v{32+i}")
        a(f"""
K2_NOLD{it}:
        buffer_store_dwordx4 v[16:19], v13, s[12:15], s26 offen sc1
        buffer_store_dwordx4 v[20:23], v13, s[12:15], s26 offen offset:16 sc1
        buffer_store_dwordx4 v[24:27], v13, s[12:15], s26 offen offset:32 sc1
        buffer_store_dwordx4 v[28:31], v13, s[12:15], s26 offen offset:48 sc1
        s_waitcnt vmcnt(0)
K2_NOSLOW{it}:
        """)
        for i in range(8):
            a(f"v_add_f32 v{16+i}, 0x358637bd, v{16+i}")
        for i in range(8):
            a(f"v_rcp_f32 v{16+i}, v{16+i}")
        a("s_waitcnt vmcnt(0)")
        for i in range(8):
            a(f"v_fma_f32 v{16+i}, v{16+i}, v{24+i}, v{48+i}")
        for i in range(8):
            a(f"v_max_f32 v{16+i}, 0, v{16+i}")
        for i in range(4):
            a(f"v_lshlrev_b32 v{24+2*i}, 16, v{xr+i}")
            a(f"v_and_b32 v{25+2*i}, 0xffff0000, v{xr+i}")
        for i in range(8):
            a(f"v_add_f32 v{16+i}, v{16+i}, v{24+i}")
        for i in range(4):
            a(f"v_cvt_pk_bf16_f32 v{24+i}, v{16+2*i}, v{17+2*i}")
        a(f"buffer_store_dwordx4 v[24:27], v{4+it}, s[8:11], 0 offen")
    a(f"""
K2_FIN:
    s_mov_b64 exec, -1
    """)
    stamp()
    if STAMP:
        a(f"""
        s_waitcnt vmcnt(0)
        """)
        stamp()
        a(f"""
        s_memrealtime s[98:99]
        s_waitcnt lgkmcnt(0)
        v_writelane_b32 v{SV}, s98, 62
        v_writelane_b32 v{SV}, s21, 63
        s_lshl_b32 s26, s2, 3
        s_add_u32 s26, s26, s3
        s_lshl_b32 s26, s26, 8
        s_add_u32 s26, s26, {30<<20}
        v_lshlrev_b32 v4, 2, v1
        buffer_store_dword v{SV}, v4, s[12:15], s26 offen
        """)
    a(f"""
    s_cmp_eq_u32 s18, 0
    s_cbranch_scc1 K2_END
    s_add_u32 s16, s16, {SLOWR}
    s_add_u32 s17, s17, {SLOWR}
    s_cmp_ge_u32 s16, s19
    s_cbranch_scc1 K2_END
    s_waitcnt vmcnt(0) lgkmcnt(0)
    s_barrier
    s_branch K2_BATCH
K2_END:
    s_endpgm
    """)
    a(kd(name, 256, 100))
    return f"; @launch kernel={name} grid=({NBUCK},1,1) block=(512,1,1) lds={L_END}"
```

```python
from asmlib import *
from consts import *

QI=[4,12]
SFV=20
DV=24
SWZ=28
AAD=32
AEA=36; AEI=37; SRA=38; QIA=39; L4N=40
AE=42
BX=44
WC=[48,50]
S_HS=52; S_SC=53; S_C0=54; S_R1=55; S_C1=56; S_L12=57; S_L8=58; S_CB=59; S_PO=60; S_FA=61
WB=64; WV=96
G=[128,144]; H=[160,176]
A=192; XU=208
AOH=[224,228]
ACD=[232,240]
ACN=[236,244]
TP=232
XR=128
SV=254
def wb(s,cb): return WB+(s*2+cb)*4
def wv(s,cb): return WV+(s*2+cb)*4
REC=128; HA=160
MASK=40
def rec(p): return REC+4*p
def msk(p): return sr(MASK+2*p,2)
D=[128,132]; S=[136,140]; EAr=[144,152]; BK=[160,164]; RK=[168,172]; T1=[176,180]
SC=184
WBR=200
WAU=148; XAC=4; PUB=20
L1_HIST=CH_BYTES; L1_BASE=CH_BYTES+1024
L_WCL=L_QI

def dpp_scan(a, v, op="v_add_u32", full=True):
    for sh in (1,2,4,8):
        a(f"s_nop 1\n{op}_dpp v{v}, v{v}, v{v} row_shr:{sh} row_mask:0xf bank_mask:0xf bound_ctrl:0")
    a(f"s_nop 1\n{op}_dpp v{v}, v{v}, v{v} row_bcast:15 row_mask:0xa bank_mask:0xf")
    if full: a(f"s_nop 1\n{op}_dpp v{v}, v{v}, v{v} row_bcast:31 row_mask:0xc bank_mask:0xf")

def interleave(main, extra):
    out=[]
    for i,m in enumerate(main):
        out+=extra.get(i,[])
        out.append(m)
    out+=extra.get(len(main),[])
    return out
def g_mfmas(cb):
    g=vr(G[cb],16)
    l=[]
    for s in range(4):
        l.append(f"v_mfma_f32_32x32x16_bf16 {g}, {vr(A+4*s,4)}, {vr(wb(s,cb),4)}, {'0' if s==0 else g}")
    l.append(f"v_mfma_f32_32x32x16_bf16 {g}, {vr(AOH[cb],4)}, {vr(BX,4)}, {g}")
    l.append(f"v_mfma_f32_32x32x8_bf16 {g}, {vr(AE,2)}, {vr(WC[cb],2)}, {g}")
    return l
def h_mfmas(cb):
    h=vr(H[cb],16)
    return [f"v_mfma_f32_32x32x16_bf16 {h}, {vr(A+4*s,4)}, {vr(wv(s,cb),4)}, {'0' if s==0 else h}" for s in range(4)]
def dv_calc(): return [f"v_lshl_add_u32 v{DV+k}, v{SFV+k}, 7, v{SWZ+k}" for k in range(4)]
def dv_calc_w(): return ['s_waitcnt lgkmcnt(4)']+dv_calc()
def dma():
    d=[]
    for k in range(4):
        d+=[f"s_add_u32 m0, s24, {k*1024}" if k else "s_mov_b32 m0, s24", "s_nop 0", f"buffer_load_dwordx4 v{DV+k}, s[4:7], 0 offen lds"]
    return d
def a_reads():
    return [f"ds_read_b128 {vr(A+4*s,4)}, v{AAD+s}" for s in range(4)]+[f"ds_read2_b32 {vr(AE,2)}, v{AEA} offset0:0 offset1:1"]
def qi_adds(par): return [f"v_add_u32 v{QI[par]+2*m}, v{QI[par]+2*m}, v{L4N}" for m in range(4)]
def bx_reads(par): return [f"ds_read_b32 v{BX+m}, v{QI[par]+2*m} offset:512" for m in range(4)]
def qi_read(par):
    q=QI[par]
    return [f"ds_read_b128 {vr(q,4)}, v{QIA}", f"ds_read_b128 {vr(q+4,4)}, v{QIA} offset:16"]
def src_read(): return [f"ds_read_b128 {vr(SFV,4)}, v{SRA}"]
INC_QI=f"v_add_u32 v{QIA}, 32, v{QIA}"; INC_SR=f"v_add_u32 v{SRA}, 64, v{SRA}"; INC_AE=f"v_add_u32 v{AEA}, v{AEA}, v{AEI}"
def chains(cb,par):
    g=G[cb]; h=H[cb]; q=QI[par]
    l=[]
    for m in range(4):
        d0=ACD[cb]+(m+3)%4; d=ACD[cb]+m; n0=ACN[cb]+(m+3)%4; n=ACN[cb]+m
        k=q+2*m+1
        l.append(f"v_mul_f32 v{n}, v{n0}, v{k}")
        l.append(f"v_fma_f32 v{d}, v{d0}, v{k}, v{g+4*m}")
        for r in range(4):
            l.append(f"v_fmac_f32 v{n}, v{g+4*m+r}, v{h+4*m+r}")
            if r<3: l.append(f"v_add_f32 v{d}, v{d}, v{g+4*m+r+1}")
    return l
_wl=[0]
STUBS=[]
WMODE="stub"
def acc_writes(cb,par,ms=(44,45)):
    l=[]
    for m in range(4):
        _wl[0]+=1; lab=f"FKW_{_wl[0]}"
        w=f"ds_write2_b32 v{QI[par]+2*m}, v{ACD[cb]+m}, v{ACN[cb]+m} offset0:{32*cb} offset1:{64+32*cb}"
        if WMODE=="all": l.append(w)
        elif WMODE=="skip": l+=[f"s_bitcmp1_b32 s{ms[m&1]}, {m>>1}", f"s_cbranch_scc0 {lab}", w, f"{lab}:"]
        else:
            l+=[f"s_bitcmp1_b32 s{ms[m&1]}, {m>>1}", f"s_cbranch_scc1 {lab}S", f"{lab}:"]
            STUBS.extend([f"{lab}S:", w, f"s_branch {lab}"])
    return l
SHIFT_M=["s_lshr_b32 s44, s44, 2","s_lshr_b32 s45, s45, 2"]

def s_part(a, cb, prio, has_next, gapfill):
    cn=cb^1
    rc=[f"v_rcp_f32 v{G[cb]+i}, v{G[cb]+i}" for i in range(16)]
    ex=[f"v_exp_f32 v{G[cn]+i}, v{G[cn]+i}" for i in range(16)]
    a(f"s_setprio {prio}")
    if not has_next:
        for s in rc: a(s)
        return
    gm=g_mfmas(cn); hm=h_mfmas(cn)
    seq=interleave(rc,{0:[gm[0]],3:[gm[1]],6:[gm[2]],9:[gm[3]],12:[gm[4]],15:[gm[5]]})
    seq+=gapfill+[hm[0]]
    need=12-1-len(gapfill)-1
    if need>0: seq.append(f"s_nop {need-1}")
    seq+=interleave(ex,{4:[hm[1]],8:[hm[2]],12:[hm[3]]})
    for s in seq: a(s)
def p_part(a, cb, par, has_next, extra=[]):
    cn=cb^1
    pl=[]
    if has_next: pl+=[f"v_add_f32 v{G[cn]+i}, 1.0, v{G[cn]+i}" for i in range(16)]
    else: pl+=["s_nop 0"]
    pl+=extra+chains(cb,par)
    for s in pl: a(s)

def tile(a, role, par, last):
    prio=2-role
    if EXP:
        a0=a
        class F:
            def label(self,b): return a0.label(b)
            def __call__(self,x):
                for l in x.split("\n"):
                    t=l.strip()
                    if "nolds" in EXP and (t.startswith("ds_") or t.startswith("buffer_") or t.startswith("s_waitcnt") or "m0" in t): continue
                    if "nowr" in EXP and t.startswith("ds_write"): continue
                    if "nord" in EXP and t.startswith("ds_read"): continue
                    if "nodma" in EXP and (t.startswith("buffer_") or "m0" in t or t=="s_nop 0"): continue
                    if "nowait" in EXP and t.startswith("s_waitcnt"): continue
                    if "nomfma" in EXP and t.startswith("v_mfma"): continue
                    if "nonop" in EXP and t.startswith("s_nop"): continue
                    if "noplain" in EXP and (t.startswith("v_add_f32") or t.startswith("v_fma") or t.startswith("v_mul_f32")): continue
                    if "notrans" in EXP and (t.startswith("v_exp") or t.startswith("v_rcp")): continue
                    if "noprio" in EXP and t.startswith("s_setprio"): continue
                    if "prio11" in EXP and t=="s_setprio 2": t="s_setprio 1"
                    a0(t)
        a=F()
    lab=a.label("SKD")
    skipdma=["s_cmp_lt_u32 s25, 2", f"s_cbranch_scc1 {lab}"]+dma()+[f"{lab}:"]
    if role==0:
        s_part(a,0,prio,True,[])
        a("s_setprio 3")
        if not last:
            for s in acc_writes(1,par^1)+SHIFT_M+qi_read(par^1)+["s_waitcnt vmcnt(0)"]+a_reads()+["s_waitcnt lgkmcnt(5)"]+qi_adds(par^1)+bx_reads(par^1): a(s)
        else:
            for s in acc_writes(1,par^1)+SHIFT_M: a(s)
        a("s_setprio 0")
        p_part(a,0,par,True,[] if last else [INC_QI,INC_AE])
        if not last: a("s_waitcnt lgkmcnt(0)")
        s_part(a,1,prio,not last,dv_calc())
        a("s_setprio 3")
        for s in acc_writes(0,par): a(s)
        if not last:
            for s in skipdma+src_read(): a(s)
        a("s_setprio 0")
        p_part(a,1,par,not last,[] if last else [INC_SR])
        if last:
            for s in acc_writes(1,par): a(s)
    else:
        s_part(a,0,prio,True,[] if last else ["s_waitcnt lgkmcnt(0)"])
        a("s_setprio 0")
        p_part(a,0,par,True,[] if last else qi_adds(par^1)+[INC_QI])
        a("s_setprio 3")
        if not last:
            for s in ["s_waitcnt vmcnt(0)"]+a_reads()+bx_reads(par^1): a(s)
        for s in acc_writes(0,par): a(s)
        if not last: a("s_waitcnt lgkmcnt(0)")
        s_part(a,1,prio,not last,dv_calc())
        a("s_setprio 0")
        p_part(a,1,par,not last,[] if last else [INC_AE])
        a("s_setprio 3")
        for s in acc_writes(1,par)+SHIFT_M: a(s)
        if not last:
            for s in skipdma+src_read()+qi_read(par)+[INC_SR]: a(s)

EXP=""
def gen_fk(a, opts):
    global EXP, WMODE
    EXP=opts.get("exp","")
    WMODE=opts.get("wmode","stub")
    name="gather_scatter__edge_featured_mpnn_gatedgcn__graph_kernel"
    a(khead(name))
    STAMP=opts.get("stamp",0)
    cnt=[0]
    def stamp():
        if not STAMP: return
        a(f"s_memtime s[96:97]\ns_waitcnt lgkmcnt(0)\nv_writelane_b32 v{SV}, s96, {cnt[0]}")
        cnt[0]+=1
    def rstamp(i):
        if STAMP: a(f"s_memrealtime s[98:99]\ns_waitcnt lgkmcnt(0)\nv_writelane_b32 v{SV}, s98, {i}")
    T=TP
    NT=512
    a(f"""
    s_cmp_ge_u32 s2, {NBUCK}
    s_cbranch_scc1 FK_END
    s_load_dwordx16 s[68:83], s[0:1], 0
    s_load_dwordx8 s[84:91], s[0:1], 64
    s_memrealtime s[94:95]
    v_lshrrev_b32 v2, 6, v0
    v_and_b32 v1, 63, v0
    v_readfirstlane_b32 s3, v2
    s_mul_i32 s26, s2, {CH_QUADS}
    v_add_u32 v4, s26, v0              ; quad0
    v_lshlrev_b32 v5, 4, v4
    v_lshlrev_b32 v6, 5, v4
    v_add_u32 v7, {NT}, v4
    v_cmp_gt_u32 vcc, {E//4}, v4
    s_mov_b64 s[40:41], vcc
    v_cmp_gt_u32 vcc, {CH_QUADS-NT}, v0
    s_mov_b64 s[42:43], vcc
    v_cmp_gt_u32 vcc, {E//4}, v7
    s_and_b64 s[42:43], s[42:43], vcc
    v_add_u32 v8, {NT*16}, v5
    v_add_u32 v9, {NT*32}, v6
    v_lshlrev_b32 v10, 4, v0           ; tid*16
    """)
    rstamp(61); stamp()
    a(f"""
    s_waitcnt lgkmcnt(0)
    s_mov_b64 exec, s[40:41]
    global_load_dwordx4 {vr(D[0],4)}, v5, s[74:75]
    s_mov_b64 exec, s[42:43]
    global_load_dwordx4 {vr(D[1],4)}, v8, s[74:75]
    global_load_dwordx4 {vr(S[1],4)}, v8, s[72:73]
    global_load_dwordx4 {vr(EAr[1],4)}, v9, s[70:71]
    global_load_dwordx4 {vr(EAr[1]+4,4)}, v9, s[70:71] offset:16
    s_mov_b64 exec, s[40:41]
    global_load_dwordx4 {vr(S[0],4)}, v5, s[72:73]
    global_load_dwordx4 {vr(EAr[0],4)}, v6, s[70:71]
    global_load_dwordx4 {vr(EAr[0]+4,4)}, v6, s[70:71] offset:16
    s_mov_b64 exec, -1
    v_mov_b32 v4, 0
    v_mov_b32 v5, 0
    v_mov_b32 v6, 0
    v_mov_b32 v7, 0
    s_or_b32 s30, s2, s3
    s_cbranch_scc1 FK_N0
    v_mov_b32 v12, s94
    v_mov_b32 v13, s95
    s_mov_b64 exec, 1
    global_store_dwordx2 v4, v[12:13], s[88:89] sc0 sc1
    s_mov_b64 exec, -1
FK_N0:
    s_cmp_lg_u32 s3, 7
    s_cbranch_scc1 FK_N7
    v_mov_b32 v8, 0x10000
    v_mov_b32 v9, 0x10000
    v_lshlrev_b32 v11, 3, v1
    v_add_u32 v11, {L_PMIN}, v11
    ds_write_b64 v11, v[8:9]
FK_N7:
    s_cmp_lg_u32 s3, 6
    s_cbranch_scc1 FK_N6
    v_lshlrev_b32 v11, 4, v1
    ds_write_b128 v11, v[4:7] offset:{L1_HIST}
FK_N6:
    s_lshl_b32 s30, s3, 6
    s_add_u32 s30, s30, {L_BM}
    v_lshl_add_u32 v11, v1, 2, s30
    v_add_u32 v22, {L_Z}, v10
    v_cmp_gt_u32 vcc, {(L_ZEND-L_Z)//16}, v0
    s_mov_b64 exec, 0xffff
    ds_write_b32 v11, v4
    s_and_b64 exec, vcc, vcc
    s_cbranch_execz FK_NOZ
    ds_write_b128 v22, v[4:7]
FK_NOZ:
    s_mov_b64 exec, -1
    v_mov_b32 v23, v10
    s_mov_b32 s4, s68
    s_and_b32 s5, s69, 0xffff
    s_mov_b32 s6, {N*128}
    s_mov_b32 s7, 0x20000
    s_lshr_b32 s27, s3, 1              ; nt
    s_and_b32 s28, s3, 1               ; cb
    v_lshrrev_b32 v16, 3, v1           ; r3
    v_and_b32 v17, 7, v1               ; c
    v_lshrrev_b32 v18, 2, v16
    v_xor_b32 v17, v17, v18
    v_lshlrev_b32 v{SWZ}, 4, v17       ; swz0
    s_mul_i32 s29, s2, {NB}
    s_lshl_b32 s30, s27, 5
    s_add_u32 s29, s29, s30
    s_lshl_b32 s30, s28, 1
    s_add_u32 s29, s29, s30
    s_lshl_b32 s29, s29, 7
    v_lshlrev_b32 v18, 9, v16
    v_add_u32 v18, s29, v18
    s_lshl_b32 s30, s28, 6
    v_xor_b32 v19, s30, v{SWZ}
    v_add_u32 v20, v18, v19
    v_xor_b32 v19, 32, v19
    v_add3_u32 v21, v18, v19, 64
    v_add_u32 v21, 64, v21
    s_mov_b32 s12, s90
    s_and_b32 s13, s91, 0xffff
    s_mov_b32 s14, {WS_SIZE}
    s_mov_b32 s15, 0x20000
    s_mov_b32 s8, s86
    s_and_b32 s9, s87, 0xffff
    s_mov_b32 s10, {N*128}
    s_mov_b32 s11, 0x20000
    s_mov_b32 s16, 0
    s_mov_b32 s17, 0xffff
    s_mov_b32 s18, 0
    s_waitcnt lgkmcnt(0)
    s_barrier
    v_xor_b32 v{SWZ+1}, 32, v{SWZ}
    v_xor_b32 v{SWZ+2}, 64, v{SWZ}
    v_xor_b32 v{SWZ+3}, 96, v{SWZ}
    v_and_b32 v{S_R1}, 1, v16          ; r3&1
    v_lshrrev_b32 v{S_C1}, 1, v16
    v_lshlrev_b32 v{S_C1}, 4, v{S_C1}
    v_add_u32 v{S_C1}, {L_SF}, v{S_C1} ; SF + 16*(r3>>1)
    v_and_b32 v2, 31, v1
    v_lshrrev_b32 v3, 5, v1
    v_lshlrev_b32 v{L4N}, 2, v2
    v_and_b32 v4, 3, v2                ; k=r
    v_lshrrev_b32 v5, 2, v2            ; quadidx
    v_lshlrev_b32 v6, 10, v4
    v_lshl_add_u32 v6, v5, 7, v6
    v_lshrrev_b32 v7, 2, v5
    v_lshl_or_b32 v7, v4, 1, v7
    v_xor_b32 v7, v7, v3
    v_lshl_add_u32 v6, v7, 4, v6
    s_lshl_b32 s24, s3, 12
    s_add_u32 s24, s24, {L_STG}
    v_add_u32 v{AAD}, s24, v6
    v_xor_b32 v7, 32, v6
    v_add_u32 v{AAD+1}, s24, v7
    v_xor_b32 v7, 64, v6
    v_add_u32 v{AAD+2}, s24, v7
    v_xor_b32 v7, 96, v6
    v_add_u32 v{AAD+3}, s24, v7
    v_and_b32 v{S_HS}, 1, v5
    v_lshrrev_b32 v8, 1, v5            ; m
    v_lshl_add_u32 v9, v8, 2, v4       ; 4m+r
    v_lshlrev_b32 v{AEI}, 6, v3
    v_sub_u32 v{AEI}, 128, v{AEI}      ; 128 / 64
    v_lshrrev_b32 v{S_SC}, 2, v{AEI}   ; 32 / 16
    v_lshrrev_b32 v10, 4, v{AEI}       ; 8 / 4
    v_mul_u32_u24 v11, {L_SF-L_EA}, v3
    v_mad_u32_u24 v{S_C0}, v9, v10, v11
    v_add_u32 v{S_C0}, {L_EA}, v{S_C0}
    v_cmp_eq_u32 s[36:37], v{S_HS}, v3
    v_mov_b32 v9, 7
    v_mov_b32 v10, 0x3f80
    v_cndmask_b32_e64 v8, v9, v8, s[36:37]
    """)
    for j in range(4):
        a(f"""
        v_cmp_eq_u32 s[{32+2*(j&1)}:{33+2*(j&1)}], {j}, v8
        {'v_mul_u32_u24 v%d, 12, v1'%S_L12 if j==0 else 'v_lshlrev_b32 v%d, 3, v1'%S_L8 if j==1 else 'v_mov_b32 v%d, %d'%(S_FA,L_FLAG) if j==2 else 's_nop 0'}
        s_nop 0
        v_cndmask_b32_e64 v{AOH[0]+j}, 0, v10, s[{32+2*(j&1)}:{33+2*(j&1)}]
        v_lshlrev_b32 v{AOH[1]+j}, 16, v{AOH[0]+j}
        """)
    a(f"""
    s_lshl_b32 s26, s3, 5
    v_add_u32 v4, s26, v2
    v_mul_u32_u24 v{S_CB}, {CH_BYTES}, v4
    v_add_u32 v{S_CB}, {WS_REC}, v{S_CB}
    v_lshlrev_b32 v{S_PO}, 3, v4
    v_lshlrev_b32 v5, 4, v1            ; l*16
    v_mov_b32 v7, 1
    """)
    stamp()
    for u in range(2):
        a(f"s_waitcnt vmcnt({7-u})")
        if u==0: stamp()
        a(f"s_mov_b64 exec, {sr(40+2*u,2)}")
        for i in range(4): a(f"v_mul_u32_u24 v{BK[u]+i}, {BMAGIC}, v{D[u]+i}")
        for i in range(4): a(f"v_lshrrev_b32 v{BK[u]+i}, {BSHIFT}, v{BK[u]+i}")
        for i in range(4): a(f"v_mul_u32_u24 v{T1[u]+i}, {NB}, v{BK[u]+i}")
        for i in range(4): a(f"v_lshlrev_b32 v{BK[u]+i}, 2, v{BK[u]+i}")
        for i in range(4): a(f"ds_add_rtn_u32 v{RK[u]+i}, v{BK[u]+i}, v7 offset:{L1_HIST}")
        for i in range(4): a(f"v_sub_u32 v{D[u]+i}, v{D[u]+i}, v{T1[u]+i}")
    a(f"""
    s_mov_b64 exec, -1
    s_lshl_b32 s30, s3, 10
    s_add_u32 m0, s30, {L_STG+8192}
    global_load_dwordx4 {vr(WBR,4)}, v23, s[78:79]
    global_load_lds_dwordx4 v23, s[84:85]
    s_add_u32 m0, s30, {L_STG+16384}
    s_lshl_b32 s31, s3, 11
    global_load_lds_dwordx4 v23, s[76:77]
    s_add_u32 m0, s30, {L_STG+24576}
    s_nop 0
    global_load_lds_dwordx4 v23, s[82:83]
    s_add_u32 m0, s31, {L_EA}
    s_nop 0
    buffer_load_dwordx4 v20, s[4:7], 0 offen lds
    s_add_u32 m0, s31, {L_EA+1024}
    s_nop 0
    buffer_load_dwordx4 v21, s[4:7], 0 offen lds
    s_cmp_lg_u32 s3, 7
    s_cbranch_scc1 FK_N7A
    s_mov_b32 exec_hi, 0
    global_load_dwordx4 v[12:15], v5, s[80:81]
    s_mov_b32 exec_hi, -1
FK_N7A:
    s_waitcnt lgkmcnt(0)
    """)
    stamp()
    a(f"""
    s_barrier
    ds_read_b128 v[{SC}:{SC+3}], v5 offset:{L1_HIST}
    s_waitcnt lgkmcnt(0)
    v_add_u32 v{SC+5}, v{SC}, v{SC+1}
    v_add_u32 v{SC+6}, v{SC+5}, v{SC+2}
    v_add_u32 v{SC+7}, v{SC+6}, v{SC+3}
    v_mov_b32 v{SC+4}, v{SC+7}
    """)
    dpp_scan(a, SC+4)
    a(f"""
    v_sub_u32 v{SC+8}, v{SC+4}, v{SC+7}
    v_add_u32 v{SC+9}, v{SC+8}, v{SC}
    v_add_u32 v{SC+10}, v{SC+8}, v{SC+5}
    v_add_u32 v{SC+11}, v{SC+8}, v{SC+6}
    ds_write_b128 v5, v[{SC+8}:{SC+11}] offset:{L1_BASE}
    """)
    for u in range(2):
        a(f"s_mov_b64 exec, {sr(40+2*u,2)}")
        for i in range(4): a(f"ds_read_b32 v{T1[u]+i}, v{BK[u]+i} offset:{L1_BASE}")
    a("s_mov_b64 exec, -1")
    for c in (1,2,3):
        a(f"""
        s_cmp_eq_u32 s3, {c}
        s_cselect_b64 s[32:33], -1, 0
        v_cndmask_b32_e64 v{SC}, v{SC}, v{SC+c}, s[32:33]
        v_cndmask_b32_e64 v{SC+8}, v{SC+8}, v{SC+8+c}, s[32:33]
        """)
    a(f"""
    v_lshl_or_b32 v{PUB}, v{SC}, 12, v{SC+8}
    """)
    stamp()
    a("s_waitcnt vmcnt(6) lgkmcnt(0)")
    stamp()
    for u in range(2):
        a(f"s_mov_b64 exec, {sr(40+2*u,2)}")
        for i in range(4): a(f"v_add_u32 v{T1[u]+i}, v{T1[u]+i}, v{RK[u]+i}")
        for i in range(4): a(f"v_mul_u32_u24 v{T1[u]+i}, 12, v{T1[u]+i}")
        for i in range(4): a(f"v_lshl_or_b32 v{S[u]+i}, v{D[u]+i}, 16, v{S[u]+i}")
        for i in range(4):
            a(f"ds_write2_b32 v{T1[u]+i}, v{EAr[u]+2*i}, v{EAr[u]+1+2*i} offset0:0 offset1:1")
            a(f"ds_write_b32 v{T1[u]+i}, v{S[u]+i} offset:8")
    def scale8(src, tmp):
        for i in range(4):
            a(f"v_lshlrev_b32 v{tmp+2*i}, 16, v{src+i}")
            a(f"v_and_b32 v{tmp+2*i+1}, 0xffff0000, v{src+i}")
        for i in range(8): a(f"v_mul_f32 v{tmp+i}, {NLOG2E}, v{tmp+i}")
        for i in range(4): a(f"v_cvt_pk_bf16_f32 v{src+i}, v{tmp+2*i}, v{tmp+2*i+1}")
    a("s_mov_b64 exec, -1\ns_waitcnt vmcnt(0)\nv_mov_b32 v4, 0\nglobal_load_dwordx2 v[22:23], v4, s[88:89] sc0 sc1")
    scale8(WBR, SC)
    a(f"""
    v_lshlrev_b32 v6, 4, v0
    v_add_u32 v7, {L_STG}, v6
    ds_write_b128 v7, {vr(WBR,4)}
    s_cmp_lg_u32 s3, 7
    s_cbranch_scc1 FK_N7B
    """)
    scale8(12, SC)
    a(f"""
    v_add_u32 v7, {L_WCL}, v5
    s_mov_b32 exec_hi, 0
    ds_write_b128 v7, v[12:15]
    s_mov_b32 exec_hi, -1
FK_N7B:
    s_mul_i32 s26, s2, {CH_BYTES}
    s_add_u32 s26, s26, {WS_REC}
    s_add_u32 s32, s90, s26
    s_addc_u32 s33, s91, 0
    s_and_b32 s33, s33, 0xffff
    s_mov_b32 s34, {CH_BYTES}
    s_mov_b32 s35, 0x20000
    s_waitcnt lgkmcnt(0)
    """)
    stamp()
    a("s_barrier")
    NCP=(CH_BYTES//16+NT-1)//NT
    for i in range(NCP): a(f"ds_read_b128 v[{128+4*i}:{131+4*i}], v6 offset:{i*NT*16}")
    a(f"""
    v_and_b32 v8, 15, v1
    v_lshrrev_b32 v9, 2, v8
    v_lshlrev_b32 v9, 7, v9
    v_and_b32 v8, 3, v8
    v_lshl_add_u32 v9, v8, 3, v9
    v_lshl_add_u32 v9, v3, 10, v9
    v_and_b32 v8, 16, v1
    v_lshl_add_u32 v9, v8, 1, v9       ; rel
    v_add_u32 v24, {L_STG}, v9
    s_lshl_b32 s30, s28, 6
    v_add_u32 v25, s30, v24            ; + cb*64
    v_add_u32 v26, {L_WCL}, v9
    s_lshl_b32 s30, s27, 12
    s_sub_u32 s30, s30, s24
    s_add_u32 s30, s30, {L_EA}
    """)
    for i in range(NCP):
        a(f"s_waitcnt lgkmcnt({NCP-1-i})")
        a(f"s_mov_b32 s31, {i*NT*16}")
        a(f"buffer_store_dwordx4 v[{128+4*i}:{131+4*i}], v6, s[32:35], s31 offen sc1")
    stamp()
    for s in range(4): a(f"v_add_u32 v{8+s}, s30, v{AAD+s}")
    for s in range(4): a(f"ds_read_b128 {vr(A+4*s,4)}, v{8+s}")
    for m in range(2):
        for s in range(4):
            for hh in range(2):
                a(f"ds_read_b64_tr_b16 {vr(WAU+(m*4+s)*4+2*hh,2)}, v25 offset:{16384+m*8192+s*2048+hh*512}")
    a("s_waitcnt lgkmcnt(8)")

    for s in range(4):
        a(f"v_mfma_f32_32x32x16_bf16 {vr(XAC,16)}, {vr(A+4*s,4)}, {vr(WAU+4*s,4)}, {'0' if s==0 else vr(XAC,16)}")
    a("s_waitcnt lgkmcnt(0)")
    for s in range(4):
        a(f"v_mfma_f32_32x32x16_bf16 {vr(XU,16)}, {vr(A+4*s,4)}, {vr(WAU+16+4*s,4)}, {'0' if s==0 else vr(XU,16)}")
    for m in range(2):
        for s in range(4):
            for cb in range(2):
                for hh in range(2):
                    a(f"ds_read_b64_tr_b16 {vr(WB+m*32+(s*2+cb)*4+2*hh,2)}, v24 offset:{m*8192+s*2048+cb*64+hh*512}")
    a(f"""
    ds_read_b64_tr_b16 {vr(WC[0],2)}, v26
    ds_read_b64_tr_b16 {vr(WC[1],2)}, v26 offset:64
    s_waitcnt vmcnt({NCP})
    s_mov_b32 s31, 400000
    v_mov_b32 v27, 0
FK_NONCE:
    v_readfirstlane_b32 s92, v22
    v_readfirstlane_b32 s93, v23
    s_or_b32 s30, s92, s93
    s_cbranch_scc1 FK_NONCED
    s_sub_u32 s31, s31, 1
    s_cbranch_scc1 FK_NONCED
    s_sleep 1
    global_load_dwordx2 v[22:23], v27, s[88:89] sc0 sc1
    s_waitcnt vmcnt(0)
    s_branch FK_NONCE
FK_NONCED:
    s_lshr_b64 s[94:95], s[92:93], 8
    s_lshl_b32 s92, s92, 24
    s_mov_b32 s93, s94
    v_or_b32 v{PUB}, s92, v{PUB}
    v_mov_b32 v{PUB+1}, s93
    v_lshlrev_b32 v27, 13, v1
    s_lshl_b32 s29, s3, 11
    s_lshl_b32 s31, s2, 3
    s_add_u32 s29, s29, s31
    s_add_u32 s29, s29, {WS_OFF}
    v_mul_u32_u24 v24, {4*ROWB}, v3
    v_add_u32 v24, v{L4N}, v24
    s_mul_i32 s31, s27, {32*ROWB}
    s_lshl_b32 s30, s28, 1
    s_add_u32 s31, s31, s30
    s_add_u32 s31, s31, 512
    v_add_u32 v24, s31, v24
    """)
    for i in range(16): a(f"v_mul_f32 v{XAC+i}, {NLOG2E}, v{XAC+i}")
    for i in range(16): a(f"v_cvt_pk_bf16_f32 v{XAC+i}, v{XAC+i}, v{XAC+i}")
    stamp()
    a(f"""
    s_waitcnt vmcnt(0) lgkmcnt(0)
    """)
    stamp()
    a(f"""
    s_barrier
    s_cmp_gt_u32 s3, 3
    s_cbranch_scc1 FK_NOPUB
    buffer_store_dwordx2 {vr(PUB,2)}, v27, s[12:15], s29 offen sc1
FK_NOPUB:
    s_lshl_b32 s26, s2, 11
    s_add_u32 s26, s26, {WS_OFF}
    buffer_load_dwordx2 v[{T}:{T+1}], v{S_PO}, s[12:15], s26 offen sc1
    s_mov_b32 exec_lo, 0
    v_mov_b32 v{WC[0]}, {BIG16<<16}
    v_mov_b32 v{WC[0]+1}, 0
    v_mov_b32 v{WC[1]}, {BIG16<<16}
    v_mov_b32 v{WC[1]+1}, 0
    s_mov_b32 exec_lo, -1
    s_cmp_eq_u32 s27, 3
    s_cbranch_scc1 FK_XA3
    """)
    for i in range(16): a(f"ds_write_b16 v24, v{XAC+i} offset:{((i>>2)*8+(i&3))*ROWB}")
    a(f"""
    s_branch FK_XAD
FK_XA3:
    s_mov_b32 exec_hi, 0
    ds_write_b16 v24, v{XAC} offset:0
    ds_write_b16 v24, v{XAC+1} offset:{ROWB}
    s_mov_b64 exec, -1
FK_XAD:
    s_lshl_b32 s29, s3, 7
    s_add_u32 s29, s29, {L_ADJ}        ; ADJ_w
    s_lshl_b32 s30, s3, 6
    s_add_u32 s30, s30, {L_BM}         ; BM_w
    s_mov_b32 s31, 400000
FK_POLL:
    s_waitcnt vmcnt(0)
    v_and_b32 v8, 0xff000000, v{T}
    v_cmp_eq_u32 s[34:35], s93, v{T+1}
    v_cmp_eq_u32 s[36:37], s92, v8
    s_and_b64 s[34:35], s[34:35], s[36:37]
    s_cmp_eq_u64 s[34:35], -1
    s_cbranch_scc1 FK_GOT
    s_sub_u32 s31, s31, 1
    s_cbranch_scc1 FK_GOT
    s_sleep {opts.get('sleep',1)}
    buffer_load_dwordx2 v[{T}:{T+1}], v{S_PO}, s[12:15], s26 offen sc1
    s_branch FK_POLL
FK_GOT:
    """)
    stamp()
    a(f"""
    v_bfe_u32 v8, v{T}, 12, 12         ; cnt
    v_and_b32 v9, 0xfff, v{T}          ; start
    v_mov_b32 v{T+6}, v8
    v_min_u32 v8, s17, v8
    v_subrev_u32 v8, s16, v8
    v_max_i32 v8, 0, v8
    s_mov_b32 exec_lo, 0
    v_mov_b32 v8, 0
    s_mov_b32 exec_lo, -1
    v_mov_b32 v10, v8
    v_add_u32 v9, s16, v9
    """)
    dpp_scan(a, 10, full=False)
    a(f"""
    v_cmp_lt_u32 s[34:35], 0, v8
    v_sub_u32 v11, v10, v8             ; P
    v_readlane_b32 s20, v10, 31        ; T_w
    v_sub_u32 v9, v9, v11
    v_mul_i32_i24 v9, 12, v9
    v_add_u32 v9, v9, v{S_CB}          ; adj
    v_mbcnt_lo_u32_b32 v12, s34, 0
    v_lshl_add_u32 v12, v12, 2, s29
    v_add_u32 v13, -1, v11
    v_lshrrev_b32 v14, 5, v13
    v_min_u32 v14, 15, v14
    v_lshl_add_u32 v14, v14, 2, s30
    v_lshlrev_b32 v13, v13, 1
    v_cmp_lt_u32 s[36:37], 0, v11
    v_mov_b32 v{T+5}, s30
    s_mov_b64 exec, s[34:35]
    ds_write_b32 v12, v9
    s_and_b64 exec, s[34:35], s[36:37]
    ds_or_b32 v14, v13
    s_mov_b64 exec, -1
    ds_read_b128 v[16:19], v{T+5}
    ds_read_b128 v[20:23], v{T+5} offset:16
    ds_read_b128 v[24:27], v{T+5} offset:32
    ds_read_b128 v[4:7], v{T+5} offset:48
    s_lshr_b32 s31, s29, 2
    v_mov_b32 v15, s31
    """)
    for p in range(NPASS):
        a(f"""
        s_sub_i32 s31, s20, {64*p}
        v_cmp_gt_i32 {msk(p)}, s31, v1
        """)
    bm=[16,18,20,22,24,26,4,6]
    for p in range(NPASS):
        if p%2==0: a(f"s_waitcnt lgkmcnt({3-p//2+p})")
        lo=bm[p]; hi=lo+1
        a(f"""
        v_mbcnt_lo_u32_b32 v{HA+p}, v{lo}, v15
        v_mbcnt_hi_u32_b32 v{HA+p}, v{hi}, v{HA+p}
        {'v_bcnt_u32_b32 v15, v%d, v15'%lo if p<NPASS-1 else ''}
        v_lshlrev_b32 v{HA+p}, 2, v{HA+p}
        {'v_bcnt_u32_b32 v15, v%d, v15'%hi if p<NPASS-1 else ''}
        ds_read_b32 v{HA+p}, v{HA+p}
        """)
    for p in range(NPASS):
        a(f"""
        s_waitcnt lgkmcnt({NPASS-1-p})
        v_add_u32 v{HA+p}, v{HA+p}, v{S_L12}
        {'s_mov_b32 s31, %d'%(768*p) if p>5 else ''}
        s_mov_b64 exec, {msk(p)}
        buffer_load_dwordx3 {vr(rec(p),3)}, v{HA+p}, s[12:15], {'s31 offen' if p>5 else '0 offen offset:%d'%(768*p)} sc1
        s_mov_b64 exec, -1
        """)
    a(f"""
    s_cmp_gt_u32 s20, {64*NPASS}
    s_cselect_b32 s65, 0x10000, 0
    s_or_b32 s31, s65, s18
    s_cbranch_scc0 FK_NOMAX
    v_or_b32 v{T+6}, s65, v{T+6}
    ds_max_u32 v{S_FA}, v{T+6}
FK_NOMAX:
    v_lshl_add_u32 v8, v2, 2, s29
    v_mov_b32 v9, 0
    ds_write_b32 v8, v9
    s_mov_b32 s62, s29
    v_mov_b32 v{T+7}, 1
    v_add_u32 v{T+17}, {L_HIST}, v{S_L8}
    s_mov_b32 s31, {L_HIST}
    """)
    stamp()
    for p in range(NPASS):
        q=rec(p)
        a(f"""
        s_waitcnt vmcnt({NPASS-1-p})
        s_mov_b64 exec, {msk(p)}
        {'s_cbranch_execz FK_HD' if p>=5 else ''}
        v_bfe_u32 v{HA+p}, v{q+2}, 16, 7
        v_lshl_add_u32 v{HA+p}, v{HA+p}, 2, s31
        ds_add_rtn_u32 v{q+3}, v{HA+p}, v{T+7}
        """)
    a(f"""
FK_HD:
    s_mov_b64 exec, -1
    s_waitcnt vmcnt(0) lgkmcnt(0)
    """)
    stamp()
    a("s_barrier")
    a(f"""
    ds_read_b64 v[{T+20}:{T+21}], v{T+17}
    ds_read_b32 v{T+19}, v{S_FA}
    s_waitcnt lgkmcnt(0)
    v_add_u32 v{T+2}, 3, v{T+20}
    v_add_u32 v{T+3}, 3, v{T+21}
    v_and_b32 v{T+2}, 0xfffffffc, v{T+2}
    v_and_b32 v{T+3}, 0xfffffffc, v{T+3}
    v_add_u32 v{T+3}, v{T+2}, v{T+3}
    v_mov_b32 v{T+4}, v{T+3}
    v_readfirstlane_b32 s19, v{T+19}
    """)
    dpp_scan(a, T+4)
    a(f"""
    v_sub_u32 v{T+14}, v{T+4}, v{T+3}
    v_add_u32 v{T+15}, v{T+14}, v{T+2}
    v_readlane_b32 s20, v{T+4}, 63     ; 4Q
    ds_write_b64 v{T+17}, v[{T+14}:{T+15}] offset:{L_SB-L_HIST}
    s_cmp_lg_u32 s18, 0
    s_cbranch_scc1 FK_OK
    s_cmp_ge_u32 s19, 0x10000
    s_cbranch_scc1 FK_GOSLOW
    s_cmp_le_u32 s20, {CAP}
    s_cbranch_scc1 FK_OK
FK_GOSLOW:
    s_mov_b32 s18, 1
    s_mov_b32 s17, {SLOWR}
    s_branch FK_REBATCH
FK_OK:
    """)
    for p in range(NPASS):
        a(f"""
        s_mov_b64 exec, {msk(p)}
        ds_read_b32 v{HA+p}, v{HA+p} offset:{L_SB-L_HIST}
        """)
    a(f"""
    s_mov_b64 exec, -1
    s_and_b32 s19, s19, 0xffff
    s_add_u32 s26, s20, 31
    s_lshr_b32 s26, s26, 5             ; TT
    s_lshl_b32 s29, s26, 5             ; 32TT
    s_lshr_b32 s27, s26, 3             ; NT0
    s_and_b32 s26, s26, 7              ; rem
    s_mul_i32 s22, s3, s27
    s_min_u32 s28, s3, s26
    s_add_u32 s22, s22, s28
    s_lshl_b32 s22, s22, 3             ; qs0
    s_cmp_lt_u32 s3, s26
    s_cselect_b32 s28, 1, 0
    s_add_u32 s21, s27, s28            ; NT
    s_lshl_b32 s28, s21, 2             ; 4NT
    s_add_u32 s23, s22, s28            ; qs1
    s_lshl_b32 s30, s21, 3             ; 8NT
    v_lshrrev_b32 v4, 2, v{T+14}
    v_lshrrev_b32 v5, 2, v{T+15}
    v_subrev_u32 v4, s22, v4
    v_subrev_u32 v5, s22, v5
    v_cmp_gt_u32 s[34:35], s30, v4
    v_cmp_gt_u32 s[36:37], s30, v5
    v_cmp_lt_u32 s[38:39], 0, v{T+20}
    v_cmp_lt_u32 s[58:59], 0, v{T+21}
    v_add_u32 v4, s62, v4
    v_add_u32 v5, s62, v5
    v_lshl_add_u32 v6, v1, 1, 1
    v_lshl_add_u32 v7, v1, 1, 2
    s_and_b64 exec, s[34:35], s[38:39]
    ds_write_b8 v4, v6
    s_and_b64 exec, s[36:37], s[58:59]
    ds_write_b8 v5, v7
    s_mov_b64 exec, -1
    s_cmp_eq_u32 s3, 1
    s_cbranch_scc1 FK_JOBD
    s_bitcmp1_b32 s3, 0
    s_cselect_b64 s[34:35], -1, 0
    v_cndmask_b32_e64 v4, v{T+20}, v{T+21}, s[34:35]   ; cnt
    v_cndmask_b32_e64 v5, v{T+14}, v{T+15}, s[34:35]   ; SB
    s_lshr_b32 s27, s3, 1
    v_mov_b32 v8, 0
    v_mov_b32 v9, 0
    v_mov_b32 v10, {FLAG16<<16}
    s_cmp_lg_u32 s27, 0
    s_cbranch_scc1 FK_PADJOB
    v_add_u32 v5, s20, v1
    v_cmp_ge_u32 vcc, s29, v5
    s_branch FK_PADW
FK_PADJOB:
    v_sub_u32 v6, 0, v4
    v_and_b32 v6, 3, v6
    v_add3_u32 v5, v5, v4, s27
    v_add_u32 v5, -1, v5
    v_cmp_le_u32 vcc, s27, v6
FK_PADW:
    v_lshlrev_b32 v6, 3, v5
    v_add_u32 v6, {L_EA}, v6
    v_lshlrev_b32 v7, 2, v5
    v_add_u32 v7, {L_SF}, v7
    s_mov_b64 exec, vcc
    ds_write_b64 v6, v[8:9]
    ds_write_b32 v7, v10
    s_mov_b64 exec, -1
FK_JOBD:
    s_mov_b32 s30, {L_EA}
    s_mov_b32 s31, {L_SF}
    s_waitcnt lgkmcnt(0)
    """)
    for p in range(NPASS):
        q=rec(p); h=HA+p
        a(f"""
        s_mov_b64 exec, {msk(p)}
        {'s_cbranch_execz FK_SD' if p>=5 else ''}
        v_add_u32 v{h}, v{h}, v{q+3}
        v_lshl_add_u32 v{q+3}, v{h}, 3, s30
        ds_write_b64 v{q+3}, v[{q}:{q+1}]
        v_lshl_add_u32 v{h}, v{h}, 2, s31
        v_and_b32 v{q+2}, 0xffff, v{q+2}
        ds_write_b32 v{h}, v{q+2}
        """)
    a(f"""
FK_SD:
    s_mov_b64 exec, -1
    s_lshl_b32 s30, s22, 2
    s_lshl_b32 s31, s23, 2
    v_cmp_ge_u32 s[34:35], s30, v{T+14}
    v_cmp_ge_u32 s[36:37], s30, v{T+15}
    v_cmp_ge_u32 s[38:39], s31, v{T+14}
    v_cmp_ge_u32 s[58:59], s31, v{T+15}
    v_mul_u32_u24 v4, s28, v{S_HS}
    v_add_u32 v4, s22, v4
    v_mad_u32_u24 v{AEA}, v4, v{S_SC}, v{S_C0}
    v_mul_u32_u24 v4, s28, v{S_R1}
    v_add_u32 v4, s22, v4
    v_lshl_add_u32 v{SRA}, v4, 4, v{S_C1}
    s_bcnt1_i32_b64 s30, s[34:35]
    s_bcnt1_i32_b64 s31, s[36:37]
    s_add_u32 s56, s30, s31
    s_bcnt1_i32_b64 s30, s[38:39]
    s_bcnt1_i32_b64 s31, s[58:59]
    s_add_u32 s57, s30, s31
    v_mul_u32_u24 v4, s28, v3
    v_add_u32 v4, s22, v4                ; qs[h]
    v_lshlrev_b32 v{QIA}, 3, v4
    v_add_u32 v{QIA}, {L_QI}, v{QIA}
    v_lshl_add_u32 v{T+16}, v2, 1, v4    ; u_a
    s_sub_u32 s30, s62, s22
    v_add_u32 v{T+17}, s30, v{T+16}
    ds_read_u16 v4, v{T+17}
    v_mov_b32 v{T+18}, s56
    s_mov_b32 exec_lo, 0
    v_mov_b32 v{T+18}, s57               ; head+1
    s_mov_b32 exec_lo, -1
    s_lshr_b32 s20, s20, 2               ; Q
    s_mov_b32 s64, {512-ROWB}
    s_lshl_b32 s26, s3, 1
    s_add_u32 s26, s26, {R_PART}
    v_add_u32 v10, s26, v3
    v_lshlrev_b32 v11, 1, v2
    v_cmp_gt_u32 s[38:39], s28, v11
    """)
    for r in (ACD[0]+3,ACD[1]+3,ACN[0]+3,ACN[1]+3): a(f"v_mov_b32 v{r}, 0")
    a(f"""
    s_cmp_eq_u32 s21, 0
    s_cbranch_scc1 FK_NOQI
    s_waitcnt lgkmcnt(0)
    v_cndmask_b32_e64 v4, 0, v4, s[38:39]
    v_and_b32 v5, 0xff, v4
    v_lshrrev_b32 v6, 8, v4
    v_max_u32 v7, v5, v6
    v_readlane_b32 s30, v5, 0
    v_readlane_b32 s31, v5, 32
    """)
    dpp_scan(a, 7, op="v_max_u32", full=False)
    a(f"""
    v_mov_b32 v8, 0
    s_cmp_eq_u32 s30, 0
    s_cselect_b32 s34, -1, 0
    s_cmp_lt_u32 s22, s20
    s_cselect_b32 s34, s34, 0
    v_mov_b32_dpp v8, v7 wave_shr:1 row_mask:0xf bank_mask:0xf
    s_cmp_eq_u32 s31, 0
    s_cselect_b32 s35, -1, 0
    s_cmp_lt_u32 s23, s20
    s_cselect_b32 s35, s35, 0
    v_max3_u32 v8, v8, v5, v{T+18}
    v_max_u32 v7, v7, v{T+18}
    v_add_u32 v12, 1, v10
    v_cmp_eq_u32 s[36:37], v8, v{T+18}
    v_cmp_eq_u32 s[58:59], v7, v{T+18}
    s_and_b64 s[36:37], s[36:37], s[34:35]
    s_and_b64 s[58:59], s[58:59], s[34:35]
    v_cndmask_b32_e64 v8, v8, v12, s[36:37]
    v_cndmask_b32_e64 v7, v7, v12, s[58:59]
    v_add_u32 v13, 1, v{T+16}
    v_mov_b32 v12, {R_ZERO+1}
    v_cmp_gt_u32 s[36:37], s20, v{T+16}
    v_cmp_gt_u32 s[66:67], s20, v13
    v_cmp_eq_u32 s[58:59], 0, v5
    v_cmp_eq_u32 s[60:61], 0, v6
    v_cmp_lt_u32 s[62:63], 0, v2
    v_cndmask_b32_e64 v8, v12, v8, s[36:37]
    v_cndmask_b32_e64 v7, v12, v7, s[66:67]
    s_and_b64 s[58:59], s[58:59], s[36:37]
    s_and_b64 s[58:59], s[58:59], s[62:63]
    s_and_b64 s[60:61], s[60:61], s[66:67]
    v_mul_u32_u24 v16, {ROWB}, v8
    v_mul_u32_u24 v18, {ROWB}, v7
    v_add_u32 v16, {-ROWB}, v16
    v_add_u32 v18, {-ROWB}, v18
    v_cndmask_b32_e64 v17, 0, 1.0, s[58:59]
    v_cndmask_b32_e64 v19, 0, 1.0, s[60:61]
    v_lshlrev_b32 v13, 3, v{T+16}
    v_add_u32 v13, {L_QI}, v13
    s_mov_b64 exec, s[38:39]
    ds_write_b128 v13, v[16:19]
    s_mov_b64 exec, s[34:35]
    v_mul_u32_u24 v14, {ROWB}, v{T+18}
    v_add3_u32 v14, v14, v{L4N}, s64
    ds_read_b32 v15, v14
    v_mul_u32_u24 v14, {ROWB}, v10
    v_add_u32 v14, v14, v{L4N}
    v_lshlrev_b32 v13, 2, v{T+18}
    v_add_u32 v13, {L_PMAX-4}, v13
    s_waitcnt lgkmcnt(0)
    ds_write_b32 v14, v15 offset:512
    s_and_b32 exec_lo, exec_lo, 1
    s_and_b32 exec_hi, exec_hi, 1
    ds_max_u32 v13, v10
    ds_min_u32 v13, v10 offset:{L_PMIN-L_PMAX}
    s_mov_b64 exec, -1
    """)
    a(f"""
    s_not_b64 s[60:61], s[60:61]
    s_not_b64 s[58:59], s[58:59]
    s_or_b32 s44, s60, s61
    s_or_b32 s45, s58, s59
    s_lshr_b32 s45, s45, 1
    s_lshl_b32 s30, s21, 1
    s_sub_u32 s30, s30, 1
    s_bitset1_b32 s45, s30
    s_cmp_gt_u32 s3, 3
    s_cbranch_scc1 FK_NOSH
    s_lshl_b32 s44, s44, 2
    s_lshl_b32 s45, s45, 2
FK_NOSH:
    """)
    for s in qi_read(0)+[INC_QI,"s_waitcnt lgkmcnt(0)"]+qi_adds(0)+bx_reads(0)+qi_read(1): a(s)
    a("FK_NOQI:\ns_waitcnt lgkmcnt(0)")
    stamp()
    a(f"""
    s_barrier
    s_cmp_eq_u32 s21, 0
    s_cbranch_scc1 FK_LOOPDONE
    ds_read_b128 {vr(SFV,4)}, v{SRA}
    ds_read2_b32 {vr(AE,2)}, v{AEA} offset0:0 offset1:1
    {INC_SR}
    {INC_AE}
    s_waitcnt lgkmcnt(1)
    """)
    for s in dv_calc()+dma()+src_read()+[INC_SR,"s_waitcnt vmcnt(0)"]+a_reads()[:4]+dv_calc_w(): a(s)
    a("s_waitcnt lgkmcnt(0)")
    a("s_cmp_lt_u32 s21, 2\ns_cbranch_scc1 FK_SKD0")
    for s in dma()+src_read()+[INC_SR]: a(s)
    a("FK_SKD0:")
    gm=g_mfmas(0); hm=h_mfmas(0)
    for s in gm: a(s)
    if WMODE=="all":
        a("s_cmp_gt_u32 s3, 3\ns_cbranch_scc1 FK_INIT1")
        for m in range(4): a(f"v_add_u32 v{QI[1]+2*m}, {R_ZERO*ROWB}, v{L4N}\nv_mov_b32 v{ACD[1]+m}, 0\nv_mov_b32 v{ACN[1]+m}, 0")
        a("FK_INIT1:")
    for s in hm: a(s)
    a("s_nop 7")
    for i in range(16): a(f"v_exp_f32 v{G[0]+i}, v{G[0]+i}")
    for i in range(16): a(f"v_add_f32 v{G[0]+i}, 1.0, v{G[0]+i}")
    stamp(); rstamp(59)
    a("s_sub_u32 s25, s21, 1")
    a("s_cmp_gt_u32 s3, 3\ns_cbranch_scc1 FK_LOOP1")
    for role in range(2):
        a(f"FK_LOOP{role}:")
        for par in range(2):
            a(f"s_cmp_eq_u32 s25, 0\ns_cbranch_scc1 FK_LAST{role}{par}")
            tile(a,role,par,False)
            a("s_sub_u32 s25, s25, 1")
        a(f"s_branch FK_LOOP{role}")
        for par in range(2):
            a(f"FK_LAST{role}{par}:")
            tile(a,role,par,True)
            a("s_branch FK_LOOPDONE")
    for x in STUBS: a(x)
    a(f"""
FK_LOOPDONE:
    s_setprio 0
    """)
    rstamp(60); stamp()
    a(f"""
    v_lshlrev_b32 v4, 4, v0
    s_mul_i32 s26, s2, {NB*128}
    v_add_u32 v4, s26, v4
    v_add_u32 v5, 8192, v4
    v_cmp_gt_u32 vcc, {NB*8-512}, v0
    s_mov_b64 s[34:35], vcc
    s_waitcnt vmcnt(0)
    buffer_load_dwordx4 v[{XR}:{XR+3}], v4, s[4:7], 0 offen
    s_mov_b64 exec, s[34:35]
    buffer_load_dwordx4 v[{XR+4}:{XR+7}], v5, s[4:7], 0 offen
    s_mov_b64 exec, -1
    v_lshlrev_b32 v6, 9, v3
    v_add_u32 v6, v6, v{L4N}
    v_add_u32 v6, s24, v6
    """)
    for i in range(16): a(f"ds_write_b32 v6, v{XU+i} offset:{((i>>2)*8+(i&3))*128}")
    B=[144,176]
    X=[136,232]
    M=[16,22]
    a("v_and_b32 v7, 7, v0\nv_lshlrev_b32 v14, 5, v7")
    for it in range(2):
        m=M[it]
        a(f"""
        v_lshrrev_b32 v{m}, 3, v0
        {'v_add_u32 v%d, 64, v%d'%(m,m) if it else ''}
        v_lshlrev_b32 v{m+1}, 2, v{m}
        v_add_u32 v{m+1}, {L_HIST}, v{m+1}
        ds_read_b32 v{m+5}, v{m+1}
        v_lshrrev_b32 v{m+4}, 5, v{m}
        v_lshlrev_b32 v{m+4}, 13, v{m+4}
        v_and_b32 v15, 31, v{m}
        v_lshl_add_u32 v{m+4}, v15, 7, v{m+4}
        v_lshrrev_b32 v15, 2, v7
        v_lshl_add_u32 v{m+4}, v15, 12, v{m+4}
        v_and_b32 v15, 3, v7
        v_lshl_add_u32 v{m+4}, v15, 5, v{m+4}
        v_add_u32 v{m+4}, {L_STG}, v{m+4}
        """)
    a(f"v_mov_b32 v15, {R_ZERO}\ns_waitcnt lgkmcnt(0)")
    for it in range(2):
        m=M[it]
        a(f"""
        v_cmp_eq_u32 s[36:37], 0, v{m+5}
        s_nop 1
        v_cndmask_b32_e64 v{m}, v{m}, v15, s[36:37]
        v_mad_u32_u24 v{m}, v{m}, v{S_L12}, v14
        """.replace(f"v_mad_u32_u24 v{m}, v{m}, v{S_L12}, v14", f"v_mul_u32_u24 v{m}, {ROWB}, v{m}\nv_add_u32 v{m}, v{m}, v14"))
    a("s_barrier")
    stamp()
    for it in range(2):
        m=M[it]; b=B[it]; x=X[it]; xr=XR+4*it
        if it==1:
            a(f"""
            s_cmp_eq_u64 s[34:35], 0
            s_cbranch_scc1 FK_FIN
            s_mov_b64 exec, s[34:35]
            """)
        a(f"""
        ds_read_b32 v{m+2}, v{m+1} offset:{L_PMAX-L_HIST}
        ds_read_b32 v{m+3}, v{m+1} offset:{L_PMIN-L_HIST}
        ds_read_b128 {vr(b,4)}, v{m}
        ds_read_b128 {vr(b+4,4)}, v{m} offset:16
        ds_read_b128 {vr(b+8,4)}, v{m} offset:256
        ds_read_b128 {vr(b+12,4)}, v{m} offset:272
        ds_read_b128 {vr(x,4)}, v{m+4}
        ds_read_b128 {vr(x+4,4)}, v{m+4} offset:16
        s_waitcnt lgkmcnt(6)
FK_PL{it}:
        v_cmp_le_u32 s[36:37], v{m+3}, v{m+2}
        s_nop 1
        v_cndmask_b32_e64 v{m+5}, v15, v{m+3}, s[36:37]
        v_mul_u32_u24 v{m+5}, {ROWB}, v{m+5}
        v_add_u32 v{m+5}, v{m+5}, v14
        ds_read_b128 {vr(b+16,4)}, v{m+5}
        ds_read_b128 {vr(b+20,4)}, v{m+5} offset:16
        ds_read_b128 {vr(b+24,4)}, v{m+5} offset:256
        ds_read_b128 {vr(b+28,4)}, v{m+5} offset:272
        v_add_u32 v{m+3}, 1, v{m+3}
        v_cmp_le_u32 vcc, v{m+3}, v{m+2}
        s_waitcnt lgkmcnt(0)
        """)
        for i in range(16): a(f"v_add_f32 v{b+i}, v{b+i}, v{b+16+i}")
        a(f"s_cbranch_vccnz FK_PL{it}")
        a(f"""
        s_cmp_eq_u32 s18, 0
        s_cbranch_scc1 FK_NOSLOW{it}
        s_mul_i32 s26, s2, {NB*512}
        s_add_u32 s26, s26, {WS_TOT+it*512*64}
        v_lshlrev_b32 v{m+5}, 6, v0
        s_cmp_eq_u32 s16, 0
        s_cbranch_scc1 FK_NOLD{it}
        """)
        for j in range(4): a(f"buffer_load_dwordx4 {vr(b+16+4*j,4)}, v{m+5}, s[12:15], s26 offen offset:{16*j} sc1")
        a("s_waitcnt vmcnt(0)")
        for i in range(16): a(f"v_add_f32 v{b+i}, v{b+i}, v{b+16+i}")
        a(f"FK_NOLD{it}:")
        for j in range(4): a(f"buffer_store_dwordx4 {vr(b+4*j,4)}, v{m+5}, s[12:15], s26 offen offset:{16*j} sc1")
        a(f"s_waitcnt vmcnt(0)\nFK_NOSLOW{it}:")
        for i in range(8): a(f"v_add_f32 v{b+i}, 0x358637bd, v{b+i}")
        for i in range(8): a(f"v_rcp_f32 v{b+i}, v{b+i}")
        a(f"s_waitcnt vmcnt({1 if it==0 else 1})" if False else "s_waitcnt vmcnt(0)")
        for i in range(8): a(f"v_fma_f32 v{b+i}, v{b+i}, v{b+8+i}, v{x+i}")
        for i in range(4):
            a(f"v_lshlrev_b32 v{b+8+2*i}, 16, v{xr+i}")
            a(f"v_and_b32 v{b+9+2*i}, 0xffff0000, v{xr+i}")
        for i in range(8): a(f"v_max_f32 v{b+i}, 0, v{b+i}")
        for i in range(8): a(f"v_add_f32 v{b+i}, v{b+i}, v{b+8+i}")
        for i in range(4): a(f"v_cvt_pk_bf16_f32 v{b+8+i}, v{b+2*i}, v{b+1+2*i}")
        a(f"buffer_store_dwordx4 {vr(b+8,4)}, v{4+it}, s[8:11], 0 offen")
    a(f"""
FK_FIN:
    s_mov_b64 exec, -1
    """)
    stamp()
    if STAMP:
        a("s_waitcnt vmcnt(0)")
        stamp(); rstamp(62)
        a(f"""
        v_writelane_b32 v{SV}, s21, 63
        s_getreg_b32 s26, hwreg(HW_REG_HW_ID)
        v_writelane_b32 v{SV}, s26, 58
        s_lshl_b32 s26, s2, 3
        s_add_u32 s26, s26, s3
        s_lshl_b32 s26, s26, 8
        s_add_u32 s26, s26, {30<<20}
        v_lshlrev_b32 v4, 2, v1
        buffer_store_dword v{SV}, v4, s[12:15], s26 offen
        """)
    a(f"""
    s_cmp_eq_u32 s18, 0
    s_cbranch_scc1 FK_END
    s_add_u32 s16, s16, {SLOWR}
    s_add_u32 s17, s17, {SLOWR}
    s_cmp_ge_u32 s16, s19
    s_cbranch_scc1 FK_END
FK_REBATCH:
    s_waitcnt vmcnt(0) lgkmcnt(0)
    s_barrier
    v_mov_b32 v4, 0
    v_mov_b32 v5, 0
    v_mov_b32 v6, 0
    v_mov_b32 v7, 0
    v_mov_b32 v8, 0x10000
    v_mov_b32 v9, 0x10000
    v_add_u32 v11, {L_PMIN}, v{S_L8}
    ds_write_b64 v11, v[8:9]
    s_lshl_b32 s30, s3, 6
    s_add_u32 s30, s30, {L_BM}
    v_lshl_add_u32 v11, v1, 2, s30
    v_lshlrev_b32 v10, 4, v0
    v_add_u32 v10, {L_Z}, v10
    v_cmp_gt_u32 vcc, {(L_ZEND-L_Z)//16}, v0
    s_mov_b64 exec, 0xffff
    ds_write_b32 v11, v4
    s_and_b64 exec, vcc, vcc
    ds_write_b128 v10, v[4:7]
    s_mov_b64 exec, -1
    s_lshl_b32 s26, s2, 11
    s_add_u32 s26, s26, {WS_OFF}
    buffer_load_dwordx2 v[{T}:{T+1}], v{S_PO}, s[12:15], s26 offen sc1
    s_waitcnt lgkmcnt(0)
    s_barrier
    s_branch FK_XAD
FK_END:
    s_endpgm
    """)
    a(kd(name, 256, 100))
    return f"; @launch grid=({NBUCK},1,1) block=(512,1,1) lds={L_END}"

def bench_init(a):
    a(f"""
    v_add_u32 v{AAD}, s24, v2
    v_add_u32 v{AAD+1}, 1024, v{AAD}
    v_add_u32 v{AAD+2}, 2048, v{AAD}
    v_add_u32 v{AAD+3}, 3072, v{AAD}
    v_and_b32 v{SWZ}, 7, v1
    v_lshlrev_b32 v{SWZ}, 4, v{SWZ}
    v_mov_b32 v{SWZ+1}, v{SWZ}
    v_mov_b32 v{SWZ+2}, v{SWZ}
    v_mov_b32 v{SWZ+3}, v{SWZ}
    v_lshrrev_b32 v{SRA}, 3, v0
    v_lshlrev_b32 v{SRA}, 7, v{SRA}
    v_add_u32 v{SRA}, {L_SF}, v{SRA}
    v_lshlrev_b32 v{AEA}, 3, v1
    v_add_u32 v{AEA}, {L_EA}, v{AEA}
    v_mov_b32 v{AEI}, 128
    v_mov_b32 v{QIA}, {L_QI}
    """)
    for p in range(2):
        for m in range(4): a(f"v_mov_b32 v{QI[p]+2*m}, v{L4N}")
    for r in range(WB,WB+64): a(f"v_mov_b32 v{r}, 0x3c003c00")
```

```python
import sys
sys.path.insert(0,'gen')
from asmlib import *
from fk import gen_fk
import json
opts=json.loads(sys.argv[2]) if len(sys.argv)>2 else {}
out=sys.argv[1] if len(sys.argv)>1 else 'gather_scatter__edge_featured_mpnn_gatedgcn__graph.s'
ref=open('gather_scatter__edge_featured_mpnn_gatedgcn__graph.s.ref').read().split('\n')
hdr=[l for l in ref if l.startswith(';') and '@launch' not in l and 'Override' not in l and 'grid=ceil' not in l]
a=Asm()
l1=gen_fk(a,opts)
txt="\n".join(hdr)+"\n"+l1+"\n"+'.amdgcn_target "amdgcn-amd-amdhsa--gfx950"\n'+a.text()
open(out,'w').write(txt)
print("wrote",out,len(txt))
```

```python
N=25000; E=800000; NB=98; NCHUNK=256; NBUCK=256
CH_QUADS=782; CH_BYTES=CH_QUADS*4*12
K1_THREADS=448
BMAGIC=42800; BSHIFT=22
WS_IMG=0; WS_IMG_WC=32768
WS_OFF=65536
WS_RDY=0
WS_REC=2<<20
WS_XU=12<<20
WS_TOT=20<<20
WS_SIZE=64<<20
WS_STAMP=40<<20
NLOG2E=0xbfb8aa3b
BIG16=0x7f00
FLAG16=0x3f80
for d in range(N): assert (d*BMAGIC)>>BSHIFT == d//NB
ROWB=640
R_PART=97
R_ZERO=113
NROWS=114
CAP=3712
L_Z=R_ZERO*ROWB
L_HIST=NROWS*ROWB
L_PMAX=L_HIST+512
L_FLAG=L_PMAX+512
L_QM=L_FLAG+16
L_ZEND=L_QM
L_PMIN=L_ZEND
L_BM=L_PMIN+512
L_ADJ=L_BM+512
L_SB=L_ADJ+2048
L_QI=L_SB+512
L_EA=L_QI+CAP//4*8
L_SF=L_EA+CAP*8+16
L_STG=L_SF+CAP*4+16
L_END=L_STG+32768
assert L_END<=163840, L_END
for v in (L_STG,L_EA,L_SF,L_QI,L_QM,L_HIST,L_SB,L_PMIN,L_PMAX,L_FLAG,L_BM,L_ADJ,L_ZEND): assert v%16==0,v
SLOWR=6
NPASS=8
assert 512*SLOWR+3*NB+32<=CAP
assert 64*SLOWR<=64*NPASS
```

```python
from asmlib import *
from consts import *
import lp4
from lp4 import *

S_HS=56; S_SC=57; S_C0=58; S_R1=59; S_C1=60; S_L12=61; S_L8=62; S_CB=63; S_PO=16; S_FA=17
SV=19
REC=128; HA=160; MASK=40
def rec(p): return REC+4*p
def msk(p): return sr(MASK+2*p,2)
D=[128,132]; S=[136,140]; EAr=[144,152]; BK=[160,164]; RK=[168,172]; T1=[176,180]
SC=184; WBR=200; WAU=148; XAC=224; PUB=[208,216]; CPO=[224,240]
TP=224
L1_HIST=[CH_BYTES,CH_BYTES+1024]; L1_BASE=[CH_BYTES+2048,CH_BYTES+3072]
SUBB=512*4*12
L_WCL=L_QI

def dpp_scan(a, v, op="v_add_u32", full=True):
    for sh in (1,2,4,8):
        a(f"s_nop 1\n{op}_dpp v{v}, v{v}, v{v} row_shr:{sh} row_mask:0xf bank_mask:0xf bound_ctrl:0")
    a(f"s_nop 1\n{op}_dpp v{v}, v{v}, v{v} row_bcast:15 row_mask:0xa bank_mask:0xf")
    if full: a(f"s_nop 1\n{op}_dpp v{v}, v{v}, v{v} row_bcast:31 row_mask:0xc bank_mask:0xf")

def xpf(a, first, n, dst):
    if n<=0: return
    a(f"""
    s_lshr_b32 s30, s2, 3
    s_mul_i32 s30, s30, 102400
    s_mul_i32 s31, s3, 12800
    s_add_u32 s30, s30, s31
    s_add_u32 s30, s30, {first*1024}
    v_lshlrev_b32 v{dst}, 4, v1
    """)
    for i in range(n):
        if i and i%4==0: a("s_add_u32 s30, s30, 4096")
        a(f"buffer_load_dwordx4 v[{dst+2}:{dst+5}], v{dst}, s[4:7], s30 offen offset:{(i%4)*1024}")

def gen_fk(a, opts):
    lp4.OPT.clear(); lp4.OPT.update(opts); lp4.WMODE=opts.get("wmode","stub"); lp4.STUBS.clear()
    name="gather_scatter__edge_featured_mpnn_gatedgcn__graph_kernel"
    a(khead(name))
    STAMP=opts.get("stamp",0)
    STF=opts.get("stf","sc1")
    LF=opts.get("lf","")
    LATE1=opts.get("late1",1)
    cnt=[0]
    def stamp():
        if not STAMP: return
        a(f"s_memtime s[100:101]\ns_waitcnt lgkmcnt(0)\nv_writelane_b32 v{SV}, s100, {cnt[0]}")
        cnt[0]+=1
    def rstamp(i):
        if STAMP: a(f"s_memrealtime s[100:101]\ns_waitcnt lgkmcnt(0)\nv_writelane_b32 v{SV}, s100, {i}")
    T=TP
    NT=512
    a(f"""
    s_cmp_ge_u32 s2, {NBUCK}
    s_cbranch_scc1 FK_END
    s_load_dwordx16 s[68:83], s[0:1], 0
    s_load_dwordx8 s[84:91], s[0:1], 64
    s_memrealtime s[94:95]
    v_lshrrev_b32 v2, 6, v0
    v_and_b32 v1, 63, v0
    v_readfirstlane_b32 s3, v2
    s_mul_i32 s26, s2, {CH_QUADS}
    v_add_u32 v4, s26, v0              ; quad0
    v_lshlrev_b32 v5, 4, v4
    v_lshlrev_b32 v6, 5, v4
    v_add_u32 v7, {NT}, v4
    v_cmp_gt_u32 vcc, {E//4}, v4
    s_mov_b64 s[40:41], vcc
    v_cmp_gt_u32 vcc, {CH_QUADS-NT}, v0
    s_mov_b64 s[42:43], vcc
    v_cmp_gt_u32 vcc, {E//4}, v7
    s_and_b64 s[42:43], s[42:43], vcc
    v_add_u32 v8, {NT*16}, v5
    v_add_u32 v9, {NT*32}, v6
    v_lshlrev_b32 v23, 4, v0           ; tid*16
    v_mov_b32 v12, 0
    v_mov_b32 v13, 0
    v_mov_b32 v14, 0
    v_mov_b32 v15, 0
    v_lshlrev_b32 v{S_L8}, 3, v1
    s_cmp_lg_u32 s3, 7
    s_cbranch_scc1 FK_N7
    v_mov_b32 v10, 0x10000
    v_mov_b32 v11, 0x10000
    v_add_u32 v22, {L_PMIN}, v{S_L8}
    ds_write_b64 v22, v[10:11]
FK_N7:
    s_cmp_lg_u32 s3, 6
    s_cbranch_scc1 FK_N6
    v_lshlrev_b32 v11, 4, v1
    ds_write_b128 v11, v[12:15] offset:{L1_HIST[0]}
    ds_write_b128 v11, v[12:15] offset:{L1_HIST[1]}
FK_N6:
    s_lshl_b32 s30, s3, 6
    s_add_u32 s30, s30, {L_BM}
    v_lshl_add_u32 v11, v1, 2, s30
    v_add_u32 v22, {L_Z}, v23
    v_cmp_gt_u32 vcc, {(L_ZEND-L_Z)//16}, v0
    s_mov_b64 exec, 0xffff
    ds_write_b32 v11, v12
    s_and_b64 exec, vcc, vcc
    s_cbranch_execz FK_NOZ
    ds_write_b128 v22, v[12:15]
FK_NOZ:
    s_mov_b64 exec, -1
    """)
    rstamp(61); stamp()
    a(f"""
    s_waitcnt lgkmcnt(0)
    s_barrier
    s_mov_b64 exec, s[40:41]
    global_load_dwordx4 {vr(D[0],4)}, v5, s[74:75] {LF}
    global_load_dwordx4 {vr(S[0],4)}, v5, s[72:73] {LF}
    global_load_dwordx4 {vr(EAr[0],4)}, v6, s[70:71] {LF}
    global_load_dwordx4 {vr(EAr[0]+4,4)}, v6, s[70:71] offset:16 {LF}
    s_mov_b64 exec, -1
    """)
    set1=f"""
    s_mov_b64 exec, s[42:43]
    global_load_dwordx4 {vr(D[1],4)}, v8, s[74:75] {LF}
    global_load_dwordx4 {vr(S[1],4)}, v8, s[72:73] {LF}
    global_load_dwordx4 {vr(EAr[1],4)}, v9, s[56:57] {LF}
    global_load_dwordx4 {vr(EAr[1]+4,4)}, v9, s[56:57] offset:16 {LF}
    s_mov_b64 exec, -1
    """
    a("s_mov_b64 s[56:57], s[70:71]")
    if not LATE1: a(set1)
    a(f"""
    s_or_b32 s30, s2, s3
    s_cbranch_scc1 FK_N0
    v_mov_b32 v12, s94
    v_mov_b32 v13, s95
    v_mov_b32 v4, 0
    s_mov_b64 exec, 1
    global_store_dwordx2 v4, v[12:13], s[88:89] sc0 sc1
    s_mov_b64 exec, -1
FK_N0:
    s_and_b32 s70, s2, 7
    s_lshl_b32 s70, s70, 5
    s_lshr_b32 s30, s2, 3
    s_or_b32 s70, s70, s30             ; bucket
    {'s_mov_b32 s70, s2' if opts.get('nomap') else ''}
    s_mov_b32 s4, s68
    s_and_b32 s5, s69, 0xffff
    s_mov_b32 s6, {N*128}
    s_mov_b32 s7, 0x20000
    s_lshr_b32 s27, s3, 1              ; nt
    s_and_b32 s28, s3, 1               ; cb
    v_lshrrev_b32 v12, 3, v1           ; r3
    v_and_b32 v13, 7, v1               ; c
    v_lshrrev_b32 v14, 2, v12
    v_xor_b32 v13, v13, v14
    v_lshlrev_b32 v13, 4, v13          ; swz0
    s_mul_i32 s29, s70, {NB}
    s_lshl_b32 s30, s27, 5
    s_add_u32 s29, s29, s30
    s_lshl_b32 s30, s28, 1
    s_add_u32 s29, s29, s30
    s_lshl_b32 s29, s29, 7
    v_lshlrev_b32 v14, 9, v12
    v_add_u32 v14, s29, v14
    s_lshl_b32 s30, s28, 6
    v_xor_b32 v15, s30, v13
    v_add_u32 v20, v14, v15
    v_xor_b32 v15, 32, v15
    v_add3_u32 v21, v14, v15, 64
    v_add_u32 v21, 64, v21
    v_lshlrev_b32 v5, 4, v1
    v_mov_b32 v7, 1
    """)
    def scale8(src, tmp):
        for i in range(4):
            a(f"v_lshlrev_b32 v{tmp+2*i}, 16, v{src+i}")
            a(f"v_and_b32 v{tmp+2*i+1}, 0xffff0000, v{src+i}")
        for i in range(8): a(f"v_mul_f32 v{tmp+i}, {NLOG2E}, v{tmp+i}")
        for i in range(4): a(f"v_cvt_pk_bf16_f32 v{src+i}, v{tmp+2*i}, v{tmp+2*i+1}")
    def hist1(u):
        a(f"s_mov_b64 exec, {sr(40+2*u,2)}")
        if u==1: a("s_cbranch_execz FK_NH1")
        for i in range(4): a(f"v_mul_u32_u24 v{BK[u]+i}, {BMAGIC}, v{D[u]+i}")
        for i in range(4): a(f"v_lshrrev_b32 v{BK[u]+i}, {BSHIFT}, v{BK[u]+i}")
        for i in range(4): a(f"v_mul_u32_u24 v{T1[u]+i}, {NB}, v{BK[u]+i}")
        for i in range(4): a(f"v_lshlrev_b32 v{BK[u]+i}, 2, v{BK[u]+i}")
        for i in range(4): a(f"ds_add_rtn_u32 v{RK[u]+i}, v{BK[u]+i}, v7 offset:{L1_HIST[u]}")
        for i in range(4): a(f"v_sub_u32 v{D[u]+i}, v{D[u]+i}, v{T1[u]+i}")
        if u==1: a("FK_NH1:")
        a("s_mov_b64 exec, -1")
    def scan1(u):
        a(f"""
        s_waitcnt lgkmcnt(0)
        v_add_u32 v{SC+5}, v{SC}, v{SC+1}
        v_add_u32 v{SC+6}, v{SC+5}, v{SC+2}
        v_add_u32 v{SC+7}, v{SC+6}, v{SC+3}
        v_mov_b32 v{SC+4}, v{SC+7}
        """)
        dpp_scan(a, SC+4)
        a(f"""
        v_sub_u32 v{SC+8}, v{SC+4}, v{SC+7}
        {'v_add_u32 v%d, 2048, v%d'%(SC+8,SC+8) if u else ''}
        v_add_u32 v{SC+9}, v{SC+8}, v{SC}
        v_add_u32 v{SC+10}, v{SC+8}, v{SC+5}
        v_add_u32 v{SC+11}, v{SC+8}, v{SC+6}
        ds_write_b128 v5, v[{SC+8}:{SC+11}] offset:{L1_BASE[u]}
        s_mov_b64 exec, {sr(40+2*u,2)}
        """)
        for i in range(4): a(f"ds_read_b32 v{T1[u]+i}, v{BK[u]+i} offset:{L1_BASE[u]}")
        a("s_mov_b64 exec, -1")
        for c in range(4): a(f"v_lshl_or_b32 v{PUB[u]+2*c}, v{SC+c}, 12, v{SC+8+c}")
    def scat1(u):
        a(f"s_mov_b64 exec, {sr(40+2*u,2)}")
        for i in range(4): a(f"v_add_u32 v{T1[u]+i}, v{T1[u]+i}, v{RK[u]+i}")
        for i in range(4): a(f"v_mul_u32_u24 v{T1[u]+i}, 12, v{T1[u]+i}")
        for i in range(4): a(f"v_lshl_or_b32 v{S[u]+i}, v{D[u]+i}, 16, v{S[u]+i}")
        for i in range(4):
            a(f"ds_write2_b32 v{T1[u]+i}, v{EAr[u]+2*i}, v{EAr[u]+1+2*i} offset0:0 offset1:1")
            a(f"ds_write_b32 v{T1[u]+i}, v{S[u]+i} offset:8")
        a("s_mov_b64 exec, -1")
    a(f"""
    s_mul_i32 s26, s2, {CH_BYTES}
    s_add_u32 s26, s26, {WS_REC}
    s_add_u32 s32, s90, s26
    s_addc_u32 s33, s91, 0
    s_and_b32 s33, s33, 0xffff
    s_mov_b32 s34, {CH_BYTES}
    s_mov_b32 s35, 0x20000
    """)
    stamp()
    a("s_waitcnt vmcnt(3)" if LATE1 else "s_waitcnt vmcnt(7)")
    if LATE1: a(set1)
    if opts.get("warm",1):
        a(f"""
        s_cmp_lt_u32 s3, 5
        s_cbranch_scc1 FK_NOWARM
        v_lshlrev_b32 v10, 7, v1
        s_cmp_eq_u32 s3, 7
        s_cbranch_scc1 FK_WARM7
        s_cmp_eq_u32 s3, 5
        s_cselect_b32 s36, s78, s76
        s_cselect_b32 s37, s79, s77
        s_cselect_b32 s38, s84, s82
        s_cselect_b32 s39, s85, s83
        global_load_dword v11, v10, s[36:37]
        global_load_dword v12, v10, s[38:39]
        s_branch FK_NOWARM
FK_WARM7:
        s_mul_i32 s30, s70, {NB*128}
        buffer_load_dword v11, v10, s[4:7], s30 offen
        s_add_u32 s30, s30, 8192
        buffer_load_dword v12, v10, s[4:7], s30 offen
FK_NOWARM:
        """)
    stamp()
    hist1(0)
    a(f"s_waitcnt lgkmcnt(0)\ns_barrier\nds_read_b128 v[{SC}:{SC+3}], v5 offset:{L1_HIST[0]}")
    scan1(0)
    stamp()
    a("s_waitcnt vmcnt(4) lgkmcnt(0)")
    scat1(0)
    a("s_waitcnt vmcnt(3)")
    hist1(1)
    a("s_waitcnt lgkmcnt(0)")
    stamp()
    a("s_barrier")
    for i in range(3): a(f"ds_read_b128 {vr(CPO[0]+4*i,4)}, v23 offset:{i*NT*16}")
    a(f"ds_read_b128 v[{SC}:{SC+3}], v5 offset:{L1_HIST[1]}")
    a("v_mov_b32 v37, 0\nglobal_load_dwordx2 v[38:39], v37, s[88:89] sc0 sc1")
    for i in range(3):
        a(f"s_waitcnt lgkmcnt({3-i})")
        a(f"s_mov_b32 s31, {i*NT*16}")
        a(f"buffer_store_dwordx4 {vr(CPO[0]+4*i,4)}, v23, s[32:35], s31 offen {STF}")
    stamp()
    a("s_cmp_gt_u32 s3, 4\ns_cbranch_scc1 FK_NS1")
    scan1(1)
    a("s_waitcnt vmcnt(4) lgkmcnt(0)")
    scat1(1)
    a(f"""
FK_NS1:
    s_waitcnt lgkmcnt(0)
    """)
    stamp()
    a("s_barrier")
    for i in range(2): a(f"ds_read_b128 {vr(CPO[1]+4*i,4)}, v23 offset:{SUBB+i*NT*16}")
    for i in range(2):
        a(f"s_waitcnt lgkmcnt({1-i})")
        a(f"s_mov_b32 s31, {SUBB+i*NT*16}")
        a(f"buffer_store_dwordx4 {vr(CPO[1]+4*i,4)}, v23, s[32:35], s31 offen {STF}")
    a(f"""
    """)
    stamp()
    a(f"""
    s_mov_b32 s12, s90
    s_and_b32 s13, s91, 0xffff
    s_mov_b32 s14, {WS_SIZE}
    s_mov_b32 s15, 0x20000
    """)
    a(f"""
    s_waitcnt vmcnt(5)
    s_mov_b32 s31, 400000
FK_NONCE:
    v_readfirstlane_b32 s92, v38
    v_readfirstlane_b32 s93, v39
    s_or_b32 s30, s92, s93
    s_cbranch_scc1 FK_NONCED
    s_sub_u32 s31, s31, 1
    s_cbranch_scc1 FK_NONCED
    s_sleep 1
    global_load_dwordx2 v[38:39], v37, s[88:89] sc0 sc1
    s_waitcnt vmcnt(0)
    s_branch FK_NONCE
FK_NONCED:
    s_lshr_b64 s[94:95], s[92:93], 8
    s_lshl_b32 s92, s92, 24
    s_mov_b32 s93, s94
    s_cmp_lg_u32 s3, 0
    s_cbranch_scc1 FK_NOPW
    """)
    for u in range(2):
        for c in range(4): a(f"v_or_b32 v{PUB[u]+2*c}, s92, v{PUB[u]+2*c}\nv_mov_b32 v{PUB[u]+2*c+1}, s93")
    a(f"""
    v_lshlrev_b32 v6, 5, v1
    s_lshl_b32 s29, s2, 12
    s_add_u32 s29, s29, {WS_OFF}
FK_NOPW:
    """)
    stamp()
    a("s_waitcnt vmcnt(0)")
    stamp()
    a(f"""
    s_barrier
    s_cmp_lg_u32 s3, 0
    s_cbranch_scc1 FK_NOPUB
    buffer_store_dwordx4 {vr(PUB[0],4)}, v6, s[12:15], s29 offen sc1
    buffer_store_dwordx4 {vr(PUB[0]+4,4)}, v6, s[12:15], s29 offen offset:16 sc1
    buffer_store_dwordx4 {vr(PUB[1],4)}, v6, s[12:15], s29 offen offset:2048 sc1
    buffer_store_dwordx4 {vr(PUB[1]+4,4)}, v6, s[12:15], s29 offen offset:2064 sc1
FK_NOPUB:
    s_lshl_b32 s26, s70, 3
    s_add_u32 s26, s26, {WS_OFF}
    s_lshl_b32 s30, s3, 10
    s_add_u32 m0, s30, {L_STG+8192}
    global_load_dwordx4 {vr(WBR,4)}, v23, s[78:79]
    global_load_lds_dwordx4 v23, s[84:85]
    s_add_u32 m0, s30, {L_STG+16384}
    s_lshl_b32 s31, s3, 11
    global_load_lds_dwordx4 v23, s[76:77]
    s_add_u32 m0, s30, {L_STG+24576}
    s_nop 0
    global_load_lds_dwordx4 v23, s[82:83]
    s_add_u32 m0, s31, {L_EA}
    s_nop 0
    buffer_load_dwordx4 v20, s[4:7], 0 offen lds
    s_add_u32 m0, s31, {L_EA+1024}
    s_nop 0
    buffer_load_dwordx4 v21, s[4:7], 0 offen lds
    s_mov_b32 exec_hi, 0
    global_load_dwordx4 v[12:15], v5, s[80:81]
    s_mov_b32 exec_hi, -1
    """)
    a(f"""
    s_sub_u32 s96, s68, 3072
    s_subb_u32 s97, s69, 0
    s_and_b32 s97, s97, 0xffff
    s_mov_b32 s98, {N*128+3072}
    s_mov_b32 s99, 0x20000
    v_lshrrev_b32 v42, 3, v1
    v_and_b32 v43, 7, v1
    v_lshrrev_b32 v41, 2, v42
    v_xor_b32 v43, v43, v41
    v_lshlrev_b32 v43, 4, v43
    s_mov_b32 s8, s86
    s_and_b32 s9, s87, 0xffff
    s_mov_b32 s10, {N*128}
    s_mov_b32 s11, 0x20000
    s_mov_b32 s16, 0
    s_mov_b32 s17, 0xffff
    s_mov_b32 s18, 0
    v_add_u32 v{SWZ}, 3072, v43
    v_xor_b32 v{SWZ+1}, 32, v43
    v_add_u32 v{SWZ+1}, 2048, v{SWZ+1}
    v_xor_b32 v{SWZ+2}, 64, v43
    v_add_u32 v{SWZ+2}, 1024, v{SWZ+2}
    v_xor_b32 v{SWZ+3}, 96, v43
    v_and_b32 v{S_R1}, 1, v42
    v_lshrrev_b32 v{S_C1}, 1, v42
    v_lshlrev_b32 v{S_C1}, 4, v{S_C1}
    v_add_u32 v{S_C1}, {L_SF}, v{S_C1}
    v_and_b32 v2, 31, v1
    v_lshrrev_b32 v3, 5, v1
    v_lshlrev_b32 v{L4N}, 2, v2
    v_and_b32 v4, 3, v2
    v_lshrrev_b32 v40, 2, v2
    v_lshlrev_b32 v6, 10, v4
    v_lshl_add_u32 v6, v40, 7, v6
    v_lshrrev_b32 v7, 2, v40
    v_lshl_or_b32 v7, v4, 1, v7
    v_xor_b32 v7, v7, v3
    v_lshl_add_u32 v6, v7, 4, v6
    s_lshl_b32 s24, s3, 12
    s_add_u32 s24, s24, {L_STG}
    v_add_u32 v{AAD}, s24, v6
    v_xor_b32 v7, 32, v6
    v_add_u32 v{AAD+1}, s24, v7
    v_xor_b32 v7, 64, v6
    v_add_u32 v{AAD+2}, s24, v7
    v_xor_b32 v7, 96, v6
    v_add_u32 v{AAD+3}, s24, v7
    v_and_b32 v{S_HS}, 1, v40
    v_lshrrev_b32 v8, 1, v40
    v_lshl_add_u32 v9, v8, 2, v4
    v_lshlrev_b32 v{AEI}, 6, v3
    v_sub_u32 v{AEI}, 128, v{AEI}
    v_lshrrev_b32 v{S_SC}, 2, v{AEI}
    v_lshrrev_b32 v10, 4, v{AEI}
    v_mul_u32_u24 v11, {L_SF-L_EA}, v3
    v_mad_u32_u24 v{S_C0}, v9, v10, v11
    v_add_u32 v{S_C0}, {L_EA}, v{S_C0}
    v_cmp_eq_u32 s[36:37], v{S_HS}, v3
    v_mov_b32 v9, 7
    v_mov_b32 v10, 0x3f80
    v_cndmask_b32_e64 v8, v9, v8, s[36:37]
    """)
    for j in range(4):
        a(f"""
        v_cmp_eq_u32 s[{32+2*(j&1)}:{33+2*(j&1)}], {j}, v8
        {'v_mul_u32_u24 v%d, 12, v1'%S_L12 if j==0 else 'v_mov_b32 v%d, %d'%(S_FA,L_FLAG) if j==1 else 's_nop 0'}
        s_nop 0
        v_cndmask_b32_e64 v{AOH[0]+j}, 0, v10, s[{32+2*(j&1)}:{33+2*(j&1)}]
        v_lshlrev_b32 v{AOH[1]+j}, 16, v{AOH[0]+j}
        """)
    a(f"""
    s_lshl_b32 s31, s3, 5
    v_add_u32 v4, s31, v2
    v_mul_u32_u24 v{S_CB}, {CH_BYTES}, v4
    v_add_u32 v{S_CB}, {WS_REC}, v{S_CB}
    v_lshlrev_b32 v{S_PO}, 12, v4
    v_lshl_add_u32 v{S_PO}, v3, 11, v{S_PO}
    """)
    a(f"""
    s_waitcnt vmcnt(0)
    """)
    scale8(WBR, SC)
    a(f"""
    v_add_u32 v7, {L_STG}, v23
    ds_write_b128 v7, {vr(WBR,4)}
    s_cmp_lg_u32 s3, 7
    s_cbranch_scc1 FK_N7B
    """)
    scale8(12, SC)
    a(f"""
    v_add_u32 v7, {L_WCL}, v5
    s_mov_b32 exec_hi, 0
    ds_write_b128 v7, v[12:15]
    s_mov_b32 exec_hi, -1
FK_N7B:
    v_and_b32 v8, 15, v1
    v_lshrrev_b32 v9, 2, v8
    v_lshlrev_b32 v9, 7, v9
    v_and_b32 v8, 3, v8
    v_lshl_add_u32 v9, v8, 3, v9
    v_lshl_add_u32 v9, v3, 10, v9
    v_and_b32 v8, 16, v1
    v_lshl_add_u32 v9, v8, 1, v9
    v_add_u32 v20, {L_STG}, v9
    s_lshr_b32 s28, s3, 2
    s_and_b32 s27, s3, 3               ; nt
    s_lshl_b32 s30, s28, 13
    v_add_u32 v21, s30, v20
    v_add_u32 v22, {L_WCL}, v9
    s_lshl_b32 s30, s27, 12
    s_sub_u32 s30, s30, s24
    s_add_u32 s30, s30, {L_EA}
    """)
    for s in range(4): a(f"v_add_u32 v{8+s}, s30, v{AAD+s}")
    a("s_waitcnt lgkmcnt(0)\ns_barrier")
    for s in range(4): a(f"ds_read_b128 {vr(A[0]+4*s,4)}, v{8+s}")
    for cb in range(2):
        for s in range(4):
            for hh in range(2):
                a(f"ds_read_b64_tr_b16 {vr(WAU+(cb*4+s)*4+2*hh,2)}, v21 offset:{16384+s*2048+cb*64+hh*512}")
    a(f"""
    s_waitcnt lgkmcnt(8)
    """)
    for cb in range(2):
        if cb: a("s_waitcnt lgkmcnt(0)")
        for s in range(4):
            a(f"v_mfma_f32_32x32x16_bf16 {vr(XAC+16*cb,16)}, {vr(A[0]+4*s,4)}, {vr(WAU+16*cb+4*s,4)}, {'0' if s==0 else vr(XAC+16*cb,16)}")
    a(f"""
    buffer_load_dwordx2 v[38:39], v{S_PO}, s[12:15], s26 offen sc1
    """)
    for m in range(2):
        for s in range(4):
            for cb in range(2):
                for hh in range(2):
                    a(f"ds_read_b64_tr_b16 {vr(WB+m*32+(s*2+cb)*4+2*hh,2)}, v20 offset:{m*8192+s*2048+cb*64+hh*512}")
    a(f"""
    ds_read_b64_tr_b16 {vr(WC[0],2)}, v22
    ds_read_b64_tr_b16 {vr(WC[1],2)}, v22 offset:64
    s_cmp_lg_u32 s28, 0
    s_cbranch_scc1 FK_XU
    v_mul_u32_u24 v7, {4*ROWB}, v3
    v_add_u32 v7, v{L4N}, v7
    s_mul_i32 s31, s27, {32*ROWB}
    s_add_u32 s31, s31, 512
    v_add_u32 v7, s31, v7
    """)
    for i in range(32): a(f"v_mul_f32 v{XAC+i}, {NLOG2E}, v{XAC+i}")
    for i in range(16): a(f"v_cvt_pk_bf16_f32 v{XAC+i}, v{XAC+i}, v{XAC+16+i}")
    a("s_cmp_eq_u32 s27, 3\ns_cbranch_scc1 FK_XA3")
    for i in range(16): a(f"ds_write_b32 v7, v{XAC+i} offset:{((i>>2)*8+(i&3))*ROWB}")
    a(f"""
    s_branch FK_XA4
FK_XA3:
    s_mov_b32 exec_hi, 0
    ds_write_b32 v7, v{XAC} offset:0
    ds_write_b32 v7, v{XAC+1} offset:{ROWB}
    s_mov_b64 exec, -1
    s_branch FK_XA4
FK_XU:
    v_lshl_add_u32 v8, v3, 9, v{L4N}
    s_lshl_b32 s31, s2, 14
    s_lshl_b32 s30, s27, 12
    s_add_u32 s31, s31, s30
    s_add_u32 s31, s31, {WS_XU}
    """)
    for i in range(16): a(f"v_cvt_pk_bf16_f32 v{XAC+i}, v{XAC+i}, v{XAC+16+i}")
    for i in range(16):
        if i==2: a("s_cmp_eq_u32 s27, 3\ns_cbranch_scc1 FK_XA4")
        a(f"buffer_store_dword v{XAC+i}, v8, s[12:15], s31 offen offset:{((i>>2)*8+(i&3))*128}")
    a(f"""
FK_XA4:
    s_waitcnt lgkmcnt(0)
    s_mov_b32 exec_lo, 0
    v_mov_b32 v{WC[0]}, {BIG16<<16}
    v_mov_b32 v{WC[0]+1}, 0
    v_mov_b32 v{WC[1]}, {BIG16<<16}
    v_mov_b32 v{WC[1]+1}, 0
    s_mov_b32 exec_lo, -1
FK_XAD:
    s_lshl_b32 s29, s3, 8
    s_add_u32 s29, s29, {L_ADJ}
    s_lshl_b32 s30, s3, 6
    s_add_u32 s30, s30, {L_BM}
    s_mov_b32 s31, 400000
    s_mov_b64 s[64:65], -1
    """)
    stamp()
    a(f"""
FK_POLL:
    s_waitcnt vmcnt(0)
    v_and_b32 v8, 0xff000000, v38
    v_cmp_eq_u32 s[34:35], s93, v39
    v_cmp_eq_u32 s[36:37], s92, v8
    s_nand_b64 s[34:35], s[34:35], s[36:37]
    s_cbranch_scc0 FK_GOT
    """)
    if opts.get("pfn",0):
        a(f"""
        s_andn2_b64 s[36:37], s[64:65], s[34:35]
        s_cbranch_scc0 FK_NOPF
        s_mov_b64 s[64:65], s[34:35]
        s_mov_b64 exec, s[36:37]
        v_and_b32 v9, 0xfff, v38
        v_bfe_u32 v10, v38, 12, 12
        v_mad_u32_u24 v9, v9, 12, v{S_CB}
        v_mad_u32_u24 v10, v10, 12, v9
        buffer_load_dword v11, v9, s[12:15], 0 offen sc1
        {'buffer_load_dword v14, v10, s[12:15], 0 offen sc1' if opts['pfn']>1 else ''}
FK_NOPF:
        """)
    a(f"""
    s_sub_u32 s31, s31, 1
    s_cbranch_scc1 FK_GOT
    s_sleep {opts.get('sleep',4)}
    s_mov_b64 exec, s[34:35]
    buffer_load_dwordx2 v[38:39], v{S_PO}, s[12:15], s26 offen sc1
    s_mov_b64 exec, -1
    s_branch FK_POLL
FK_GOT:
    s_mov_b64 exec, -1
    """)
    stamp()
    a(f"""
    v_bfe_u32 v8, v38, 12, 12
    v_and_b32 v9, 0xfff, v38
    v_mov_b32 v{T+6}, v8
    v_min_u32 v8, s17, v8
    v_subrev_u32 v8, s16, v8
    v_max_i32 v8, 0, v8
    v_mov_b32 v10, v8
    v_add_u32 v9, s16, v9
    """)
    dpp_scan(a, 10)
    B0=T+8
    a(f"""
    v_cmp_lt_u32 s[34:35], 0, v8
    v_sub_u32 v11, v10, v8
    v_readlane_b32 s20, v10, 63
    v_sub_u32 v9, v9, v11
    v_mul_i32_i24 v9, 12, v9
    v_add_u32 v9, v9, v{S_CB}
    v_mbcnt_lo_u32_b32 v12, s34, 0
    v_mbcnt_hi_u32_b32 v12, s35, v12
    v_lshl_add_u32 v12, v12, 2, s29
    v_add_u32 v13, -1, v11
    v_lshrrev_b32 v14, 5, v13
    v_min_u32 v14, 15, v14
    v_lshl_add_u32 v14, v14, 2, s30
    v_lshlrev_b32 v13, v13, 1
    v_cmp_lt_u32 s[36:37], 0, v11
    v_mov_b32 v{T+5}, s30
    s_mov_b64 exec, s[34:35]
    ds_write_b32 v12, v9
    s_and_b64 exec, s[34:35], s[36:37]
    ds_or_b32 v14, v13
    s_mov_b64 exec, -1
    ds_read_b128 {vr(B0,4)}, v{T+5}
    ds_read_b128 {vr(B0+4,4)}, v{T+5} offset:16
    ds_read_b128 {vr(B0+8,4)}, v{T+5} offset:32
    ds_read_b128 {vr(B0+12,4)}, v{T+5} offset:48
    s_lshr_b32 s31, s29, 2
    v_mov_b32 v15, s31
    """)
    for p in range(NPASS):
        a(f"""
        s_sub_i32 s31, s20, {64*p}
        v_cmp_gt_i32 {msk(p)}, s31, v1
        """)
    for p in range(NPASS):
        if p%2==0: a(f"s_waitcnt lgkmcnt({3-p//2+p})")
        lo=B0+2*p; hi=lo+1
        a(f"""
        v_mbcnt_lo_u32_b32 v{HA+p}, v{lo}, v15
        v_mbcnt_hi_u32_b32 v{HA+p}, v{hi}, v{HA+p}
        {'v_bcnt_u32_b32 v15, v%d, v15'%lo if p<NPASS-1 else ''}
        v_lshlrev_b32 v{HA+p}, 2, v{HA+p}
        {'v_bcnt_u32_b32 v15, v%d, v15'%hi if p<NPASS-1 else ''}
        ds_read_b32 v{HA+p}, v{HA+p}
        """)
    for p in range(NPASS):
        a(f"""
        s_waitcnt lgkmcnt({NPASS-1-p})
        v_add_u32 v{HA+p}, v{HA+p}, v{S_L12}
        {'s_mov_b32 s31, %d'%(768*p) if p>5 else ''}
        s_mov_b64 exec, {msk(p)}
        buffer_load_dwordx3 {vr(rec(p),3)}, v{HA+p}, s[12:15], {'s31 offen' if p>5 else '0 offen offset:%d'%(768*p)} {opts.get('ldf','sc1')}
        {'s_mov_b64 exec, -1' if p>=4 else ''}
        """)
    a(f"""
    s_cmp_gt_u32 s20, {64*NPASS}
    s_cselect_b32 s71, 0x10000, 0
    s_or_b32 s31, s71, s18
    s_cbranch_scc0 FK_NOMAX
    v_or_b32 v{T+6}, s71, v{T+6}
    ds_max_u32 v{S_FA}, v{T+6}
FK_NOMAX:
    v_lshl_add_u32 v8, v2, 2, s29
    v_mov_b32 v9, 0
    ds_write_b32 v8, v9
    s_mov_b32 s62, s29
    v_mov_b32 v{T+7}, 1
    v_add_u32 v{T+17}, {L_HIST}, v{S_L8}
    s_mov_b32 s31, {L_HIST}
    s_mov_b32 m0, s24
    """)
    stamp()
    for p in range(NPASS):
        q=rec(p)
        a(f"""
        s_waitcnt vmcnt({NPASS-1-p})
        s_mov_b64 exec, {msk(p)}
        {'s_cbranch_execz FK_HD' if p>=5 else ''}
        v_bfe_u32 v{HA+p}, v{q+2}, 16, 7
        v_lshl_add_u32 v{HA+p}, v{HA+p}, 2, s31
        ds_add_rtn_u32 v{q+3}, v{HA+p}, v{T+7}
        """)
    a(f"""
FK_HD:
    s_mov_b64 exec, -1
    s_waitcnt vmcnt(0)
    """)
    xpf(a,opts.get("xpf1",0),opts.get("xpf2",0),168)
    a("s_waitcnt lgkmcnt(0)")
    stamp()
    a("s_barrier")
    a(f"""
    ds_read_b64 v[{T+20}:{T+21}], v{T+17}
    ds_read_b32 v{T+19}, v{S_FA}
    s_waitcnt lgkmcnt(0)
    v_add_u32 v{T+2}, 3, v{T+20}
    v_add_u32 v{T+3}, 3, v{T+21}
    v_and_b32 v{T+2}, 0xfffffffc, v{T+2}
    v_and_b32 v{T+3}, 0xfffffffc, v{T+3}
    v_add_u32 v{T+3}, v{T+2}, v{T+3}
    v_mov_b32 v{T+4}, v{T+3}
    v_readfirstlane_b32 s19, v{T+19}
    """)
    dpp_scan(a, T+4)
    a(f"""
    v_sub_u32 v{T+22}, v{T+4}, v{T+3}
    v_add_u32 v{T+23}, v{T+22}, v{T+2}
    v_readlane_b32 s20, v{T+4}, 63     ; 4Q
    ds_write_b64 v{T+17}, v[{T+22}:{T+23}] offset:{L_SB-L_HIST}
    s_cmp_lg_u32 s18, 0
    s_cbranch_scc1 FK_OK
    s_cmp_ge_u32 s19, 0x10000
    s_cbranch_scc1 FK_GOSLOW
    s_cmp_le_u32 s20, {CAP}
    s_cbranch_scc1 FK_OK
FK_GOSLOW:
    s_mov_b32 s18, 1
    s_mov_b32 s17, {SLOWR}
    s_branch FK_REBATCH
FK_OK:
    """)
    for p in range(NPASS):
        a(f"""
        s_mov_b64 exec, {msk(p)}
        {'s_cbranch_execz FK_RD' if p>=5 else ''}
        ds_read_b32 v{HA+p}, v{HA+p} offset:{L_SB-L_HIST}
        """)
    a(f"""
FK_RD:
    s_mov_b64 exec, -1
    s_and_b32 s19, s19, 0xffff
    s_add_u32 s26, s20, 31
    s_lshr_b32 s26, s26, 5             ; TT
    s_lshl_b32 s29, s26, 5             ; 32TT
    s_lshr_b32 s27, s26, 3             ; NT0
    s_and_b32 s26, s26, 7              ; rem
    s_mul_i32 s22, s3, s27
    s_min_u32 s28, s3, s26
    s_add_u32 s22, s22, s28
    s_lshl_b32 s22, s22, 3             ; qs0
    s_cmp_lt_u32 s3, s26
    s_cselect_b32 s28, 1, 0
    s_add_u32 s21, s27, s28            ; NT
    s_lshl_b32 s28, s21, 2             ; 4NT
    s_add_u32 s23, s22, s28            ; qs1
    s_cmp_eq_u32 s3, 1
    s_cbranch_scc1 FK_JOBD
    s_bitcmp1_b32 s3, 0
    s_cselect_b64 s[34:35], -1, 0
    v_cndmask_b32_e64 v4, v{T+20}, v{T+21}, s[34:35]
    v_cndmask_b32_e64 v5, v{T+22}, v{T+23}, s[34:35]
    s_lshr_b32 s27, s3, 1
    v_mov_b32 v8, 0
    v_mov_b32 v9, 0
    v_mov_b32 v10, {FLAG16<<16}
    s_cmp_lg_u32 s27, 0
    s_cbranch_scc1 FK_PADJOB
    v_add_u32 v5, s20, v1
    v_cmp_ge_u32 vcc, s29, v5
    s_branch FK_PADW
FK_PADJOB:
    v_sub_u32 v6, 0, v4
    v_and_b32 v6, 3, v6
    v_add3_u32 v5, v5, v4, s27
    v_add_u32 v5, -1, v5
    v_cmp_le_u32 vcc, s27, v6
FK_PADW:
    v_lshlrev_b32 v6, 3, v5
    v_add_u32 v6, {L_EA}, v6
    v_lshlrev_b32 v7, 2, v5
    v_add_u32 v7, {L_SF}, v7
    s_mov_b64 exec, vcc
    ds_write_b64 v6, v[8:9]
    ds_write_b32 v7, v10
    s_mov_b64 exec, -1
    s_waitcnt lgkmcnt(2)
    s_branch FK_JOBE
FK_JOBD:
    s_waitcnt lgkmcnt(0)
FK_JOBE:
    s_mov_b32 s30, {L_EA}
    s_mov_b32 s31, {L_SF}
    """)
    for p in range(NPASS):
        q=rec(p); h=HA+p
        a(f"""
        s_mov_b64 exec, {msk(p)}
        {'s_cbranch_execz FK_SD' if p>=5 else ''}
        v_add_u32 v{h}, v{h}, v{q+3}
        v_lshl_add_u32 v{q+3}, v{h}, 3, s30
        ds_write_b64 v{q+3}, v[{q}:{q+1}]
        v_lshl_add_u32 v{h}, v{h}, 2, s31
        v_and_b32 v{q+2}, 0xffff, v{q+2}
        ds_write_b32 v{h}, v{q+2}
        """)
    a(f"""
FK_SD:
    s_mov_b64 exec, -1
    v_mul_u32_u24 v4, s28, v{S_R1}
    v_add_u32 v4, s22, v4
    v_lshl_add_u32 v{SRA}, v4, 4, v{S_C1}
    v_mul_u32_u24 v4, s28, v{S_HS}
    v_add_u32 v4, s22, v4
    v_mad_u32_u24 v{AEA}, v4, v{S_SC}, v{S_C0}
    s_lshl_b32 s30, s21, 3
    v_lshrrev_b32 v4, 2, v{T+22}
    v_lshrrev_b32 v5, 2, v{T+23}
    v_subrev_u32 v4, s22, v4
    v_subrev_u32 v5, s22, v5
    v_cmp_gt_u32 s[34:35], s30, v4
    v_cmp_gt_u32 s[36:37], s30, v5
    v_cmp_lt_u32 s[38:39], 0, v{T+20}
    v_cmp_lt_u32 s[58:59], 0, v{T+21}
    v_add_u32 v4, s62, v4
    v_add_u32 v5, s62, v5
    v_lshl_add_u32 v6, v1, 1, 1
    v_lshl_add_u32 v7, v1, 1, 2
    s_and_b64 exec, s[34:35], s[38:39]
    ds_write_b8 v4, v6
    s_and_b64 exec, s[36:37], s[58:59]
    ds_write_b8 v5, v7
    s_mov_b64 exec, -1
    s_waitcnt lgkmcnt(0)
    """)
    stamp()
    a(f"""
    s_barrier
    s_cmp_eq_u32 s21, 0
    s_cbranch_scc1 FK_LOOPDONE
    ds_read_b128 {vr(SFV,4)}, v{SRA}
    ds_read2_b32 {vr(AE,2)}, v{AEA} offset0:0 offset1:1
    v_mul_u32_u24 v4, s28, v3
    v_add_u32 v4, s22, v4                ; qs[h]
    v_lshl_add_u32 v{T+16}, v2, 1, v4    ; u_a
    s_sub_u32 s30, s62, s22
    v_add_u32 v{T+17}, s30, v{T+16}
    ds_read_u16 v5, v{T+17}
    {INC_SR}
    {INC_AE}
    s_waitcnt lgkmcnt(2)
    """)
    for s in dv_calc()+dma(): a(s)
    a(f"""
    s_lshl_b32 s30, s22, 2
    s_lshl_b32 s31, s23, 2
    v_cmp_ge_u32 s[34:35], s30, v{T+22}
    v_cmp_ge_u32 s[36:37], s30, v{T+23}
    v_cmp_ge_u32 s[38:39], s31, v{T+22}
    v_cmp_ge_u32 s[58:59], s31, v{T+23}
    ds_read_b128 {vr(SFV,4)}, v{SRA}
    {INC_SR}
    v_lshlrev_b32 v{QIA}, 2, v4
    v_add_u32 v{QIA}, {L_QI}, v{QIA}
    s_bcnt1_i32_b64 s30, s[34:35]
    s_bcnt1_i32_b64 s31, s[36:37]
    s_add_u32 s56, s30, s31
    s_bcnt1_i32_b64 s30, s[38:39]
    s_bcnt1_i32_b64 s31, s[58:59]
    s_add_u32 s57, s30, s31
    v_mov_b32 v{T+18}, s56
    s_mov_b32 exec_lo, 0
    v_mov_b32 v{T+18}, s57
    s_mov_b32 exec_lo, -1
    s_lshr_b32 s20, s20, 2               ; Q
    s_mov_b32 s64, {512-ROWB}
    s_lshl_b32 s26, s3, 1
    s_add_u32 s26, s26, {R_PART}
    v_add_u32 v10, s26, v3
    v_lshlrev_b32 v11, 1, v2
    v_cmp_gt_u32 s[38:39], s28, v11
    s_waitcnt lgkmcnt(1)
    s_nop 0
    v_cndmask_b32_e64 v4, 0, v5, s[38:39]
    v_and_b32 v5, 0xff, v4
    v_lshrrev_b32 v6, 8, v4
    v_max_u32 v7, v5, v6
    v_readlane_b32 s30, v5, 0
    v_readlane_b32 s31, v5, 32
    """)
    dpp_scan(a, 7, op="v_max_u32", full=False)
    a(f"""
    v_mov_b32 v8, 0
    s_cmp_eq_u32 s30, 0
    s_cselect_b32 s34, -1, 0
    s_cmp_lt_u32 s22, s20
    s_cselect_b32 s34, s34, 0
    v_mov_b32_dpp v8, v7 wave_shr:1 row_mask:0xf bank_mask:0xf
    s_cmp_eq_u32 s31, 0
    s_cselect_b32 s35, -1, 0
    s_cmp_lt_u32 s23, s20
    s_cselect_b32 s35, s35, 0
    v_max3_u32 v8, v8, v5, v{T+18}
    v_max_u32 v7, v7, v{T+18}
    v_add_u32 v12, 1, v10
    v_cmp_eq_u32 s[36:37], v8, v{T+18}
    v_cmp_eq_u32 s[58:59], v7, v{T+18}
    s_and_b64 s[36:37], s[36:37], s[34:35]
    s_and_b64 s[58:59], s[58:59], s[34:35]
    v_cndmask_b32_e64 v8, v8, v12, s[36:37]
    v_cndmask_b32_e64 v7, v7, v12, s[58:59]
    v_add_u32 v13, 1, v{T+16}
    v_mov_b32 v12, {R_ZERO+1}
    v_cmp_gt_u32 s[36:37], s20, v{T+16}
    v_cmp_gt_u32 s[66:67], s20, v13
    v_cmp_eq_u32 s[58:59], 0, v5
    v_cmp_eq_u32 s[60:61], 0, v6
    v_cmp_lt_u32 s[62:63], 0, v2
    v_cndmask_b32_e64 v8, v12, v8, s[36:37]
    v_cndmask_b32_e64 v7, v12, v7, s[66:67]
    s_and_b64 s[58:59], s[58:59], s[36:37]
    s_and_b64 s[58:59], s[58:59], s[62:63]
    s_and_b64 s[60:61], s[60:61], s[66:67]
    v_mul_u32_u24 v{T}, {ROWB}, v8
    v_mul_u32_u24 v{T+1}, {ROWB}, v7
    v_add_u32 v{T}, {-ROWB}, v{T}
    v_add_u32 v{T+1}, {-ROWB}, v{T+1}
    v_cndmask_b32_e64 v{T+2}, 0, 1.0, s[58:59]
    v_cndmask_b32_e64 v{T+3}, 0, 1.0, s[60:61]
    v_lshlrev_b32 v13, 2, v{T+16}
    v_add_u32 v13, {L_QI}, v13
    s_mov_b64 exec, s[38:39]
    ds_write_b64 v13, v[{T}:{T+1}]
    ds_write_b64 v13, v[{T+2}:{T+3}] offset:{QKOFF}
    s_and_b64 exec, s[34:35], s[34:35]
    s_cbranch_execz FK_NOCONT
    v_mul_u32_u24 v14, {ROWB}, v{T+18}
    v_add3_u32 v14, v14, v{L4N}, s64
    ds_read_b32 v15, v14
    v_mul_u32_u24 v14, {ROWB}, v10
    v_add_u32 v14, v14, v{L4N}
    v_lshlrev_b32 v13, 2, v{T+18}
    v_add_u32 v13, {L_PMAX-4}, v13
    s_waitcnt lgkmcnt(0)
    ds_write_b32 v14, v15 offset:512
    s_and_b32 exec_lo, exec_lo, 1
    s_and_b32 exec_hi, exec_hi, 1
    ds_max_u32 v13, v10
    ds_min_u32 v13, v10 offset:{L_PMIN-L_PMAX}
FK_NOCONT:
    s_mov_b64 exec, -1
    """)
    for s in xaf_read(0)+kp_read(0,0): a(s)
    a(f"""
    s_nand_b32 s30, s60, s61
    s_nand_b32 s31, s58, s59
    s_lshr_b32 s31, s31, 1
    s_bitreplicate_b64_b32 s[44:45], s30
    s_bitreplicate_b64_b32 s[46:47], s31
    s_mov_b32 s30, 0x55555555
    s_mov_b32 s31, 0x55555555
    s_and_b64 s[44:45], s[44:45], s[30:31]
    s_andn2_b64 s[46:47], s[46:47], s[30:31]
    s_or_b64 s[44:45], s[44:45], s[46:47]
    s_sub_u32 s30, s28, 1
    s_bitset1_b64 s[44:45], s30
    """)
    for r in (ACD[0]+3,ACD[1]+3,ACN[0]+3,ACN[1]+3): a(f"v_mov_b32 v{r}, 0")
    a("s_waitcnt lgkmcnt(0)")
    for s in xaf_adds()+bx_reads()+["s_waitcnt vmcnt(0)"]+a_reads(0)+dv_calc(): a(s)
    a("s_waitcnt lgkmcnt(0)")
    a("s_cmp_lt_u32 s21, 2\ns_cbranch_scc1 FK_SKD0")
    for s in dma(): a(s)
    a("FK_SKD0:")
    for s in xaf_read(1)+g_mfmas(0,0)+src_read()+[INC_SR]+g_mfmas(1,0): a(s)
    a("s_waitcnt lgkmcnt(0)")
    for s in xaf_adds()+ae_read()+bx_reads()+dv_calc(): a(s)
    for i in range(16): a(f"v_exp_f32 v{EE[0]+i}, v{GA[0]+i}")
    a("s_waitcnt vmcnt(0)")
    for s in a_reads(1): a(s)
    for i in range(16): a(f"v_add_f32 v{EE[0]+i}, 1.0, v{EE[0]+i}")
    a("s_waitcnt lgkmcnt(0)")
    a("s_cmp_lt_u32 s21, 3\ns_cbranch_scc1 FK_SKD1")
    for s in dma(): a(s)
    a("FK_SKD1:")
    for s in src_read(): a(s)
    stamp(); rstamp(59)
    a("s_sub_u32 s25, s21, 1")
    a("FK_LOOP:")
    for par in range(2):
        a(f"s_cmp_eq_u32 s25, 0\ns_cbranch_scc1 FK_LAST{par}")
        tile(a,0,par,False)
        a("s_sub_u32 s25, s25, 1")
    a("s_branch FK_LOOP")
    for x in lp4.STUBS: a(x)
    lp4.STUBS.clear()
    for par in range(2):
        a(f"FK_LAST{par}:")
        tile(a,0,par,True)
        a("s_branch FK_LOOPDONE")
    for x in lp4.STUBS: a(x)
    a(f"""
FK_LOOPDONE:
    s_setprio 0
    """)
    rstamp(60); stamp()
    XR=128; X=[136,140]; B=[144,176]; M=[4,10]
    a(f"""
    v_and_b32 v23, 7, v0
    v_lshrrev_b32 v20, 3, v0
    v_lshlrev_b32 v20, 7, v20
    v_lshl_add_u32 v20, v23, 3, v20
    s_mul_i32 s26, s70, {NB*128}
    v_add_u32 v20, s26, v20
    v_add_u32 v21, 8192, v20
    v_lshlrev_b32 v22, 4, v0
    s_lshl_b32 s27, s2, 14
    s_add_u32 s27, s27, {WS_XU}
    s_add_u32 s28, s27, 8192
    v_cmp_gt_u32 vcc, {NB*8-512}, v0
    s_mov_b64 s[34:35], vcc
    buffer_load_dwordx2 v[{XR}:{XR+1}], v20, s[4:7], 0 offen
    buffer_load_dwordx2 v[{XR+2}:{XR+3}], v20, s[4:7], 0 offen offset:64
    buffer_load_dwordx4 {vr(X[0],4)}, v22, s[12:15], s27 offen
    s_mov_b64 exec, s[34:35]
    buffer_load_dwordx2 v[{XR+4}:{XR+5}], v21, s[4:7], 0 offen
    buffer_load_dwordx2 v[{XR+6}:{XR+7}], v21, s[4:7], 0 offen offset:64
    buffer_load_dwordx4 {vr(X[1],4)}, v22, s[12:15], s28 offen
    s_mov_b64 exec, -1
    v_lshlrev_b32 v23, 4, v23
    """)
    for it in range(2):
        m=M[it]
        a(f"""
        v_lshrrev_b32 v{m}, 3, v0
        {'v_add_u32 v%d, 64, v%d'%(m,m) if it else ''}
        v_lshlrev_b32 v{m+1}, 2, v{m}
        v_add_u32 v{m+1}, {L_HIST}, v{m+1}
        ds_read_b32 v{m+5}, v{m+1}
        """)
    a(f"v_mov_b32 v37, {R_ZERO}\ns_waitcnt lgkmcnt(0)")
    for it in range(2):
        m=M[it]
        a(f"""
        v_cmp_eq_u32 s[36:37], 0, v{m+5}
        s_nop 1
        v_cndmask_b32_e64 v{m}, v{m}, v37, s[36:37]
        v_mul_u32_u24 v{m}, {ROWB}, v{m}
        v_add_u32 v{m}, v{m}, v23
        """)
    a("s_barrier")
    stamp()
    for it in range(2):
        m=M[it]; b=B[it]
        if it==1: a("s_mov_b64 exec, s[34:35]")
        a(f"""
        ds_read_b32 v{m+2}, v{m+1} offset:{L_PMAX-L_HIST}
        ds_read_b32 v{m+3}, v{m+1} offset:{L_PMIN-L_HIST}
        """)
    for it in range(2):
        m=M[it]; b=B[it]
        a("s_mov_b64 exec, s[34:35]" if it else "s_mov_b64 exec, -1")
        a(f"""
        ds_read_b128 {vr(b,4)}, v{m}
        ds_read_b128 {vr(b+4,4)}, v{m} offset:128
        ds_read_b128 {vr(b+8,4)}, v{m} offset:256
        ds_read_b128 {vr(b+12,4)}, v{m} offset:384
        """)
    a("s_waitcnt lgkmcnt(8)")
    for it in range(2):
        m=M[it]; b=B[it]; x=X[it]; xr=XR+4*it
        if it==1:
            a(f"""
            s_cmp_eq_u64 s[34:35], 0
            s_cbranch_scc1 FK_FIN
            s_mov_b64 exec, s[34:35]
            """)
        else: a("s_mov_b64 exec, -1")
        a(f"""
FK_PL{it}:
        v_cmp_le_u32 s[36:37], v{m+3}, v{m+2}
        s_nop 1
        v_cndmask_b32_e64 v{m+5}, v37, v{m+3}, s[36:37]
        v_mul_u32_u24 v{m+5}, {ROWB}, v{m+5}
        v_add_u32 v{m+5}, v{m+5}, v23
        ds_read_b128 {vr(b+16,4)}, v{m+5}
        ds_read_b128 {vr(b+20,4)}, v{m+5} offset:128
        ds_read_b128 {vr(b+24,4)}, v{m+5} offset:256
        ds_read_b128 {vr(b+28,4)}, v{m+5} offset:384
        v_add_u32 v{m+3}, 1, v{m+3}
        v_cmp_le_u32 vcc, v{m+3}, v{m+2}
        s_waitcnt lgkmcnt(0)
        """)
        for i in range(16): a(f"v_add_f32 v{b+i}, v{b+i}, v{b+16+i}")
        a(f"s_cbranch_vccnz FK_PL{it}")
        a(f"""
        s_cmp_eq_u32 s18, 0
        s_cbranch_scc1 FK_NOSLOW{it}
        s_mul_i32 s26, s2, {NB*512}
        s_add_u32 s26, s26, {WS_TOT+it*512*64}
        v_lshlrev_b32 v{m+5}, 6, v0
        s_cmp_eq_u32 s16, 0
        s_cbranch_scc1 FK_NOLD{it}
        """)
        for j in range(4): a(f"buffer_load_dwordx4 {vr(b+16+4*j,4)}, v{m+5}, s[12:15], s26 offen offset:{16*j} sc1")
        a("s_waitcnt vmcnt(0)")
        for i in range(16): a(f"v_add_f32 v{b+i}, v{b+i}, v{b+16+i}")
        a(f"FK_NOLD{it}:")
        for j in range(4): a(f"buffer_store_dwordx4 {vr(b+4*j,4)}, v{m+5}, s[12:15], s26 offen offset:{16*j} sc1")
        a(f"s_waitcnt vmcnt(0)\nFK_NOSLOW{it}:")
        for i in range(8): a(f"v_add_f32 v{b+i}, 0x358637bd, v{b+i}")
        for i in range(8): a(f"v_rcp_f32 v{b+i}, v{b+i}")
        a("s_waitcnt vmcnt(3)" if it==0 else "s_waitcnt vmcnt(2)")
        for i in range(4):
            a(f"v_lshlrev_b32 v{b+16+i}, 16, v{x+i}")
            a(f"v_and_b32 v{b+20+i}, 0xffff0000, v{x+i}")
        for i in range(8): a(f"v_fma_f32 v{b+i}, v{b+i}, v{b+8+i}, v{b+16+i}")
        for i in range(4):
            a(f"v_lshlrev_b32 v{b+8+2*i}, 16, v{xr+i}")
            a(f"v_and_b32 v{b+9+2*i}, 0xffff0000, v{xr+i}")
        for i in range(8): a(f"v_max_f32 v{b+i}, 0, v{b+i}")
        for i in range(8): a(f"v_add_f32 v{b+i}, v{b+i}, v{b+8+i}")
        for i in range(4): a(f"v_cvt_pk_bf16_f32 v{b+8+i}, v{b+2*i}, v{b+1+2*i}")
        a(f"buffer_store_dwordx2 {vr(b+8,2)}, v{20+it}, s[8:11], 0 offen")
        a(f"buffer_store_dwordx2 {vr(b+10,2)}, v{20+it}, s[8:11], 0 offen offset:64")
    a(f"""
FK_FIN:
    s_mov_b64 exec, -1
    """)
    stamp()
    if STAMP:
        a("s_waitcnt vmcnt(0)")
        stamp(); rstamp(62)
        a(f"""
        v_writelane_b32 v{SV}, s21, 63
        s_lshl_b32 s26, s2, 3
        s_add_u32 s26, s26, s3
        s_lshl_b32 s26, s26, 8
        s_add_u32 s26, s26, {WS_STAMP}
        v_lshlrev_b32 v4, 2, v1
        buffer_store_dword v{SV}, v4, s[12:15], s26 offen
        """)
    a(f"""
    s_cmp_eq_u32 s18, 0
    s_cbranch_scc1 FK_END
    s_add_u32 s16, s16, {SLOWR}
    s_add_u32 s17, s17, {SLOWR}
    s_cmp_ge_u32 s16, s19
    s_cbranch_scc1 FK_END
FK_REBATCH:
    s_waitcnt vmcnt(0) lgkmcnt(0)
    s_barrier
    v_mov_b32 v4, 0
    v_mov_b32 v5, 0
    v_mov_b32 v6, 0
    v_mov_b32 v7, 0
    v_mov_b32 v8, 0x10000
    v_mov_b32 v9, 0x10000
    v_add_u32 v11, {L_PMIN}, v{S_L8}
    ds_write_b64 v11, v[8:9]
    s_lshl_b32 s30, s3, 6
    s_add_u32 s30, s30, {L_BM}
    v_lshl_add_u32 v11, v1, 2, s30
    v_lshlrev_b32 v10, 4, v0
    v_add_u32 v10, {L_Z}, v10
    v_cmp_gt_u32 vcc, {(L_ZEND-L_Z)//16}, v0
    s_mov_b64 exec, 0xffff
    ds_write_b32 v11, v4
    s_and_b64 exec, vcc, vcc
    ds_write_b128 v10, v[4:7]
    s_mov_b64 exec, -1
    s_lshl_b32 s26, s70, 3
    s_add_u32 s26, s26, {WS_OFF}
    buffer_load_dwordx2 v[38:39], v{S_PO}, s[12:15], s26 offen sc1
    s_waitcnt lgkmcnt(0)
    s_barrier
    s_branch FK_XAD
FK_END:
    s_endpgm
    """)
    a(kd(name, 256, 102))
    return f"; @launch grid=({NBUCK},1,1) block=(512,1,1) lds={L_END}"
```

```python
from asmlib import *
from consts import *
KP=[4,8]; XAF=12; SFV=20; DV=20; SWZ=24; AAD=28
AEA=32; AEI=33; SRA=34; QIA=35; L4N=36; FT=37
AE=38; BX=40; WC=[44,46]; AOH=[48,52]
WB=64; WV=96
GA=[128,224]; EE=[144,160]; H=176; A=[192,208]
ACD=[240,248]; ACN=[244,252]
QKOFF=CAP
def wb(s,cb): return WB+(s*2+cb)*4
def wv(s,cb): return WV+(s*2+cb)*4
OPT={}
EXP=""; WMODE="stub"; STUBS=[]; _wl=[0]
SHIFT_M=["s_lshr_b64 s[44:45], s[44:45], 4"]
XS="s[96:99]"
def interleave(main, extra):
    out=[]
    for i,m in enumerate(main):
        out+=extra.get(i,[])
        out.append(m)
    out+=extra.get(len(main),[])
    return out
def g_mfmas(cb,ap):
    g=vr(GA[cb],16); l=[]
    for s in range(4):
        l.append(f"v_mfma_f32_32x32x16_bf16 {g}, {vr(A[ap]+4*s,4)}, {vr(wb(s,cb),4)}, {'0' if s==0 else g}")
    l.append(f"v_mfma_f32_32x32x16_bf16 {g}, {vr(AOH[cb],4)}, {vr(BX,4)}, {g}")
    l.append(f"v_mfma_f32_32x32x8_bf16 {g}, {vr(AE,2)}, {vr(WC[cb],2)}, {g}")
    return l
def h_mfmas(cb,ap):
    h=vr(H,16)
    return [f"v_mfma_f32_32x32x16_bf16 {h}, {vr(A[ap]+4*s,4)}, {vr(wv(s,cb),4)}, {'0' if s==0 else h}" for s in range(4)]
def dv_calc(): return [f"v_lshl_add_u32 v{DV+k}, v{SFV+k}, 7, v{SWZ+k}" for k in range(4)]
def dma(): return [f"buffer_load_dwordx4 v{DV+k}, {XS}, 0 offen offset:{k*1024} lds" for k in range(4)]
def a_reads(ap): return [f"ds_read_b128 {vr(A[ap]+4*s,4)}, v{AAD+s}" for s in range(4)]
def ae_read(): return [f"ds_read2_b32 {vr(AE,2)}, v{AEA} offset0:0 offset1:1"]
def xaf_read(dt): return [f"ds_read_b128 {vr(XAF,4)}, v{QIA} offset:{16*dt}"]
def kp_read(par,dt): return [f"ds_read_b128 {vr(KP[par],4)}, v{QIA} offset:{QKOFF+16*dt}"]
def xaf_adds(): return [f"v_add_u32 v{XAF+m}, v{XAF+m}, v{L4N}" for m in range(4)]
def bx_reads(): return [f"ds_read_b32 v{BX+m}, v{XAF+m} offset:512" for m in range(4)]
def src_read(): return [f"ds_read_b128 {vr(SFV,4)}, v{SRA}"]
INC_QI=f"v_add_u32 v{QIA}, 16, v{QIA}"; INC_SR=f"v_add_u32 v{SRA}, 64, v{SRA}"; INC_AE=f"v_add_u32 v{AEA}, v{AEA}, v{AEI}"
def chains(cb,par):
    g=EE[cb]; h=H; l=[]
    for m in range(4):
        d0=ACD[cb]+(m+3)%4; d=ACD[cb]+m; n0=ACN[cb]+(m+3)%4; n=ACN[cb]+m
        k=KP[par]+m
        l.append(f"v_mul_f32 v{n}, v{n0}, v{k}")
        l.append(f"v_fma_f32 v{d}, v{d0}, v{k}, v{g+4*m}")
        for r in range(4):
            l.append(f"v_fmac_f32 v{n}, v{g+4*m+r}, v{h+4*m+r}")
            if r<3: l.append(f"v_add_f32 v{d}, v{d}, v{g+4*m+r+1}")
    return l
AD=[16,56]
def flush(par=0):
    if WMODE=="none": return []
    l=[]
    _wl[0]+=1; top=f"FKZ_{_wl[0]}"
    if WMODE in ("keep","keepbit"):
        mv=[f"v_mov_b32 v{AD[par]+m}, v{XAF+m}" for m in range(4)]
        def body(m): return [f"ds_write2_b32 v{AD[par]+m}, v{ACD[0]+m}, v{ACD[1]+m} offset0:0 offset1:32", f"ds_write2_b32 v{AD[par]+m}, v{ACN[0]+m}, v{ACN[1]+m} offset0:64 offset1:96"]
        if WMODE=="keep":
            st=[f"{top}S:"]
            for m in range(4):
                lab=f"{top}_{m}"
                st+=[f"s_bitcmp1_b32 s44, {m}", f"s_cbranch_scc0 {lab}"]+body(m)+[f"{lab}:"]
            STUBS.extend(st+[f"s_branch {top}"])
            return ["s_and_b32 s30, s44, 15", f"s_cbranch_scc1 {top}S", f"{top}:"]+SHIFT_M+mv
        for m in range(4):
            lab=f"{top}_{m}"
            l+=[f"s_bitcmp1_b32 s44, {m}", f"s_cbranch_scc1 {lab}S", f"{lab}:"]
            STUBS.extend([f"{lab}S:"]+body(m)+[f"s_branch {lab}"])
        return l+SHIFT_M+mv
    if WMODE=="bit":
        for m in range(4):
            lab=f"{top}_{m}"
            l+=[f"s_bitcmp1_b32 s44, {m}", f"s_cbranch_scc1 {lab}S", f"{lab}:"]
            STUBS.extend([f"{lab}S:", f"ds_read_b32 v{FT}, v{QIA} offset:{4*m}", "s_waitcnt lgkmcnt(0)", f"v_add_u32 v{FT}, v{FT}, v{L4N}",
             f"ds_write2_b32 v{FT}, v{ACD[0]+m}, v{ACD[1]+m} offset0:0 offset1:32",
             f"ds_write2_b32 v{FT}, v{ACN[0]+m}, v{ACN[1]+m} offset0:64 offset1:96", f"s_branch {lab}"])
        return l+SHIFT_M
    if WMODE=="jt":
        body=[]
        for c in range(1,16):
            body.append(f"{top}_c{c}:")
            ms=[m for m in range(4) if c>>m&1]
            regs=[FT,16,17,18]
            for i,m in enumerate(ms): body.append(f"ds_read_b32 v{regs[i]}, v{QIA} offset:{4*m}")
            body.append("s_waitcnt lgkmcnt(0)")
            for i,m in enumerate(ms):
                body+=[f"v_add_u32 v{regs[i]}, v{regs[i]}, v{L4N}", f"ds_write2_b32 v{regs[i]}, v{ACD[0]+m}, v{ACD[1]+m} offset0:0 offset1:32", f"ds_write2_b32 v{regs[i]}, v{ACN[0]+m}, v{ACN[1]+m} offset0:64 offset1:96"]
            body.append(f"s_branch {top}")
        tab=[f"{top}T:"]+[f"s_branch {top}" if c==0 else f"s_branch {top}_c{c}" for c in range(16)]
        STUBS.extend([f"{top}S:", "s_getpc_b64 s[46:47]", "s_lshl_b32 s30, s30, 2", "s_add_u32 s46, s46, s30", "s_addc_u32 s47, s47, 0", "s_add_u32 s46, s46, 24", "s_addc_u32 s47, s47, 0", "s_setpc_b64 s[46:47]"]+tab+body)
        return ["s_and_b32 s30, s44, 15", f"s_cbranch_scc1 {top}S", f"{top}:"]+SHIFT_M
    st=[f"{top}S:"]
    for m in range(4):
        lab=f"{top}_{m}"
        st+=[f"s_bitcmp1_b32 s44, {m}", f"s_cbranch_scc0 {lab}",
             f"ds_read_b32 v{FT}, v{QIA} offset:{4*m}", "s_waitcnt lgkmcnt(0)", f"v_add_u32 v{FT}, v{FT}, v{L4N}",
             f"ds_write2_b32 v{FT}, v{ACD[0]+m}, v{ACD[1]+m} offset0:0 offset1:32",
             f"ds_write2_b32 v{FT}, v{ACN[0]+m}, v{ACN[1]+m} offset0:64 offset1:96", f"{lab}:"]
    st+=[f"s_branch {top}"]
    STUBS.extend(st)
    return ["s_and_b32 s30, s44, 15", f"s_cbranch_scc1 {top}S", f"{top}:"]+SHIFT_M
def s_part(a, cb, par, do_exp, do_g, extra=[], pre=[]):
    cn=cb^1
    ex=[f"v_exp_f32 v{EE[cn]+i}, v{GA[cn]+i}" for i in range(16)] if do_exp else []
    rc=[f"v_rcp_f32 v{EE[cb]+i}, v{EE[cb]+i}" for i in range(16)]
    hm=h_mfmas(cb,par)
    for x in pre: a(x)
    a(f"s_setprio 1")
    tr=ex+rc
    if do_g:
        gm=g_mfmas(cb,par^1)
        hp=OPT.get("hp",[18,21,24,27]); gp=OPT.get("gp",[0,3,6,9,12,15])
        ext={}
        for p,m in zip(hp,hm): ext.setdefault(p,[]).append(m)
        for p,m in zip(gp,gm): ext.setdefault(p,[]).append(m)
        for p,x in extra: ext.setdefault(p,[]).extend(x)
        seq=interleave(tr,ext)
    elif do_exp:
        seq=interleave(tr,{0:[hm[0]],4:[hm[1]],8:[hm[2]],12:[hm[3]]})
    else:
        seq=interleave(tr,{0:[hm[0]],3:[hm[1]],6:[hm[2]],9:[hm[3]]})+["s_nop 7"]
    for s in seq: a(s)
def p_part(a, cb, par, do_add, extra={}):
    cn=cb^1
    a("s_setprio 0")
    pl=[]
    if do_add: pl+=[f"v_add_f32 v{EE[cn]+i}, 1.0, v{EE[cn]+i}" for i in range(16)]
    pl+=chains(cb,par)
    pl=interleave(pl,extra)
    for s in pl: a(s)
def tile(a, role, par, last):
    if EXP:
        a0=a
        class F:
            def label(self,b): return a0.label(b)
            def __call__(self,x):
                for l in x.split("\n"):
                    t=l.strip()
                    if "nolds" in EXP and (t.startswith("ds_") or t.startswith("buffer_") or t.startswith("s_waitcnt")): continue
                    if "nodma" in EXP and t.startswith("buffer_"): continue
                    a0(t)
        a=F()
    lab=a.label("SKD")
    skipdma=["s_cmp_lt_u32 s25, 3", f"s_cbranch_scc1 {lab}"]+dma()+[f"{lab}:"]
    if OPT.get("noskip"): skipdma=dma()
    v=OPT.get("v",0)
    if last:
        s_part(a,0,par,True,False)
        p_part(a,0,par,True)
        s_part(a,1,par,False,False)
        p_part(a,1,par,False)
        for s in flush(par): a(s)
        return
    qreads=kp_read(par^1,1)+xaf_read(2)
    feed=["s_waitcnt vmcnt(0)"]+a_reads(par)+ae_read()+bx_reads()
    if v==0:
        s_part(a,0,par,True,True,[(30,dv_calc())],["s_waitcnt lgkmcnt(0)"])
        p_part(a,0,par,True,{0:qreads, 40:["s_waitcnt lgkmcnt(0)"]+xaf_adds()+[INC_AE, INC_SR]})
        s_part(a,1,par,True,True)
        p_part(a,1,par,True,{0:feed, 30:["s_waitcnt lgkmcnt(5)"]+skipdma+src_read()})
        for s in flush(par)+[INC_QI]: a(s)
    elif v==1:
        s_part(a,0,par,True,True,[(2,qreads[:1]),(5,qreads[1:]),(30,dv_calc())],["s_waitcnt lgkmcnt(0)"])
        p_part(a,0,par,True,{30:["s_waitcnt lgkmcnt(0)"]+xaf_adds()+[INC_AE, INC_SR]})
        s_part(a,1,par,True,True,[(28,["s_waitcnt vmcnt(0)"]+a_reads(par)[:2]),(29,a_reads(par)[2:]),(30,ae_read()+bx_reads()[:2]),(31,bx_reads()[2:])])
        p_part(a,1,par,True,{20:["s_waitcnt lgkmcnt(5)"]+skipdma+src_read()})
        for s in flush(par)+[INC_QI]: a(s)
    elif v==2:
        f=feed
        s_part(a,0,par,True,True,[(30,dv_calc())],["s_waitcnt lgkmcnt(0)"])
        p_part(a,0,par,True,{4:qreads[:1],10:qreads[1:], 40:["s_waitcnt lgkmcnt(0)"]+xaf_adds()+[INC_AE, INC_SR]})
        s_part(a,1,par,True,True)
        ex={2*i:[x] for i,x in enumerate(f)}
        ex[34]=["s_waitcnt lgkmcnt(5)"]+skipdma+src_read()
        p_part(a,1,par,True,ex)
        for s in flush(par)+[INC_QI]: a(s)
def bench_init(a):
    a(f"""
    v_add_u32 v{AAD}, s24, v2
    v_add_u32 v{AAD+1}, 1024, v{AAD}
    v_add_u32 v{AAD+2}, 2048, v{AAD}
    v_add_u32 v{AAD+3}, 3072, v{AAD}
    v_and_b32 v{SWZ}, 7, v1
    v_lshlrev_b32 v{SWZ}, 4, v{SWZ}
    v_mov_b32 v{SWZ+1}, v{SWZ}
    v_mov_b32 v{SWZ+2}, v{SWZ}
    v_mov_b32 v{SWZ+3}, v{SWZ}
    v_lshrrev_b32 v{SRA}, 3, v0
    v_lshlrev_b32 v{SRA}, 7, v{SRA}
    v_add_u32 v{SRA}, {L_SF}, v{SRA}
    v_lshlrev_b32 v{AEA}, 3, v1
    v_add_u32 v{AEA}, {L_EA}, v{AEA}
    v_mov_b32 v{AEI}, 128
    v_mov_b32 v{QIA}, {L_QI}
    s_mov_b32 m0, s24
    s_mov_b32 s96, s4
    s_mov_b32 s97, s5
    s_mov_b32 s98, s6
    s_mov_b32 s99, s7
    """)
    for r in range(WB,WB+64): a(f"v_mov_b32 v{r}, 0x3c003c00")
```

```python
import sys
sys.path.insert(0,'gen')
from asmlib import *
from fk5 import gen_fk
import json
opts=json.loads(sys.argv[2]) if len(sys.argv)>2 else {}
out=sys.argv[1] if len(sys.argv)>1 else 'gather_scatter__edge_featured_mpnn_gatedgcn__graph.s'
ref=open('gather_scatter__edge_featured_mpnn_gatedgcn__graph.s.ref').read().split('\n')
hdr=[l for l in ref if l.startswith(';') and '@launch' not in l and 'Override' not in l and 'grid=ceil' not in l]
a=Asm()
l1=gen_fk(a,opts)
txt="\n".join(hdr)+"\n"+l1+"\n"+'.amdgcn_target "amdgcn-amd-amdhsa--gfx950"\n'+a.text()
open(out,'w').write(txt)
print("wrote",out,len(txt))
```

```python
from asmlib import *
from consts import *
import lp4
from lp4 import *

S_HS=56; S_SC=57; S_C0=58; S_R1=59; S_C1=60; S_L12=61; S_L8=62; S_CB=63; S_PO=16; S_FA=17
SV=19
REC=128; HA=160; MASK=40
def rec(p): return REC+4*p
def msk(p): return sr(MASK+2*p,2)
D=[128,132]; S=[136,140]; EAr=[144,152]; BK=[160,164]; RK=[168,172]; T1=[176,180]
SC=184; WBR=200; WAU=148; XAC=224; PUB=[208,216]; CPO=[224,240]
TP=224
L1_HIST=[CH_BYTES,CH_BYTES+1024]; L1_BASE=[CH_BYTES+2048,CH_BYTES+3072]
SUBB=512*4*12
L_WCL=L_QI

def dpp_scan(a, v, op="v_add_u32", full=True):
    for sh in (1,2,4,8):
        a(f"s_nop 1\n{op}_dpp v{v}, v{v}, v{v} row_shr:{sh} row_mask:0xf bank_mask:0xf bound_ctrl:0")
    a(f"s_nop 1\n{op}_dpp v{v}, v{v}, v{v} row_bcast:15 row_mask:0xa bank_mask:0xf")
    if full: a(f"s_nop 1\n{op}_dpp v{v}, v{v}, v{v} row_bcast:31 row_mask:0xc bank_mask:0xf")

def xpf(a, first, n, dst):
    if n<=0: return
    a(f"""
    s_lshr_b32 s30, s2, 3
    s_mul_i32 s30, s30, 102400
    s_mul_i32 s31, s3, 12800
    s_add_u32 s30, s30, s31
    s_add_u32 s30, s30, {first*1024}
    v_lshlrev_b32 v{dst}, 4, v1
    """)
    for i in range(n):
        if i and i%4==0: a("s_add_u32 s30, s30, 4096")
        a(f"buffer_load_dwordx4 v[{dst+2}:{dst+5}], v{dst}, s[4:7], s30 offen offset:{(i%4)*1024}")

def gen_fk(a, opts):
    lp4.OPT.clear(); lp4.OPT.update(opts); lp4.WMODE=opts.get("wmode","stub"); lp4.STUBS.clear()
    name="gather_scatter__edge_featured_mpnn_gatedgcn__graph_kernel"
    a(khead(name))
    STAMP=opts.get("stamp",0)
    STF=opts.get("stf","sc1")
    LF=opts.get("lf","")
    LATE1=opts.get("late1",1)
    cnt=[0]
    def stamp():
        if not STAMP: return
        a(f"s_memtime s[100:101]\ns_waitcnt lgkmcnt(0)\nv_writelane_b32 v{SV}, s100, {cnt[0]}")
        cnt[0]+=1
    def dbg(slot):
        if not opts.get("dbg"): return
        a(f"""
        s_memrealtime s[100:101]
        s_waitcnt lgkmcnt(0)
        v_mov_b32 v18, {slot*4}
        v_mov_b32 v19, s100
        s_mov_b64 exec, 1
        global_atomic_umax v18, v19, s[88:89] sc1
        s_mov_b64 exec, -1
        """)
    def rstamp(i):
        if STAMP: a(f"s_memrealtime s[100:101]\ns_waitcnt lgkmcnt(0)\nv_writelane_b32 v{SV}, s100, {i}")
    T=TP
    NT=512
    a(f"""
    s_cmp_ge_u32 s2, {NBUCK}
    s_cbranch_scc1 FK_END
    s_load_dwordx16 s[68:83], s[0:1], 0
    s_load_dwordx8 s[84:91], s[0:1], 64
    s_memrealtime s[94:95]
    v_lshrrev_b32 v2, 6, v0
    v_and_b32 v1, 63, v0
    v_readfirstlane_b32 s3, v2
    s_mul_i32 s26, s2, {CH_QUADS}
    v_add_u32 v4, s26, v0              ; quad0
    v_lshlrev_b32 v5, 4, v4
    v_lshlrev_b32 v6, 5, v4
    v_add_u32 v7, {NT}, v4
    v_cmp_gt_u32 vcc, {E//4}, v4
    s_mov_b64 s[40:41], vcc
    v_cmp_gt_u32 vcc, {CH_QUADS-NT}, v0
    s_mov_b64 s[42:43], vcc
    v_cmp_gt_u32 vcc, {E//4}, v7
    s_and_b64 s[42:43], s[42:43], vcc
    v_add_u32 v8, {NT*16}, v5
    v_add_u32 v9, {NT*32}, v6
    v_lshlrev_b32 v23, 4, v0           ; tid*16
    v_mov_b32 v12, 0
    v_mov_b32 v13, 0
    v_mov_b32 v14, 0
    v_mov_b32 v15, 0
    v_lshlrev_b32 v{S_L8}, 3, v1
    s_cmp_lg_u32 s3, 7
    s_cbranch_scc1 FK_N7
    v_mov_b32 v10, 0x10000
    v_mov_b32 v11, 0x10000
    v_add_u32 v22, {L_PMIN}, v{S_L8}
    ds_write_b64 v22, v[10:11]
FK_N7:
    s_cmp_lg_u32 s3, 6
    s_cbranch_scc1 FK_N6
    v_lshlrev_b32 v11, 4, v1
    ds_write_b128 v11, v[12:15] offset:{L1_HIST[0]}
    ds_write_b128 v11, v[12:15] offset:{L1_HIST[1]}
FK_N6:
    s_lshl_b32 s30, s3, 6
    s_add_u32 s30, s30, {L_BM}
    v_lshl_add_u32 v11, v1, 2, s30
    v_add_u32 v22, {L_Z}, v23
    v_cmp_gt_u32 vcc, {(L_ZEND-L_Z)//16}, v0
    s_mov_b64 exec, 0xffff
    ds_write_b32 v11, v12
    s_and_b64 exec, vcc, vcc
    s_cbranch_execz FK_NOZ
    ds_write_b128 v22, v[12:15]
FK_NOZ:
    s_mov_b64 exec, -1
    """)
    rstamp(61); stamp()
    a(f"""
    s_waitcnt lgkmcnt(0)
    s_barrier
    s_mov_b64 exec, s[40:41]
    global_load_dwordx4 {vr(D[0],4)}, v5, s[74:75] {LF}
    global_load_dwordx4 {vr(S[0],4)}, v5, s[72:73] {LF}
    global_load_dwordx4 {vr(EAr[0],4)}, v6, s[70:71] {LF}
    global_load_dwordx4 {vr(EAr[0]+4,4)}, v6, s[70:71] offset:16 {LF}
    s_mov_b64 exec, -1
    """)
    set1=f"""
    s_mov_b64 exec, s[42:43]
    global_load_dwordx4 {vr(D[1],4)}, v8, s[74:75] {LF}
    global_load_dwordx4 {vr(S[1],4)}, v8, s[72:73] {LF}
    global_load_dwordx4 {vr(EAr[1],4)}, v9, s[56:57] {LF}
    global_load_dwordx4 {vr(EAr[1]+4,4)}, v9, s[56:57] offset:16 {LF}
    s_mov_b64 exec, -1
    """
    a("s_mov_b64 s[56:57], s[70:71]")
    dbg(2)
    if not LATE1: a(set1)
    a(f"""
    s_or_b32 s30, s2, s3
    s_cbranch_scc1 FK_N0
    v_mov_b32 v12, s94
    v_mov_b32 v13, s95
    v_mov_b32 v4, 0
    s_mov_b64 exec, 1
    global_store_dwordx2 v4, v[12:13], s[88:89] sc0 sc1
    s_mov_b64 exec, -1
FK_N0:
    s_and_b32 s70, s2, 7
    s_lshl_b32 s70, s70, 5
    s_lshr_b32 s30, s2, 3
    s_or_b32 s70, s70, s30             ; bucket
    {'s_mov_b32 s70, s2' if opts.get('nomap') else ''}
    s_mov_b32 s4, s68
    s_and_b32 s5, s69, 0xffff
    s_mov_b32 s6, {N*128}
    s_mov_b32 s7, 0x20000
    s_lshr_b32 s27, s3, 1              ; nt
    s_and_b32 s28, s3, 1               ; cb
    v_lshrrev_b32 v12, 3, v1           ; r3
    v_and_b32 v13, 7, v1               ; c
    v_lshrrev_b32 v14, 2, v12
    v_xor_b32 v13, v13, v14
    v_lshlrev_b32 v13, 4, v13          ; swz0
    s_mul_i32 s29, s70, {NB}
    s_lshl_b32 s30, s27, 5
    s_add_u32 s29, s29, s30
    s_lshl_b32 s30, s28, 1
    s_add_u32 s29, s29, s30
    s_lshl_b32 s29, s29, 7
    v_lshlrev_b32 v14, 9, v12
    v_add_u32 v14, s29, v14
    s_lshl_b32 s30, s28, 6
    v_xor_b32 v15, s30, v13
    v_add_u32 v20, v14, v15
    v_xor_b32 v15, 32, v15
    v_add3_u32 v21, v14, v15, 64
    v_add_u32 v21, 64, v21
    v_lshlrev_b32 v5, 4, v1
    v_mov_b32 v7, 1
    """)
    def scale8(src, tmp):
        for i in range(4):
            a(f"v_lshlrev_b32 v{tmp+2*i}, 16, v{src+i}")
            a(f"v_and_b32 v{tmp+2*i+1}, 0xffff0000, v{src+i}")
        for i in range(8): a(f"v_mul_f32 v{tmp+i}, {NLOG2E}, v{tmp+i}")
        for i in range(4): a(f"v_cvt_pk_bf16_f32 v{src+i}, v{tmp+2*i}, v{tmp+2*i+1}")
    def hist1(u):
        a(f"s_mov_b64 exec, {sr(40+2*u,2)}")
        if u==1: a("s_cbranch_execz FK_NH1")
        for i in range(4): a(f"v_mul_u32_u24 v{BK[u]+i}, {BMAGIC}, v{D[u]+i}")
        for i in range(4): a(f"v_lshrrev_b32 v{BK[u]+i}, {BSHIFT}, v{BK[u]+i}")
        for i in range(4): a(f"v_mul_u32_u24 v{T1[u]+i}, {NB}, v{BK[u]+i}")
        for i in range(4): a(f"v_lshlrev_b32 v{BK[u]+i}, 2, v{BK[u]+i}")
        for i in range(4): a(f"ds_add_rtn_u32 v{RK[u]+i}, v{BK[u]+i}, v7 offset:{L1_HIST[u]}")
        for i in range(4): a(f"v_sub_u32 v{D[u]+i}, v{D[u]+i}, v{T1[u]+i}")
        if u==1: a("FK_NH1:")
        a("s_mov_b64 exec, -1")
    def scan1(u):
        a(f"""
        s_waitcnt lgkmcnt(0)
        v_add_u32 v{SC+5}, v{SC}, v{SC+1}
        v_add_u32 v{SC+6}, v{SC+5}, v{SC+2}
        v_add_u32 v{SC+7}, v{SC+6}, v{SC+3}
        v_mov_b32 v{SC+4}, v{SC+7}
        """)
        dpp_scan(a, SC+4)
        a(f"""
        v_sub_u32 v{SC+8}, v{SC+4}, v{SC+7}
        {'v_add_u32 v%d, 2048, v%d'%(SC+8,SC+8) if u else ''}
        v_add_u32 v{SC+9}, v{SC+8}, v{SC}
        v_add_u32 v{SC+10}, v{SC+8}, v{SC+5}
        v_add_u32 v{SC+11}, v{SC+8}, v{SC+6}
        ds_write_b128 v5, v[{SC+8}:{SC+11}] offset:{L1_BASE[u]}
        s_mov_b64 exec, {sr(40+2*u,2)}
        """)
        for i in range(4): a(f"ds_read_b32 v{T1[u]+i}, v{BK[u]+i} offset:{L1_BASE[u]}")
        a("s_mov_b64 exec, -1")
        for c in range(4): a(f"v_lshl_or_b32 v{PUB[u]+2*c}, v{SC+c}, 12, v{SC+8+c}")
    def scat1(u):
        a(f"s_mov_b64 exec, {sr(40+2*u,2)}")
        for i in range(4): a(f"v_add_u32 v{T1[u]+i}, v{T1[u]+i}, v{RK[u]+i}")
        for i in range(4): a(f"v_mul_u32_u24 v{T1[u]+i}, 12, v{T1[u]+i}")
        for i in range(4): a(f"v_lshl_or_b32 v{S[u]+i}, v{D[u]+i}, 16, v{S[u]+i}")
        for i in range(4):
            a(f"ds_write2_b32 v{T1[u]+i}, v{EAr[u]+2*i}, v{EAr[u]+1+2*i} offset0:0 offset1:1")
            a(f"ds_write_b32 v{T1[u]+i}, v{S[u]+i} offset:8")
        a("s_mov_b64 exec, -1")
    a(f"""
    s_mul_i32 s26, s2, {CH_BYTES}
    s_add_u32 s26, s26, {WS_REC}
    s_add_u32 s32, s90, s26
    s_addc_u32 s33, s91, 0
    s_and_b32 s33, s33, 0xffff
    s_mov_b32 s34, {CH_BYTES}
    s_mov_b32 s35, 0x20000
    """)
    stamp()
    a("s_waitcnt vmcnt(3)" if LATE1 else "s_waitcnt vmcnt(7)")
    if LATE1: a(set1)
    if opts.get("warm",1):
        a(f"""
        s_cmp_lt_u32 s3, 5
        s_cbranch_scc1 FK_NOWARM
        v_lshlrev_b32 v10, 7, v1
        s_cmp_eq_u32 s3, 7
        s_cbranch_scc1 FK_WARM7
        s_cmp_eq_u32 s3, 5
        s_cselect_b32 s36, s78, s76
        s_cselect_b32 s37, s79, s77
        s_cselect_b32 s38, s84, s82
        s_cselect_b32 s39, s85, s83
        global_load_dword v11, v10, s[36:37]
        global_load_dword v12, v10, s[38:39]
        s_branch FK_NOWARM
FK_WARM7:
        s_mul_i32 s30, s70, {NB*128}
        buffer_load_dword v11, v10, s[4:7], s30 offen
        s_add_u32 s30, s30, 8192
        buffer_load_dword v12, v10, s[4:7], s30 offen
FK_NOWARM:
        """)
    stamp()
    hist1(0)
    a(f"s_waitcnt lgkmcnt(0)\ns_barrier\nds_read_b128 v[{SC}:{SC+3}], v5 offset:{L1_HIST[0]}")
    scan1(0)
    stamp()
    a("s_waitcnt vmcnt(4) lgkmcnt(0)")
    scat1(0)
    a("s_waitcnt vmcnt(3)")
    hist1(1)
    a("s_waitcnt lgkmcnt(0)")
    stamp()
    a("s_barrier")
    for i in range(3): a(f"ds_read_b128 {vr(CPO[0]+4*i,4)}, v23 offset:{i*NT*16}")
    a(f"ds_read_b128 v[{SC}:{SC+3}], v5 offset:{L1_HIST[1]}")
    a("v_mov_b32 v37, 0\nglobal_load_dwordx2 v[38:39], v37, s[88:89] sc0 sc1")
    for i in range(3):
        a(f"s_waitcnt lgkmcnt({3-i})")
        a(f"s_mov_b32 s31, {i*NT*16}")
        a(f"buffer_store_dwordx4 {vr(CPO[0]+4*i,4)}, v23, s[32:35], s31 offen {STF}")
    stamp()
    a("s_cmp_gt_u32 s3, 4\ns_cbranch_scc1 FK_NS1")
    scan1(1)
    a("s_waitcnt vmcnt(4) lgkmcnt(0)")
    scat1(1)
    a(f"""
FK_NS1:
    s_waitcnt lgkmcnt(0)
    """)
    stamp()
    a("s_barrier")
    for i in range(2): a(f"ds_read_b128 {vr(CPO[1]+4*i,4)}, v23 offset:{SUBB+i*NT*16}")
    for i in range(2):
        a(f"s_waitcnt lgkmcnt({1-i})")
        a(f"s_mov_b32 s31, {SUBB+i*NT*16}")
        a(f"buffer_store_dwordx4 {vr(CPO[1]+4*i,4)}, v23, s[32:35], s31 offen {STF}")
    a(f"""
    """)
    stamp()
    a(f"""
    s_mov_b32 s12, s90
    s_and_b32 s13, s91, 0xffff
    s_mov_b32 s14, {WS_SIZE}
    s_mov_b32 s15, 0x20000
    """)
    a(f"""
    s_waitcnt vmcnt(5)
    s_mov_b32 s31, 400000
FK_NONCE:
    v_readfirstlane_b32 s92, v38
    v_readfirstlane_b32 s93, v39
    s_or_b32 s30, s92, s93
    s_cbranch_scc1 FK_NONCED
    s_sub_u32 s31, s31, 1
    s_cbranch_scc1 FK_NONCED
    s_sleep 1
    global_load_dwordx2 v[38:39], v37, s[88:89] sc0 sc1
    s_waitcnt vmcnt(0)
    s_branch FK_NONCE
FK_NONCED:
    s_lshr_b64 s[94:95], s[92:93], 8
    s_lshl_b32 s92, s92, 24
    s_mov_b32 s93, s94
    s_cmp_lg_u32 s3, 0
    s_cbranch_scc1 FK_NOPW
    """)
    for u in range(2):
        for c in range(4): a(f"v_or_b32 v{PUB[u]+2*c}, s92, v{PUB[u]+2*c}\nv_mov_b32 v{PUB[u]+2*c+1}, s93")
    a(f"""
    v_lshlrev_b32 v6, 5, v1
    s_lshl_b32 s29, s2, 12
    s_add_u32 s29, s29, {WS_OFF}
FK_NOPW:
    """)
    stamp()
    a("s_waitcnt vmcnt(0)")
    stamp()
    a(f"""
    s_barrier
    s_cmp_lg_u32 s3, 0
    s_cbranch_scc1 FK_NOPUB
    buffer_store_dwordx4 {vr(PUB[0],4)}, v6, s[12:15], s29 offen sc1
    buffer_store_dwordx4 {vr(PUB[0]+4,4)}, v6, s[12:15], s29 offen offset:16 sc1
    buffer_store_dwordx4 {vr(PUB[1],4)}, v6, s[12:15], s29 offen offset:2048 sc1
    buffer_store_dwordx4 {vr(PUB[1]+4,4)}, v6, s[12:15], s29 offen offset:2064 sc1
FK_NOPUB:
    """)
    dbg(7)
    a(f"""
    s_lshl_b32 s26, s70, 3
    s_add_u32 s26, s26, {WS_OFF}
    s_lshl_b32 s30, s3, 10
    s_add_u32 m0, s30, {L_STG+8192}
    global_load_dwordx4 {vr(WBR,4)}, v23, s[78:79]
    global_load_lds_dwordx4 v23, s[84:85]
    s_add_u32 m0, s30, {L_STG+16384}
    s_lshl_b32 s31, s3, 11
    global_load_lds_dwordx4 v23, s[76:77]
    s_add_u32 m0, s30, {L_STG+24576}
    s_nop 0
    global_load_lds_dwordx4 v23, s[82:83]
    s_add_u32 m0, s31, {L_EA}
    s_nop 0
    buffer_load_dwordx4 v20, s[4:7], 0 offen lds
    s_add_u32 m0, s31, {L_EA+1024}
    s_nop 0
    buffer_load_dwordx4 v21, s[4:7], 0 offen lds
    s_mov_b32 exec_hi, 0
    global_load_dwordx4 v[12:15], v5, s[80:81]
    s_mov_b32 exec_hi, -1
    """)
    a(f"""
    s_sub_u32 s96, s68, 3072
    s_subb_u32 s97, s69, 0
    s_and_b32 s97, s97, 0xffff
    s_mov_b32 s98, {N*128+3072}
    s_mov_b32 s99, 0x20000
    v_lshrrev_b32 v42, 3, v1
    v_and_b32 v43, 7, v1
    v_lshrrev_b32 v41, 2, v42
    v_xor_b32 v43, v43, v41
    v_lshlrev_b32 v43, 4, v43
    s_mov_b32 s8, s86
    s_and_b32 s9, s87, 0xffff
    s_mov_b32 s10, {N*128}
    s_mov_b32 s11, 0x20000
    s_mov_b32 s16, 0
    s_mov_b32 s17, 0xffff
    s_mov_b32 s18, 0
    v_add_u32 v{SWZ}, 3072, v43
    v_xor_b32 v{SWZ+1}, 32, v43
    v_add_u32 v{SWZ+1}, 2048, v{SWZ+1}
    v_xor_b32 v{SWZ+2}, 64, v43
    v_add_u32 v{SWZ+2}, 1024, v{SWZ+2}
    v_xor_b32 v{SWZ+3}, 96, v43
    v_and_b32 v{S_R1}, 1, v42
    v_lshrrev_b32 v{S_C1}, 1, v42
    v_lshlrev_b32 v{S_C1}, 4, v{S_C1}
    v_add_u32 v{S_C1}, {L_SF}, v{S_C1}
    v_and_b32 v2, 31, v1
    v_lshrrev_b32 v3, 5, v1
    v_lshlrev_b32 v{L4N}, 2, v2
    v_and_b32 v4, 3, v2
    v_lshrrev_b32 v40, 2, v2
    v_lshlrev_b32 v6, 10, v4
    v_lshl_add_u32 v6, v40, 7, v6
    v_lshrrev_b32 v7, 2, v40
    v_lshl_or_b32 v7, v4, 1, v7
    v_xor_b32 v7, v7, v3
    v_lshl_add_u32 v6, v7, 4, v6
    s_lshl_b32 s24, s3, 12
    s_add_u32 s24, s24, {L_STG}
    v_add_u32 v{AAD}, s24, v6
    v_xor_b32 v7, 32, v6
    v_add_u32 v{AAD+1}, s24, v7
    v_xor_b32 v7, 64, v6
    v_add_u32 v{AAD+2}, s24, v7
    v_xor_b32 v7, 96, v6
    v_add_u32 v{AAD+3}, s24, v7
    v_and_b32 v{S_HS}, 1, v40
    v_lshrrev_b32 v8, 1, v40
    v_lshl_add_u32 v9, v8, 2, v4
    v_lshlrev_b32 v{AEI}, 6, v3
    v_sub_u32 v{AEI}, 128, v{AEI}
    v_lshrrev_b32 v{S_SC}, 2, v{AEI}
    v_lshrrev_b32 v10, 4, v{AEI}
    v_mul_u32_u24 v11, {L_SF-L_EA}, v3
    v_mad_u32_u24 v{S_C0}, v9, v10, v11
    v_add_u32 v{S_C0}, {L_EA}, v{S_C0}
    v_cmp_eq_u32 s[36:37], v{S_HS}, v3
    v_mov_b32 v9, 7
    v_mov_b32 v10, 0x3f80
    v_cndmask_b32_e64 v8, v9, v8, s[36:37]
    """)
    for j in range(4):
        a(f"""
        v_cmp_eq_u32 s[{32+2*(j&1)}:{33+2*(j&1)}], {j}, v8
        {'v_mul_u32_u24 v%d, 12, v1'%S_L12 if j==0 else 'v_mov_b32 v%d, %d'%(S_FA,L_FLAG) if j==1 else 's_nop 0'}
        s_nop 0
        v_cndmask_b32_e64 v{AOH[0]+j}, 0, v10, s[{32+2*(j&1)}:{33+2*(j&1)}]
        v_lshlrev_b32 v{AOH[1]+j}, 16, v{AOH[0]+j}
        """)
    a(f"""
    s_lshl_b32 s31, s3, 5
    v_add_u32 v4, s31, v2
    v_mul_u32_u24 v{S_CB}, {CH_BYTES}, v4
    v_add_u32 v{S_CB}, {WS_REC}, v{S_CB}
    v_lshlrev_b32 v{S_PO}, 12, v4
    v_lshl_add_u32 v{S_PO}, v3, 11, v{S_PO}
    """)
    a(f"""
    s_waitcnt vmcnt(0)
    """)
    scale8(WBR, SC)
    a(f"""
    v_add_u32 v7, {L_STG}, v23
    ds_write_b128 v7, {vr(WBR,4)}
    s_cmp_lg_u32 s3, 7
    s_cbranch_scc1 FK_N7B
    """)
    scale8(12, SC)
    a(f"""
    v_add_u32 v7, {L_WCL}, v5
    s_mov_b32 exec_hi, 0
    ds_write_b128 v7, v[12:15]
    s_mov_b32 exec_hi, -1
FK_N7B:
    v_and_b32 v8, 15, v1
    v_lshrrev_b32 v9, 2, v8
    v_lshlrev_b32 v9, 7, v9
    v_and_b32 v8, 3, v8
    v_lshl_add_u32 v9, v8, 3, v9
    v_lshl_add_u32 v9, v3, 10, v9
    v_and_b32 v8, 16, v1
    v_lshl_add_u32 v9, v8, 1, v9
    v_add_u32 v20, {L_STG}, v9
    s_lshr_b32 s28, s3, 2
    s_and_b32 s27, s3, 3               ; nt
    s_lshl_b32 s30, s28, 13
    v_add_u32 v21, s30, v20
    v_add_u32 v22, {L_WCL}, v9
    s_lshl_b32 s30, s27, 12
    s_sub_u32 s30, s30, s24
    s_add_u32 s30, s30, {L_EA}
    """)
    for s in range(4): a(f"v_add_u32 v{8+s}, s30, v{AAD+s}")
    a("s_waitcnt lgkmcnt(0)\ns_barrier")
    for s in range(4): a(f"ds_read_b128 {vr(A[0]+4*s,4)}, v{8+s}")
    for cb in range(2):
        for s in range(4):
            for hh in range(2):
                a(f"ds_read_b64_tr_b16 {vr(WAU+(cb*4+s)*4+2*hh,2)}, v21 offset:{16384+s*2048+cb*64+hh*512}")
    a(f"""
    s_waitcnt lgkmcnt(8)
    """)
    for cb in range(2):
        if cb: a("s_waitcnt lgkmcnt(0)")
        for s in range(4):
            a(f"v_mfma_f32_32x32x16_bf16 {vr(XAC+16*cb,16)}, {vr(A[0]+4*s,4)}, {vr(WAU+16*cb+4*s,4)}, {'0' if s==0 else vr(XAC+16*cb,16)}")
    a(f"""
    buffer_load_dwordx2 v[38:39], v{S_PO}, s[12:15], s26 offen sc1
    """)
    for m in range(2):
        for s in range(4):
            for cb in range(2):
                for hh in range(2):
                    a(f"ds_read_b64_tr_b16 {vr(WB+m*32+(s*2+cb)*4+2*hh,2)}, v20 offset:{m*8192+s*2048+cb*64+hh*512}")
    a(f"""
    ds_read_b64_tr_b16 {vr(WC[0],2)}, v22
    ds_read_b64_tr_b16 {vr(WC[1],2)}, v22 offset:64
    s_cmp_lg_u32 s28, 0
    s_cbranch_scc1 FK_XU
    v_mul_u32_u24 v7, {4*ROWB}, v3
    v_add_u32 v7, v{L4N}, v7
    s_mul_i32 s31, s27, {32*ROWB}
    s_add_u32 s31, s31, 512
    v_add_u32 v7, s31, v7
    """)
    for i in range(32): a(f"v_mul_f32 v{XAC+i}, {NLOG2E}, v{XAC+i}")
    for i in range(16): a(f"v_cvt_pk_bf16_f32 v{XAC+i}, v{XAC+i}, v{XAC+16+i}")
    a("s_cmp_eq_u32 s27, 3\ns_cbranch_scc1 FK_XA3")
    for i in range(16): a(f"ds_write_b32 v7, v{XAC+i} offset:{((i>>2)*8+(i&3))*ROWB}")
    a(f"""
    s_branch FK_XA4
FK_XA3:
    s_mov_b32 exec_hi, 0
    ds_write_b32 v7, v{XAC} offset:0
    ds_write_b32 v7, v{XAC+1} offset:{ROWB}
    s_mov_b64 exec, -1
    s_branch FK_XA4
FK_XU:
    v_lshl_add_u32 v8, v3, 9, v{L4N}
    s_lshl_b32 s31, s2, 14
    s_lshl_b32 s30, s27, 12
    s_add_u32 s31, s31, s30
    s_add_u32 s31, s31, {WS_XU}
    """)
    for i in range(16): a(f"v_cvt_pk_bf16_f32 v{XAC+i}, v{XAC+i}, v{XAC+16+i}")
    for i in range(16):
        if i==2: a("s_cmp_eq_u32 s27, 3\ns_cbranch_scc1 FK_XA4")
        a(f"buffer_store_dword v{XAC+i}, v8, s[12:15], s31 offen offset:{((i>>2)*8+(i&3))*128}")
    a(f"""
FK_XA4:
    s_waitcnt lgkmcnt(0)
    s_mov_b32 exec_lo, 0
    v_mov_b32 v{WC[0]}, {BIG16<<16}
    v_mov_b32 v{WC[0]+1}, 0
    v_mov_b32 v{WC[1]}, {BIG16<<16}
    v_mov_b32 v{WC[1]+1}, 0
    s_mov_b32 exec_lo, -1
FK_XAD:
    s_lshl_b32 s29, s3, 8
    s_add_u32 s29, s29, {L_ADJ}
    s_lshl_b32 s30, s3, 6
    s_add_u32 s30, s30, {L_BM}
    s_mov_b32 s31, 400000
    s_mov_b64 s[64:65], -1
    """)
    stamp()
    a(f"""
FK_POLL:
    s_waitcnt vmcnt(0)
    v_and_b32 v8, 0xff000000, v38
    v_cmp_eq_u32 s[34:35], s93, v39
    v_cmp_eq_u32 s[36:37], s92, v8
    s_nand_b64 s[34:35], s[34:35], s[36:37]
    s_cbranch_scc0 FK_GOT
    """)
    if opts.get("pfn",0):
        a(f"""
        s_andn2_b64 s[36:37], s[64:65], s[34:35]
        s_cbranch_scc0 FK_NOPF
        s_mov_b64 s[64:65], s[34:35]
        s_mov_b64 exec, s[36:37]
        v_and_b32 v9, 0xfff, v38
        v_bfe_u32 v10, v38, 12, 12
        v_mad_u32_u24 v9, v9, 12, v{S_CB}
        v_mad_u32_u24 v10, v10, 12, v9
        buffer_load_dword v11, v9, s[12:15], 0 offen sc1
        {'buffer_load_dword v14, v10, s[12:15], 0 offen sc1' if opts['pfn']>1 else ''}
FK_NOPF:
        """)
    a(f"""
    s_sub_u32 s31, s31, 1
    s_cbranch_scc1 FK_GOT
    s_sleep {opts.get('sleep',4)}
    s_mov_b64 exec, s[34:35]
    buffer_load_dwordx2 v[38:39], v{S_PO}, s[12:15], s26 offen sc1
    s_mov_b64 exec, -1
    s_branch FK_POLL
FK_GOT:
    s_mov_b64 exec, -1
    """)
    dbg(6)
    stamp()
    a(f"""
    v_bfe_u32 v8, v38, 12, 12
    v_and_b32 v9, 0xfff, v38
    v_mov_b32 v{T+6}, v8
    v_min_u32 v8, s17, v8
    v_subrev_u32 v8, s16, v8
    v_max_i32 v8, 0, v8
    v_mov_b32 v10, v8
    v_add_u32 v9, s16, v9
    """)
    dpp_scan(a, 10)
    B0=T+8
    a(f"""
    v_cmp_lt_u32 s[34:35], 0, v8
    v_sub_u32 v11, v10, v8
    v_readlane_b32 s20, v10, 63
    v_sub_u32 v9, v9, v11
    v_mul_i32_i24 v9, 12, v9
    v_add_u32 v9, v9, v{S_CB}
    v_mbcnt_lo_u32_b32 v12, s34, 0
    v_mbcnt_hi_u32_b32 v12, s35, v12
    v_lshl_add_u32 v12, v12, 2, s29
    v_add_u32 v13, -1, v11
    v_lshrrev_b32 v14, 5, v13
    v_min_u32 v14, 15, v14
    v_lshl_add_u32 v14, v14, 2, s30
    v_lshlrev_b32 v13, v13, 1
    v_cmp_lt_u32 s[36:37], 0, v11
    v_mov_b32 v{T+5}, s30
    s_mov_b64 exec, s[34:35]
    ds_write_b32 v12, v9
    s_and_b64 exec, s[34:35], s[36:37]
    ds_or_b32 v14, v13
    s_mov_b64 exec, -1
    ds_read_b128 {vr(B0,4)}, v{T+5}
    ds_read_b128 {vr(B0+4,4)}, v{T+5} offset:16
    ds_read_b128 {vr(B0+8,4)}, v{T+5} offset:32
    ds_read_b128 {vr(B0+12,4)}, v{T+5} offset:48
    s_lshr_b32 s31, s29, 2
    v_mov_b32 v15, s31
    """)
    for p in range(NPASS):
        a(f"""
        s_sub_i32 s31, s20, {64*p}
        v_cmp_gt_i32 {msk(p)}, s31, v1
        """)
    for p in range(NPASS):
        if p%2==0: a(f"s_waitcnt lgkmcnt({3-p//2+p})")
        lo=B0+2*p; hi=lo+1
        a(f"""
        v_mbcnt_lo_u32_b32 v{HA+p}, v{lo}, v15
        v_mbcnt_hi_u32_b32 v{HA+p}, v{hi}, v{HA+p}
        {'v_bcnt_u32_b32 v15, v%d, v15'%lo if p<NPASS-1 else ''}
        v_lshlrev_b32 v{HA+p}, 2, v{HA+p}
        {'v_bcnt_u32_b32 v15, v%d, v15'%hi if p<NPASS-1 else ''}
        ds_read_b32 v{HA+p}, v{HA+p}
        """)
    for p in range(NPASS):
        a(f"""
        s_waitcnt lgkmcnt({NPASS-1-p})
        v_add_u32 v{HA+p}, v{HA+p}, v{S_L12}
        {'s_mov_b32 s31, %d'%(768*p) if p>5 else ''}
        s_mov_b64 exec, {msk(p)}
        buffer_load_dwordx3 {vr(rec(p),3)}, v{HA+p}, s[12:15], {'s31 offen' if p>5 else '0 offen offset:%d'%(768*p)} {opts.get('ldf','sc1')}
        {'s_mov_b64 exec, -1' if p>=4 else ''}
        """)
    a(f"""
    s_cmp_gt_u32 s20, {64*NPASS}
    s_cselect_b32 s71, 0x10000, 0
    s_or_b32 s31, s71, s18
    s_cbranch_scc0 FK_NOMAX
    v_or_b32 v{T+6}, s71, v{T+6}
    ds_max_u32 v{S_FA}, v{T+6}
FK_NOMAX:
    v_lshl_add_u32 v8, v2, 2, s29
    v_mov_b32 v9, 0
    ds_write_b32 v8, v9
    s_mov_b32 s62, s29
    v_mov_b32 v{T+7}, 1
    v_add_u32 v{T+17}, {L_HIST}, v{S_L8}
    s_mov_b32 s31, {L_HIST}
    s_mov_b32 m0, s24
    """)
    stamp()
    for p in range(NPASS):
        q=rec(p)
        a(f"""
        s_waitcnt vmcnt({NPASS-1-p})
        s_mov_b64 exec, {msk(p)}
        {'s_cbranch_execz FK_HD' if p>=5 else ''}
        v_bfe_u32 v{HA+p}, v{q+2}, 16, 7
        v_lshl_add_u32 v{HA+p}, v{HA+p}, 2, s31
        ds_add_rtn_u32 v{q+3}, v{HA+p}, v{T+7}
        """)
    a(f"""
FK_HD:
    s_mov_b64 exec, -1
    s_waitcnt vmcnt(0)
    """)
    xpf(a,opts.get("xpf1",0),opts.get("xpf2",0),168)
    a("s_waitcnt lgkmcnt(0)")
    stamp()
    a("s_barrier")
    a(f"""
    ds_read_b64 v[{T+20}:{T+21}], v{T+17}
    ds_read_b32 v{T+19}, v{S_FA}
    s_waitcnt lgkmcnt(0)
    v_add_u32 v{T+2}, 3, v{T+20}
    v_add_u32 v{T+3}, 3, v{T+21}
    v_and_b32 v{T+2}, 0xfffffffc, v{T+2}
    v_and_b32 v{T+3}, 0xfffffffc, v{T+3}
    v_add_u32 v{T+3}, v{T+2}, v{T+3}
    v_mov_b32 v{T+4}, v{T+3}
    v_readfirstlane_b32 s19, v{T+19}
    """)
    dpp_scan(a, T+4)
    a(f"""
    v_sub_u32 v{T+22}, v{T+4}, v{T+3}
    v_add_u32 v{T+23}, v{T+22}, v{T+2}
    v_readlane_b32 s20, v{T+4}, 63     ; 4Q
    ds_write_b64 v{T+17}, v[{T+22}:{T+23}] offset:{L_SB-L_HIST}
    s_cmp_lg_u32 s18, 0
    s_cbranch_scc1 FK_OK
    s_cmp_ge_u32 s19, 0x10000
    s_cbranch_scc1 FK_GOSLOW
    s_cmp_le_u32 s20, {CAP}
    s_cbranch_scc1 FK_OK
FK_GOSLOW:
    s_mov_b32 s18, 1
    s_mov_b32 s17, {SLOWR}
    s_branch FK_REBATCH
FK_OK:
    """)
    for p in range(NPASS):
        a(f"""
        s_mov_b64 exec, {msk(p)}
        {'s_cbranch_execz FK_RD' if p>=5 else ''}
        ds_read_b32 v{HA+p}, v{HA+p} offset:{L_SB-L_HIST}
        """)
    a(f"""
FK_RD:
    s_mov_b64 exec, -1
    s_and_b32 s19, s19, 0xffff
    s_add_u32 s26, s20, 31
    s_lshr_b32 s26, s26, 5             ; TT
    s_lshl_b32 s29, s26, 5             ; 32TT
    s_lshr_b32 s27, s26, 3             ; NT0
    s_and_b32 s26, s26, 7              ; rem
    s_mul_i32 s22, s3, s27
    s_min_u32 s28, s3, s26
    s_add_u32 s22, s22, s28
    s_lshl_b32 s22, s22, 3             ; qs0
    s_cmp_lt_u32 s3, s26
    s_cselect_b32 s28, 1, 0
    s_add_u32 s21, s27, s28            ; NT
    s_lshl_b32 s28, s21, 2             ; 4NT
    s_add_u32 s23, s22, s28            ; qs1
    s_cmp_eq_u32 s3, 1
    s_cbranch_scc1 FK_JOBD
    s_bitcmp1_b32 s3, 0
    s_cselect_b64 s[34:35], -1, 0
    v_cndmask_b32_e64 v4, v{T+20}, v{T+21}, s[34:35]
    v_cndmask_b32_e64 v5, v{T+22}, v{T+23}, s[34:35]
    s_lshr_b32 s27, s3, 1
    v_mov_b32 v8, 0
    v_mov_b32 v9, 0
    v_mov_b32 v10, {FLAG16<<16}
    s_cmp_lg_u32 s27, 0
    s_cbranch_scc1 FK_PADJOB
    v_add_u32 v5, s20, v1
    v_cmp_ge_u32 vcc, s29, v5
    s_branch FK_PADW
FK_PADJOB:
    v_sub_u32 v6, 0, v4
    v_and_b32 v6, 3, v6
    v_add3_u32 v5, v5, v4, s27
    v_add_u32 v5, -1, v5
    v_cmp_le_u32 vcc, s27, v6
FK_PADW:
    v_lshlrev_b32 v6, 3, v5
    v_add_u32 v6, {L_EA}, v6
    v_lshlrev_b32 v7, 2, v5
    v_add_u32 v7, {L_SF}, v7
    s_mov_b64 exec, vcc
    ds_write_b64 v6, v[8:9]
    ds_write_b32 v7, v10
    s_mov_b64 exec, -1
    s_waitcnt lgkmcnt(2)
    s_branch FK_JOBE
FK_JOBD:
    s_waitcnt lgkmcnt(0)
FK_JOBE:
    s_mov_b32 s30, {L_EA}
    s_mov_b32 s31, {L_SF}
    """)
    for p in range(NPASS):
        q=rec(p); h=HA+p
        a(f"""
        s_mov_b64 exec, {msk(p)}
        {'s_cbranch_execz FK_SD' if p>=5 else ''}
        v_add_u32 v{h}, v{h}, v{q+3}
        v_lshl_add_u32 v{q+3}, v{h}, 3, s30
        ds_write_b64 v{q+3}, v[{q}:{q+1}]
        v_lshl_add_u32 v{h}, v{h}, 2, s31
        v_and_b32 v{q+2}, 0xffff, v{q+2}
        ds_write_b32 v{h}, v{q+2}
        """)
    a(f"""
FK_SD:
    s_mov_b64 exec, -1
    v_mul_u32_u24 v4, s28, v{S_R1}
    v_add_u32 v4, s22, v4
    v_lshl_add_u32 v{SRA}, v4, 4, v{S_C1}
    v_mul_u32_u24 v4, s28, v{S_HS}
    v_add_u32 v4, s22, v4
    v_mad_u32_u24 v{AEA}, v4, v{S_SC}, v{S_C0}
    s_lshl_b32 s30, s21, 3
    v_lshrrev_b32 v4, 2, v{T+22}
    v_lshrrev_b32 v5, 2, v{T+23}
    v_subrev_u32 v4, s22, v4
    v_subrev_u32 v5, s22, v5
    v_cmp_gt_u32 s[34:35], s30, v4
    v_cmp_gt_u32 s[36:37], s30, v5
    v_cmp_lt_u32 s[38:39], 0, v{T+20}
    v_cmp_lt_u32 s[58:59], 0, v{T+21}
    v_add_u32 v4, s62, v4
    v_add_u32 v5, s62, v5
    v_lshl_add_u32 v6, v1, 1, 1
    v_lshl_add_u32 v7, v1, 1, 2
    s_and_b64 exec, s[34:35], s[38:39]
    ds_write_b8 v4, v6
    s_and_b64 exec, s[36:37], s[58:59]
    ds_write_b8 v5, v7
    s_mov_b64 exec, -1
    s_waitcnt lgkmcnt(0)
    """)
    stamp()
    a(f"""
    s_barrier
    s_cmp_eq_u32 s21, 0
    s_cbranch_scc1 FK_LOOPDONE
    ds_read_b128 {vr(SFV,4)}, v{SRA}
    ds_read2_b32 {vr(AE,2)}, v{AEA} offset0:0 offset1:1
    v_mul_u32_u24 v4, s28, v3
    v_add_u32 v4, s22, v4                ; qs[h]
    v_lshl_add_u32 v{T+16}, v2, 1, v4    ; u_a
    s_sub_u32 s30, s62, s22
    v_add_u32 v{T+17}, s30, v{T+16}
    ds_read_u16 v5, v{T+17}
    {INC_SR}
    {INC_AE}
    s_waitcnt lgkmcnt(2)
    """)
    for s in dv_calc()+dma(): a(s)
    a(f"""
    s_lshl_b32 s30, s22, 2
    s_lshl_b32 s31, s23, 2
    v_cmp_ge_u32 s[34:35], s30, v{T+22}
    v_cmp_ge_u32 s[36:37], s30, v{T+23}
    v_cmp_ge_u32 s[38:39], s31, v{T+22}
    v_cmp_ge_u32 s[58:59], s31, v{T+23}
    ds_read_b128 {vr(SFV,4)}, v{SRA}
    {INC_SR}
    v_lshlrev_b32 v{QIA}, 2, v4
    v_add_u32 v{QIA}, {L_QI}, v{QIA}
    s_bcnt1_i32_b64 s30, s[34:35]
    s_bcnt1_i32_b64 s31, s[36:37]
    s_add_u32 s56, s30, s31
    s_bcnt1_i32_b64 s30, s[38:39]
    s_bcnt1_i32_b64 s31, s[58:59]
    s_add_u32 s57, s30, s31
    v_mov_b32 v{T+18}, s56
    s_mov_b32 exec_lo, 0
    v_mov_b32 v{T+18}, s57
    s_mov_b32 exec_lo, -1
    s_lshr_b32 s20, s20, 2               ; Q
    s_mov_b32 s64, {512-ROWB}
    s_lshl_b32 s26, s3, 1
    s_add_u32 s26, s26, {R_PART}
    v_add_u32 v10, s26, v3
    v_lshlrev_b32 v11, 1, v2
    v_cmp_gt_u32 s[38:39], s28, v11
    s_waitcnt lgkmcnt(1)
    s_nop 0
    v_cndmask_b32_e64 v4, 0, v5, s[38:39]
    v_and_b32 v5, 0xff, v4
    v_lshrrev_b32 v6, 8, v4
    v_max_u32 v7, v5, v6
    v_readlane_b32 s30, v5, 0
    v_readlane_b32 s31, v5, 32
    """)
    dpp_scan(a, 7, op="v_max_u32", full=False)
    a(f"""
    v_mov_b32 v8, 0
    s_cmp_eq_u32 s30, 0
    s_cselect_b32 s34, -1, 0
    s_cmp_lt_u32 s22, s20
    s_cselect_b32 s34, s34, 0
    v_mov_b32_dpp v8, v7 wave_shr:1 row_mask:0xf bank_mask:0xf
    s_cmp_eq_u32 s31, 0
    s_cselect_b32 s35, -1, 0
    s_cmp_lt_u32 s23, s20
    s_cselect_b32 s35, s35, 0
    v_max3_u32 v8, v8, v5, v{T+18}
    v_max_u32 v7, v7, v{T+18}
    v_add_u32 v12, 1, v10
    v_cmp_eq_u32 s[36:37], v8, v{T+18}
    v_cmp_eq_u32 s[58:59], v7, v{T+18}
    s_and_b64 s[36:37], s[36:37], s[34:35]
    s_and_b64 s[58:59], s[58:59], s[34:35]
    v_cndmask_b32_e64 v8, v8, v12, s[36:37]
    v_cndmask_b32_e64 v7, v7, v12, s[58:59]
    v_add_u32 v13, 1, v{T+16}
    v_mov_b32 v12, {R_ZERO+1}
    v_cmp_gt_u32 s[36:37], s20, v{T+16}
    v_cmp_gt_u32 s[66:67], s20, v13
    v_cmp_eq_u32 s[58:59], 0, v5
    v_cmp_eq_u32 s[60:61], 0, v6
    v_cmp_lt_u32 s[62:63], 0, v2
    v_cndmask_b32_e64 v8, v12, v8, s[36:37]
    v_cndmask_b32_e64 v7, v12, v7, s[66:67]
    s_and_b64 s[58:59], s[58:59], s[36:37]
    s_and_b64 s[58:59], s[58:59], s[62:63]
    s_and_b64 s[60:61], s[60:61], s[66:67]
    v_mul_u32_u24 v{T}, {ROWB}, v8
    v_mul_u32_u24 v{T+1}, {ROWB}, v7
    v_add_u32 v{T}, {-ROWB}, v{T}
    v_add_u32 v{T+1}, {-ROWB}, v{T+1}
    v_cndmask_b32_e64 v{T+2}, 0, 1.0, s[58:59]
    v_cndmask_b32_e64 v{T+3}, 0, 1.0, s[60:61]
    v_lshlrev_b32 v13, 2, v{T+16}
    v_add_u32 v13, {L_QI}, v13
    s_mov_b64 exec, s[38:39]
    ds_write_b64 v13, v[{T}:{T+1}]
    ds_write_b64 v13, v[{T+2}:{T+3}] offset:{QKOFF}
    s_and_b64 exec, s[34:35], s[34:35]
    s_cbranch_execz FK_NOCONT
    v_mul_u32_u24 v14, {ROWB}, v{T+18}
    v_add3_u32 v14, v14, v{L4N}, s64
    ds_read_b32 v15, v14
    v_mul_u32_u24 v14, {ROWB}, v10
    v_add_u32 v14, v14, v{L4N}
    v_lshlrev_b32 v13, 2, v{T+18}
    v_add_u32 v13, {L_PMAX-4}, v13
    s_waitcnt lgkmcnt(0)
    ds_write_b32 v14, v15 offset:512
    s_and_b32 exec_lo, exec_lo, 1
    s_and_b32 exec_hi, exec_hi, 1
    ds_max_u32 v13, v10
    ds_min_u32 v13, v10 offset:{L_PMIN-L_PMAX}
FK_NOCONT:
    s_mov_b64 exec, -1
    """)
    for s in xaf_read(0)+kp_read(0,0): a(s)
    a(f"""
    s_nand_b32 s30, s60, s61
    s_nand_b32 s31, s58, s59
    s_lshr_b32 s31, s31, 1
    s_bitreplicate_b64_b32 s[44:45], s30
    s_bitreplicate_b64_b32 s[46:47], s31
    s_mov_b32 s30, 0x55555555
    s_mov_b32 s31, 0x55555555
    s_and_b64 s[44:45], s[44:45], s[30:31]
    s_andn2_b64 s[46:47], s[46:47], s[30:31]
    s_or_b64 s[44:45], s[44:45], s[46:47]
    s_sub_u32 s30, s28, 1
    s_bitset1_b64 s[44:45], s30
    """)
    for r in (ACD[0]+3,ACD[1]+3,ACN[0]+3,ACN[1]+3): a(f"v_mov_b32 v{r}, 0")
    a("s_waitcnt lgkmcnt(0)")
    for s in xaf_adds()+bx_reads()+["s_waitcnt vmcnt(0)"]+a_reads(0)+dv_calc(): a(s)
    a("s_waitcnt lgkmcnt(0)")
    a("s_cmp_lt_u32 s21, 2\ns_cbranch_scc1 FK_SKD0")
    for s in dma(): a(s)
    a("FK_SKD0:")
    for s in xaf_read(1)+g_mfmas(0,0)+src_read()+[INC_SR]+g_mfmas(1,0): a(s)
    a("s_waitcnt lgkmcnt(0)")
    for s in xaf_adds()+ae_read()+bx_reads()+dv_calc(): a(s)
    for i in range(16): a(f"v_exp_f32 v{EE[0]+i}, v{GA[0]+i}")
    a("s_waitcnt vmcnt(0)")
    for s in a_reads(1): a(s)
    for i in range(16): a(f"v_add_f32 v{EE[0]+i}, 1.0, v{EE[0]+i}")
    a("s_waitcnt lgkmcnt(0)")
    a("s_cmp_lt_u32 s21, 3\ns_cbranch_scc1 FK_SKD1")
    for s in dma(): a(s)
    a("FK_SKD1:")
    for s in src_read(): a(s)
    stamp(); rstamp(59); dbg(3)
    a("s_sub_u32 s25, s21, 1")
    a("FK_LOOP:")
    for par in range(2):
        a(f"s_cmp_eq_u32 s25, 0\ns_cbranch_scc1 FK_LAST{par}")
        tile(a,0,par,False)
        a("s_sub_u32 s25, s25, 1")
    a("s_branch FK_LOOP")
    for x in lp4.STUBS: a(x)
    lp4.STUBS.clear()
    for par in range(2):
        a(f"FK_LAST{par}:")
        tile(a,0,par,True)
        a("s_branch FK_LOOPDONE")
    for x in lp4.STUBS: a(x)
    a(f"""
FK_LOOPDONE:
    s_setprio 0
    """)
    rstamp(60); stamp(); dbg(4)
    XR=128; X=[136,140]; B=[144,176]; M=[4,10]
    a(f"""
    v_and_b32 v23, 7, v0
    v_lshrrev_b32 v20, 3, v0
    v_lshlrev_b32 v20, 7, v20
    v_lshl_add_u32 v20, v23, 3, v20
    s_mul_i32 s26, s70, {NB*128}
    v_add_u32 v20, s26, v20
    v_add_u32 v21, 8192, v20
    v_lshlrev_b32 v22, 4, v0
    s_lshl_b32 s27, s2, 14
    s_add_u32 s27, s27, {WS_XU}
    s_add_u32 s28, s27, 8192
    v_cmp_gt_u32 vcc, {NB*8-512}, v0
    s_mov_b64 s[34:35], vcc
    buffer_load_dwordx2 v[{XR}:{XR+1}], v20, s[4:7], 0 offen
    buffer_load_dwordx2 v[{XR+2}:{XR+3}], v20, s[4:7], 0 offen offset:64
    buffer_load_dwordx4 {vr(X[0],4)}, v22, s[12:15], s27 offen
    s_mov_b64 exec, s[34:35]
    buffer_load_dwordx2 v[{XR+4}:{XR+5}], v21, s[4:7], 0 offen
    buffer_load_dwordx2 v[{XR+6}:{XR+7}], v21, s[4:7], 0 offen offset:64
    buffer_load_dwordx4 {vr(X[1],4)}, v22, s[12:15], s28 offen
    s_mov_b64 exec, -1
    v_lshlrev_b32 v23, 4, v23
    """)
    for it in range(2):
        m=M[it]
        a(f"""
        v_lshrrev_b32 v{m}, 3, v0
        {'v_add_u32 v%d, 64, v%d'%(m,m) if it else ''}
        v_lshlrev_b32 v{m+1}, 2, v{m}
        v_add_u32 v{m+1}, {L_HIST}, v{m+1}
        ds_read_b32 v{m+5}, v{m+1}
        """)
    a(f"v_mov_b32 v37, {R_ZERO}\ns_waitcnt lgkmcnt(0)")
    for it in range(2):
        m=M[it]
        a(f"""
        v_cmp_eq_u32 s[36:37], 0, v{m+5}
        s_nop 1
        v_cndmask_b32_e64 v{m}, v{m}, v37, s[36:37]
        v_mul_u32_u24 v{m}, {ROWB}, v{m}
        v_add_u32 v{m}, v{m}, v23
        """)
    a("s_barrier")
    stamp()
    for it in range(2):
        m=M[it]; b=B[it]
        if it==1: a("s_mov_b64 exec, s[34:35]")
        a(f"""
        ds_read_b32 v{m+2}, v{m+1} offset:{L_PMAX-L_HIST}
        ds_read_b32 v{m+3}, v{m+1} offset:{L_PMIN-L_HIST}
        """)
    for it in range(2):
        m=M[it]; b=B[it]
        a("s_mov_b64 exec, s[34:35]" if it else "s_mov_b64 exec, -1")
        a(f"""
        ds_read_b128 {vr(b,4)}, v{m}
        ds_read_b128 {vr(b+4,4)}, v{m} offset:128
        ds_read_b128 {vr(b+8,4)}, v{m} offset:256
        ds_read_b128 {vr(b+12,4)}, v{m} offset:384
        """)
    a("s_waitcnt lgkmcnt(8)")
    for it in range(2):
        m=M[it]; b=B[it]; x=X[it]; xr=XR+4*it
        if it==1:
            a(f"""
            s_cmp_eq_u64 s[34:35], 0
            s_cbranch_scc1 FK_FIN
            s_mov_b64 exec, s[34:35]
            """)
        else: a("s_mov_b64 exec, -1")
        a(f"""
FK_PL{it}:
        v_cmp_le_u32 s[36:37], v{m+3}, v{m+2}
        s_nop 1
        v_cndmask_b32_e64 v{m+5}, v37, v{m+3}, s[36:37]
        v_mul_u32_u24 v{m+5}, {ROWB}, v{m+5}
        v_add_u32 v{m+5}, v{m+5}, v23
        ds_read_b128 {vr(b+16,4)}, v{m+5}
        ds_read_b128 {vr(b+20,4)}, v{m+5} offset:128
        ds_read_b128 {vr(b+24,4)}, v{m+5} offset:256
        ds_read_b128 {vr(b+28,4)}, v{m+5} offset:384
        v_add_u32 v{m+3}, 1, v{m+3}
        v_cmp_le_u32 vcc, v{m+3}, v{m+2}
        s_waitcnt lgkmcnt(0)
        """)
        for i in range(16): a(f"v_add_f32 v{b+i}, v{b+i}, v{b+16+i}")
        a(f"s_cbranch_vccnz FK_PL{it}")
        a(f"""
        s_cmp_eq_u32 s18, 0
        s_cbranch_scc1 FK_NOSLOW{it}
        s_mul_i32 s26, s2, {NB*512}
        s_add_u32 s26, s26, {WS_TOT+it*512*64}
        v_lshlrev_b32 v{m+5}, 6, v0
        s_cmp_eq_u32 s16, 0
        s_cbranch_scc1 FK_NOLD{it}
        """)
        for j in range(4): a(f"buffer_load_dwordx4 {vr(b+16+4*j,4)}, v{m+5}, s[12:15], s26 offen offset:{16*j} sc1")
        a("s_waitcnt vmcnt(0)")
        for i in range(16): a(f"v_add_f32 v{b+i}, v{b+i}, v{b+16+i}")
        a(f"FK_NOLD{it}:")
        for j in range(4): a(f"buffer_store_dwordx4 {vr(b+4*j,4)}, v{m+5}, s[12:15], s26 offen offset:{16*j} sc1")
        a(f"s_waitcnt vmcnt(0)\nFK_NOSLOW{it}:")
        for i in range(8): a(f"v_add_f32 v{b+i}, 0x358637bd, v{b+i}")
        for i in range(8): a(f"v_rcp_f32 v{b+i}, v{b+i}")
        a("s_waitcnt vmcnt(3)" if it==0 else "s_waitcnt vmcnt(2)")
        for i in range(4):
            a(f"v_lshlrev_b32 v{b+16+i}, 16, v{x+i}")
            a(f"v_and_b32 v{b+20+i}, 0xffff0000, v{x+i}")
        for i in range(8): a(f"v_fma_f32 v{b+i}, v{b+i}, v{b+8+i}, v{b+16+i}")
        for i in range(4):
            a(f"v_lshlrev_b32 v{b+8+2*i}, 16, v{xr+i}")
            a(f"v_and_b32 v{b+9+2*i}, 0xffff0000, v{xr+i}")
        for i in range(8): a(f"v_max_f32 v{b+i}, 0, v{b+i}")
        for i in range(8): a(f"v_add_f32 v{b+i}, v{b+i}, v{b+8+i}")
        for i in range(4): a(f"v_cvt_pk_bf16_f32 v{b+8+i}, v{b+2*i}, v{b+1+2*i}")
        a(f"buffer_store_dwordx2 {vr(b+8,2)}, v{20+it}, s[8:11], 0 offen")
        a(f"buffer_store_dwordx2 {vr(b+10,2)}, v{20+it}, s[8:11], 0 offen offset:64")
    a(f"""
FK_FIN:
    s_mov_b64 exec, -1
    """)
    if opts.get("dbg"): a("s_waitcnt vmcnt(0)")
    dbg(5)
    stamp()
    if STAMP:
        a("s_waitcnt vmcnt(0)")
        stamp(); rstamp(62)
        a(f"""
        v_writelane_b32 v{SV}, s21, 63
        s_lshl_b32 s26, s2, 3
        s_add_u32 s26, s26, s3
        s_lshl_b32 s26, s26, 8
        s_add_u32 s26, s26, {WS_STAMP}
        v_lshlrev_b32 v4, 2, v1
        buffer_store_dword v{SV}, v4, s[12:15], s26 offen
        """)
    a(f"""
    s_cmp_eq_u32 s18, 0
    s_cbranch_scc1 FK_END
    s_add_u32 s16, s16, {SLOWR}
    s_add_u32 s17, s17, {SLOWR}
    s_cmp_ge_u32 s16, s19
    s_cbranch_scc1 FK_END
FK_REBATCH:
    s_waitcnt vmcnt(0) lgkmcnt(0)
    s_barrier
    v_mov_b32 v4, 0
    v_mov_b32 v5, 0
    v_mov_b32 v6, 0
    v_mov_b32 v7, 0
    v_mov_b32 v8, 0x10000
    v_mov_b32 v9, 0x10000
    v_add_u32 v11, {L_PMIN}, v{S_L8}
    ds_write_b64 v11, v[8:9]
    s_lshl_b32 s30, s3, 6
    s_add_u32 s30, s30, {L_BM}
    v_lshl_add_u32 v11, v1, 2, s30
    v_lshlrev_b32 v10, 4, v0
    v_add_u32 v10, {L_Z}, v10
    v_cmp_gt_u32 vcc, {(L_ZEND-L_Z)//16}, v0
    s_mov_b64 exec, 0xffff
    ds_write_b32 v11, v4
    s_and_b64 exec, vcc, vcc
    ds_write_b128 v10, v[4:7]
    s_mov_b64 exec, -1
    s_lshl_b32 s26, s70, 3
    s_add_u32 s26, s26, {WS_OFF}
    buffer_load_dwordx2 v[38:39], v{S_PO}, s[12:15], s26 offen sc1
    s_waitcnt lgkmcnt(0)
    s_barrier
    s_branch FK_XAD
FK_END:
    s_endpgm
    """)
    a(kd(name, 256, 102))
    return f"; @launch grid=({NBUCK},1,1) block=(512,1,1) lds={L_END}"
```

```python
from asmlib import *
from consts import *
import lp4
from lp4 import *

S_HS=56; S_SC=57; S_C0=58; S_R1=59; S_C1=60; S_L12=61; S_L8=62; S_CB=63; S_PO=16; S_FA=17
SV=19
REC=128; HA=160; MASK=40
def rec(p): return REC+4*p
def msk(p): return sr(MASK+2*p,2)
D=[128,132]; S=[136,140]; EAr=[144,152]; BK=[160,164]; RK=[168,172]; T1=[176,180]
SC=184; WBR=200; WAU=148; XAC=224; PUB=[208,216]; CPO=[224,240]
TP=224
L1_HIST=[CH_BYTES,CH_BYTES+1024]; L1_BASE=[CH_BYTES+2048,CH_BYTES+3072]
SUBB=512*4*12
L_WCL=L_QI

def dpp_scan(a, v, op="v_add_u32", full=True):
    for sh in (1,2,4,8):
        a(f"s_nop 1\n{op}_dpp v{v}, v{v}, v{v} row_shr:{sh} row_mask:0xf bank_mask:0xf bound_ctrl:0")
    a(f"s_nop 1\n{op}_dpp v{v}, v{v}, v{v} row_bcast:15 row_mask:0xa bank_mask:0xf")
    if full: a(f"s_nop 1\n{op}_dpp v{v}, v{v}, v{v} row_bcast:31 row_mask:0xc bank_mask:0xf")

def xpf(a, first, n, dst):
    if n<=0: return
    a(f"""
    s_lshr_b32 s30, s2, 3
    s_mul_i32 s30, s30, 102400
    s_mul_i32 s31, s3, 12800
    s_add_u32 s30, s30, s31
    s_add_u32 s30, s30, {first*1024}
    v_lshlrev_b32 v{dst}, 4, v1
    """)
    for i in range(n):
        if i and i%4==0: a("s_add_u32 s30, s30, 4096")
        a(f"buffer_load_dwordx4 v[{dst+2}:{dst+5}], v{dst}, s[4:7], s30 offen offset:{(i%4)*1024}")

def gen_fk(a, opts):
    lp4.OPT.clear(); lp4.OPT.update(opts); lp4.WMODE=opts.get("wmode","stub"); lp4.STUBS.clear()
    name="gather_scatter__edge_featured_mpnn_gatedgcn__graph_kernel"
    a(khead(name))
    STAMP=opts.get("stamp",0)
    STF=opts.get("stf","sc1")
    LF=opts.get("lf","")
    LATE1=opts.get("late1",1)
    cnt=[0]
    def stamp():
        if not STAMP: return
        a(f"s_memtime s[100:101]\ns_waitcnt lgkmcnt(0)\nv_writelane_b32 v{SV}, s100, {cnt[0]}")
        cnt[0]+=1
    def dbg(slot):
        if not opts.get("dbg"): return
        lab=a.label("DBG")
        a(f"""
        s_lshr_b32 s100, s2, 1
        s_or_b32 s100, s100, s3
        s_cbranch_scc1 {lab}
        s_mul_i32 s101, s2, 28
        v_mov_b32 v18, s101
        s_memrealtime s[100:101]
        s_waitcnt lgkmcnt(0)
        v_mov_b32 v19, s100
        s_mov_b64 exec, 1
        global_store_dword v18, v19, s[88:89] offset:{slot*4}
        s_mov_b64 exec, -1
{lab}:
        """)
    def rstamp(i):
        if STAMP: a(f"s_memrealtime s[100:101]\ns_waitcnt lgkmcnt(0)\nv_writelane_b32 v{SV}, s100, {i}")
    T=TP
    NT=512
    a(f"""
    s_cmp_ge_u32 s2, {NBUCK}
    s_cbranch_scc1 FK_END
    s_load_dwordx16 s[68:83], s[0:1], 0
    s_load_dwordx8 s[84:91], s[0:1], 64
    s_memrealtime s[94:95]
    v_lshrrev_b32 v2, 6, v0
    v_and_b32 v1, 63, v0
    v_readfirstlane_b32 s3, v2
    s_mul_i32 s26, s2, {CH_QUADS}
    v_add_u32 v4, s26, v0              ; quad0
    v_lshlrev_b32 v5, 4, v4
    v_lshlrev_b32 v6, 5, v4
    v_add_u32 v7, {NT}, v4
    v_cmp_gt_u32 vcc, {E//4}, v4
    s_mov_b64 s[40:41], vcc
    v_cmp_gt_u32 vcc, {CH_QUADS-NT}, v0
    s_mov_b64 s[42:43], vcc
    v_cmp_gt_u32 vcc, {E//4}, v7
    s_and_b64 s[42:43], s[42:43], vcc
    v_add_u32 v8, {NT*16}, v5
    v_add_u32 v9, {NT*32}, v6
    v_lshlrev_b32 v23, 4, v0           ; tid*16
    v_mov_b32 v12, 0
    v_mov_b32 v13, 0
    v_mov_b32 v14, 0
    v_mov_b32 v15, 0
    v_lshlrev_b32 v{S_L8}, 3, v1
    s_cmp_lg_u32 s3, 7
    s_cbranch_scc1 FK_N7
    v_mov_b32 v10, 0x10000
    v_mov_b32 v11, 0x10000
    v_add_u32 v22, {L_PMIN}, v{S_L8}
    ds_write_b64 v22, v[10:11]
FK_N7:
    s_cmp_lg_u32 s3, 6
    s_cbranch_scc1 FK_N6
    v_lshlrev_b32 v11, 4, v1
    ds_write_b128 v11, v[12:15] offset:{L1_HIST[0]}
    ds_write_b128 v11, v[12:15] offset:{L1_HIST[1]}
FK_N6:
    s_lshl_b32 s30, s3, 6
    s_add_u32 s30, s30, {L_BM}
    v_lshl_add_u32 v11, v1, 2, s30
    v_add_u32 v22, {L_Z}, v23
    v_cmp_gt_u32 vcc, {(L_ZEND-L_Z)//16}, v0
    s_mov_b64 exec, 0xffff
    ds_write_b32 v11, v12
    s_and_b64 exec, vcc, vcc
    s_cbranch_execz FK_NOZ
    ds_write_b128 v22, v[12:15]
FK_NOZ:
    s_mov_b64 exec, -1
    """)
    rstamp(61); stamp()
    a(f"""
    s_waitcnt lgkmcnt(0)
    s_barrier
    s_mov_b64 exec, s[40:41]
    global_load_dwordx4 {vr(D[0],4)}, v5, s[74:75] {LF}
    global_load_dwordx4 {vr(S[0],4)}, v5, s[72:73] {LF}
    global_load_dwordx4 {vr(EAr[0],4)}, v6, s[70:71] {LF}
    global_load_dwordx4 {vr(EAr[0]+4,4)}, v6, s[70:71] offset:16 {LF}
    s_mov_b64 exec, -1
    """)
    set1=f"""
    s_mov_b64 exec, s[42:43]
    global_load_dwordx4 {vr(D[1],4)}, v8, s[74:75] {LF}
    global_load_dwordx4 {vr(S[1],4)}, v8, s[72:73] {LF}
    global_load_dwordx4 {vr(EAr[1],4)}, v9, s[56:57] {LF}
    global_load_dwordx4 {vr(EAr[1]+4,4)}, v9, s[56:57] offset:16 {LF}
    s_mov_b64 exec, -1
    """
    a("s_mov_b64 s[56:57], s[70:71]")
    dbg(2)
    if not LATE1: a(set1)
    a(f"""
    s_or_b32 s30, s2, s3
    s_cbranch_scc1 FK_N0
    v_mov_b32 v12, s94
    v_mov_b32 v13, s95
    v_mov_b32 v4, 0
    s_mov_b64 exec, 1
    global_store_dwordx2 v4, v[12:13], s[88:89] sc0 sc1
    s_mov_b64 exec, -1
FK_N0:
    s_and_b32 s70, s2, 7
    s_lshl_b32 s70, s70, 5
    s_lshr_b32 s30, s2, 3
    s_or_b32 s70, s70, s30             ; bucket
    {'s_mov_b32 s70, s2' if opts.get('nomap') else ''}
    s_mov_b32 s4, s68
    s_and_b32 s5, s69, 0xffff
    s_mov_b32 s6, {N*128}
    s_mov_b32 s7, 0x20000
    s_lshr_b32 s27, s3, 1              ; nt
    s_and_b32 s28, s3, 1               ; cb
    v_lshrrev_b32 v12, 3, v1           ; r3
    v_and_b32 v13, 7, v1               ; c
    v_lshrrev_b32 v14, 2, v12
    v_xor_b32 v13, v13, v14
    v_lshlrev_b32 v13, 4, v13          ; swz0
    s_mul_i32 s29, s70, {NB}
    s_lshl_b32 s30, s27, 5
    s_add_u32 s29, s29, s30
    s_lshl_b32 s30, s28, 1
    s_add_u32 s29, s29, s30
    s_lshl_b32 s29, s29, 7
    v_lshlrev_b32 v14, 9, v12
    v_add_u32 v14, s29, v14
    s_lshl_b32 s30, s28, 6
    v_xor_b32 v15, s30, v13
    v_add_u32 v20, v14, v15
    v_xor_b32 v15, 32, v15
    v_add3_u32 v21, v14, v15, 64
    v_add_u32 v21, 64, v21
    v_lshlrev_b32 v5, 4, v1
    v_mov_b32 v7, 1
    """)
    def scale8(src, tmp):
        for i in range(4):
            a(f"v_lshlrev_b32 v{tmp+2*i}, 16, v{src+i}")
            a(f"v_and_b32 v{tmp+2*i+1}, 0xffff0000, v{src+i}")
        for i in range(8): a(f"v_mul_f32 v{tmp+i}, {NLOG2E}, v{tmp+i}")
        for i in range(4): a(f"v_cvt_pk_bf16_f32 v{src+i}, v{tmp+2*i}, v{tmp+2*i+1}")
    def hist1(u):
        a(f"s_mov_b64 exec, {sr(40+2*u,2)}")
        if u==1: a("s_cbranch_execz FK_NH1")
        for i in range(4): a(f"v_mul_u32_u24 v{BK[u]+i}, {BMAGIC}, v{D[u]+i}")
        for i in range(4): a(f"v_lshrrev_b32 v{BK[u]+i}, {BSHIFT}, v{BK[u]+i}")
        for i in range(4): a(f"v_mul_u32_u24 v{T1[u]+i}, {NB}, v{BK[u]+i}")
        for i in range(4): a(f"v_lshlrev_b32 v{BK[u]+i}, 2, v{BK[u]+i}")
        for i in range(4): a(f"ds_add_rtn_u32 v{RK[u]+i}, v{BK[u]+i}, v7 offset:{L1_HIST[u]}")
        for i in range(4): a(f"v_sub_u32 v{D[u]+i}, v{D[u]+i}, v{T1[u]+i}")
        if u==1: a("FK_NH1:")
        a("s_mov_b64 exec, -1")
    def scan1(u):
        a(f"""
        s_waitcnt lgkmcnt(0)
        v_add_u32 v{SC+5}, v{SC}, v{SC+1}
        v_add_u32 v{SC+6}, v{SC+5}, v{SC+2}
        v_add_u32 v{SC+7}, v{SC+6}, v{SC+3}
        v_mov_b32 v{SC+4}, v{SC+7}
        """)
        dpp_scan(a, SC+4)
        a(f"""
        v_sub_u32 v{SC+8}, v{SC+4}, v{SC+7}
        {'v_add_u32 v%d, 2048, v%d'%(SC+8,SC+8) if u else ''}
        v_add_u32 v{SC+9}, v{SC+8}, v{SC}
        v_add_u32 v{SC+10}, v{SC+8}, v{SC+5}
        v_add_u32 v{SC+11}, v{SC+8}, v{SC+6}
        ds_write_b128 v5, v[{SC+8}:{SC+11}] offset:{L1_BASE[u]}
        s_mov_b64 exec, {sr(40+2*u,2)}
        """)
        for i in range(4): a(f"ds_read_b32 v{T1[u]+i}, v{BK[u]+i} offset:{L1_BASE[u]}")
        a("s_mov_b64 exec, -1")
        for c in range(4): a(f"v_lshl_or_b32 v{PUB[u]+2*c}, v{SC+c}, 12, v{SC+8+c}")
    def scat1(u):
        a(f"s_mov_b64 exec, {sr(40+2*u,2)}")
        for i in range(4): a(f"v_add_u32 v{T1[u]+i}, v{T1[u]+i}, v{RK[u]+i}")
        for i in range(4): a(f"v_mul_u32_u24 v{T1[u]+i}, 12, v{T1[u]+i}")
        for i in range(4): a(f"v_lshl_or_b32 v{S[u]+i}, v{D[u]+i}, 16, v{S[u]+i}")
        for i in range(4):
            a(f"ds_write2_b32 v{T1[u]+i}, v{EAr[u]+2*i}, v{EAr[u]+1+2*i} offset0:0 offset1:1")
            a(f"ds_write_b32 v{T1[u]+i}, v{S[u]+i} offset:8")
        a("s_mov_b64 exec, -1")
    a(f"""
    s_mul_i32 s26, s2, {CH_BYTES}
    s_add_u32 s26, s26, {WS_REC}
    s_add_u32 s32, s90, s26
    s_addc_u32 s33, s91, 0
    s_and_b32 s33, s33, 0xffff
    s_mov_b32 s34, {CH_BYTES}
    s_mov_b32 s35, 0x20000
    """)
    stamp()
    a("s_waitcnt vmcnt(3)" if LATE1 else "s_waitcnt vmcnt(7)")
    if LATE1: a(set1)
    if opts.get("warm",1):
        a(f"""
        s_cmp_lt_u32 s3, 5
        s_cbranch_scc1 FK_NOWARM
        v_lshlrev_b32 v10, 7, v1
        s_cmp_eq_u32 s3, 7
        s_cbranch_scc1 FK_WARM7
        s_cmp_eq_u32 s3, 5
        s_cselect_b32 s36, s78, s76
        s_cselect_b32 s37, s79, s77
        s_cselect_b32 s38, s84, s82
        s_cselect_b32 s39, s85, s83
        global_load_dword v11, v10, s[36:37]
        global_load_dword v12, v10, s[38:39]
        s_branch FK_NOWARM
FK_WARM7:
        s_mul_i32 s30, s70, {NB*128}
        buffer_load_dword v11, v10, s[4:7], s30 offen
        s_add_u32 s30, s30, 8192
        buffer_load_dword v12, v10, s[4:7], s30 offen
FK_NOWARM:
        """)
    stamp()
    hist1(0)
    a(f"s_waitcnt lgkmcnt(0)\ns_barrier\nds_read_b128 v[{SC}:{SC+3}], v5 offset:{L1_HIST[0]}")
    scan1(0)
    stamp()
    a("s_waitcnt vmcnt(4) lgkmcnt(0)")
    scat1(0)
    a("s_waitcnt vmcnt(3)")
    hist1(1)
    a("s_waitcnt lgkmcnt(0)")
    stamp()
    a("s_barrier")
    for i in range(3): a(f"ds_read_b128 {vr(CPO[0]+4*i,4)}, v23 offset:{i*NT*16}")
    a(f"ds_read_b128 v[{SC}:{SC+3}], v5 offset:{L1_HIST[1]}")
    a("v_mov_b32 v37, 0\nglobal_load_dwordx2 v[38:39], v37, s[88:89] sc0 sc1")
    for i in range(3):
        a(f"s_waitcnt lgkmcnt({3-i})")
        a(f"s_mov_b32 s31, {i*NT*16}")
        a(f"buffer_store_dwordx4 {vr(CPO[0]+4*i,4)}, v23, s[32:35], s31 offen {STF}")
    stamp()
    a("s_cmp_gt_u32 s3, 4\ns_cbranch_scc1 FK_NS1")
    scan1(1)
    a("s_waitcnt vmcnt(4) lgkmcnt(0)")
    scat1(1)
    a(f"""
FK_NS1:
    s_waitcnt lgkmcnt(0)
    """)
    stamp()
    a("s_barrier")
    for i in range(2): a(f"ds_read_b128 {vr(CPO[1]+4*i,4)}, v23 offset:{SUBB+i*NT*16}")
    for i in range(2):
        a(f"s_waitcnt lgkmcnt({1-i})")
        a(f"s_mov_b32 s31, {SUBB+i*NT*16}")
        a(f"buffer_store_dwordx4 {vr(CPO[1]+4*i,4)}, v23, s[32:35], s31 offen {STF}")
    a(f"""
    """)
    stamp()
    a(f"""
    s_mov_b32 s12, s90
    s_and_b32 s13, s91, 0xffff
    s_mov_b32 s14, {WS_SIZE}
    s_mov_b32 s15, 0x20000
    """)
    a(f"""
    s_waitcnt vmcnt(5)
    s_mov_b32 s31, 400000
FK_NONCE:
    v_readfirstlane_b32 s92, v38
    v_readfirstlane_b32 s93, v39
    s_or_b32 s30, s92, s93
    s_cbranch_scc1 FK_NONCED
    s_sub_u32 s31, s31, 1
    s_cbranch_scc1 FK_NONCED
    s_sleep 1
    global_load_dwordx2 v[38:39], v37, s[88:89] sc0 sc1
    s_waitcnt vmcnt(0)
    s_branch FK_NONCE
FK_NONCED:
    s_lshr_b64 s[94:95], s[92:93], 8
    s_lshl_b32 s92, s92, 24
    s_mov_b32 s93, s94
    s_cmp_lg_u32 s3, 0
    s_cbranch_scc1 FK_NOPW
    """)
    for u in range(2):
        for c in range(4): a(f"v_or_b32 v{PUB[u]+2*c}, s92, v{PUB[u]+2*c}\nv_mov_b32 v{PUB[u]+2*c+1}, s93")
    a(f"""
    v_lshlrev_b32 v6, 5, v1
    s_lshl_b32 s29, s2, 12
    s_add_u32 s29, s29, {WS_OFF}
FK_NOPW:
    """)
    stamp()
    a("s_waitcnt vmcnt(0)")
    stamp()
    a(f"""
    s_barrier
    s_cmp_lg_u32 s3, 0
    s_cbranch_scc1 FK_NOPUB
    buffer_store_dwordx4 {vr(PUB[0],4)}, v6, s[12:15], s29 offen sc1
    buffer_store_dwordx4 {vr(PUB[0]+4,4)}, v6, s[12:15], s29 offen offset:16 sc1
    buffer_store_dwordx4 {vr(PUB[1],4)}, v6, s[12:15], s29 offen offset:2048 sc1
    buffer_store_dwordx4 {vr(PUB[1]+4,4)}, v6, s[12:15], s29 offen offset:2064 sc1
FK_NOPUB:
    """)
    dbg(7)
    a(f"""
    s_lshl_b32 s26, s70, 3
    s_add_u32 s26, s26, {WS_OFF}
    s_lshl_b32 s30, s3, 10
    s_add_u32 m0, s30, {L_STG+8192}
    global_load_dwordx4 {vr(WBR,4)}, v23, s[78:79]
    global_load_lds_dwordx4 v23, s[84:85]
    s_add_u32 m0, s30, {L_STG+16384}
    s_lshl_b32 s31, s3, 11
    global_load_lds_dwordx4 v23, s[76:77]
    s_add_u32 m0, s30, {L_STG+24576}
    s_nop 0
    global_load_lds_dwordx4 v23, s[82:83]
    s_add_u32 m0, s31, {L_EA}
    s_nop 0
    buffer_load_dwordx4 v20, s[4:7], 0 offen lds
    s_add_u32 m0, s31, {L_EA+1024}
    s_nop 0
    buffer_load_dwordx4 v21, s[4:7], 0 offen lds
    s_mov_b32 exec_hi, 0
    global_load_dwordx4 v[12:15], v5, s[80:81]
    s_mov_b32 exec_hi, -1
    """)
    a(f"""
    s_sub_u32 s96, s68, 3072
    s_subb_u32 s97, s69, 0
    s_and_b32 s97, s97, 0xffff
    s_mov_b32 s98, {N*128+3072}
    s_mov_b32 s99, 0x20000
    v_lshrrev_b32 v42, 3, v1
    v_and_b32 v43, 7, v1
    v_lshrrev_b32 v41, 2, v42
    v_xor_b32 v43, v43, v41
    v_lshlrev_b32 v43, 4, v43
    s_mov_b32 s8, s86
    s_and_b32 s9, s87, 0xffff
    s_mov_b32 s10, {N*128}
    s_mov_b32 s11, 0x20000
    s_mov_b32 s16, 0
    s_mov_b32 s17, 0xffff
    s_mov_b32 s18, 0
    v_add_u32 v{SWZ}, 3072, v43
    v_xor_b32 v{SWZ+1}, 32, v43
    v_add_u32 v{SWZ+1}, 2048, v{SWZ+1}
    v_xor_b32 v{SWZ+2}, 64, v43
    v_add_u32 v{SWZ+2}, 1024, v{SWZ+2}
    v_xor_b32 v{SWZ+3}, 96, v43
    v_and_b32 v{S_R1}, 1, v42
    v_lshrrev_b32 v{S_C1}, 1, v42
    v_lshlrev_b32 v{S_C1}, 4, v{S_C1}
    v_add_u32 v{S_C1}, {L_SF}, v{S_C1}
    v_and_b32 v2, 31, v1
    v_lshrrev_b32 v3, 5, v1
    v_lshlrev_b32 v{L4N}, 2, v2
    v_and_b32 v4, 3, v2
    v_lshrrev_b32 v40, 2, v2
    v_lshlrev_b32 v6, 10, v4
    v_lshl_add_u32 v6, v40, 7, v6
    v_lshrrev_b32 v7, 2, v40
    v_lshl_or_b32 v7, v4, 1, v7
    v_xor_b32 v7, v7, v3
    v_lshl_add_u32 v6, v7, 4, v6
    s_lshl_b32 s24, s3, 12
    s_add_u32 s24, s24, {L_STG}
    v_add_u32 v{AAD}, s24, v6
    v_xor_b32 v7, 32, v6
    v_add_u32 v{AAD+1}, s24, v7
    v_xor_b32 v7, 64, v6
    v_add_u32 v{AAD+2}, s24, v7
    v_xor_b32 v7, 96, v6
    v_add_u32 v{AAD+3}, s24, v7
    v_and_b32 v{S_HS}, 1, v40
    v_lshrrev_b32 v8, 1, v40
    v_lshl_add_u32 v9, v8, 2, v4
    v_lshlrev_b32 v{AEI}, 6, v3
    v_sub_u32 v{AEI}, 128, v{AEI}
    v_lshrrev_b32 v{S_SC}, 2, v{AEI}
    v_lshrrev_b32 v10, 4, v{AEI}
    v_mul_u32_u24 v11, {L_SF-L_EA}, v3
    v_mad_u32_u24 v{S_C0}, v9, v10, v11
    v_add_u32 v{S_C0}, {L_EA}, v{S_C0}
    v_cmp_eq_u32 s[36:37], v{S_HS}, v3
    v_mov_b32 v9, 7
    v_mov_b32 v10, 0x3f80
    v_cndmask_b32_e64 v8, v9, v8, s[36:37]
    """)
    for j in range(4):
        a(f"""
        v_cmp_eq_u32 s[{32+2*(j&1)}:{33+2*(j&1)}], {j}, v8
        {'v_mul_u32_u24 v%d, 12, v1'%S_L12 if j==0 else 'v_mov_b32 v%d, %d'%(S_FA,L_FLAG) if j==1 else 's_nop 0'}
        s_nop 0
        v_cndmask_b32_e64 v{AOH[0]+j}, 0, v10, s[{32+2*(j&1)}:{33+2*(j&1)}]
        v_lshlrev_b32 v{AOH[1]+j}, 16, v{AOH[0]+j}
        """)
    a(f"""
    s_lshl_b32 s31, s3, 5
    v_add_u32 v4, s31, v2
    v_mul_u32_u24 v{S_CB}, {CH_BYTES}, v4
    v_add_u32 v{S_CB}, {WS_REC}, v{S_CB}
    v_lshlrev_b32 v{S_PO}, 12, v4
    v_lshl_add_u32 v{S_PO}, v3, 11, v{S_PO}
    """)
    a(f"""
    s_waitcnt vmcnt(0)
    """)
    scale8(WBR, SC)
    a(f"""
    v_add_u32 v7, {L_STG}, v23
    ds_write_b128 v7, {vr(WBR,4)}
    s_cmp_lg_u32 s3, 7
    s_cbranch_scc1 FK_N7B
    """)
    scale8(12, SC)
    a(f"""
    v_add_u32 v7, {L_WCL}, v5
    s_mov_b32 exec_hi, 0
    ds_write_b128 v7, v[12:15]
    s_mov_b32 exec_hi, -1
FK_N7B:
    v_and_b32 v8, 15, v1
    v_lshrrev_b32 v9, 2, v8
    v_lshlrev_b32 v9, 7, v9
    v_and_b32 v8, 3, v8
    v_lshl_add_u32 v9, v8, 3, v9
    v_lshl_add_u32 v9, v3, 10, v9
    v_and_b32 v8, 16, v1
    v_lshl_add_u32 v9, v8, 1, v9
    v_add_u32 v20, {L_STG}, v9
    s_lshr_b32 s28, s3, 2
    s_and_b32 s27, s3, 3               ; nt
    s_lshl_b32 s30, s28, 13
    v_add_u32 v21, s30, v20
    v_add_u32 v22, {L_WCL}, v9
    s_lshl_b32 s30, s27, 12
    s_sub_u32 s30, s30, s24
    s_add_u32 s30, s30, {L_EA}
    """)
    for s in range(4): a(f"v_add_u32 v{8+s}, s30, v{AAD+s}")
    a("s_waitcnt lgkmcnt(0)\ns_barrier")
    for s in range(4): a(f"ds_read_b128 {vr(A[0]+4*s,4)}, v{8+s}")
    for cb in range(2):
        for s in range(4):
            for hh in range(2):
                a(f"ds_read_b64_tr_b16 {vr(WAU+(cb*4+s)*4+2*hh,2)}, v21 offset:{16384+s*2048+cb*64+hh*512}")
    a(f"""
    s_waitcnt lgkmcnt(8)
    """)
    for cb in range(2):
        if cb: a("s_waitcnt lgkmcnt(0)")
        for s in range(4):
            a(f"v_mfma_f32_32x32x16_bf16 {vr(XAC+16*cb,16)}, {vr(A[0]+4*s,4)}, {vr(WAU+16*cb+4*s,4)}, {'0' if s==0 else vr(XAC+16*cb,16)}")
    a(f"""
    buffer_load_dwordx2 v[38:39], v{S_PO}, s[12:15], s26 offen sc1
    """)
    for m in range(2):
        for s in range(4):
            for cb in range(2):
                for hh in range(2):
                    a(f"ds_read_b64_tr_b16 {vr(WB+m*32+(s*2+cb)*4+2*hh,2)}, v20 offset:{m*8192+s*2048+cb*64+hh*512}")
    a(f"""
    ds_read_b64_tr_b16 {vr(WC[0],2)}, v22
    ds_read_b64_tr_b16 {vr(WC[1],2)}, v22 offset:64
    s_cmp_lg_u32 s28, 0
    s_cbranch_scc1 FK_XU
    v_mul_u32_u24 v7, {4*ROWB}, v3
    v_add_u32 v7, v{L4N}, v7
    s_mul_i32 s31, s27, {32*ROWB}
    s_add_u32 s31, s31, 512
    v_add_u32 v7, s31, v7
    """)
    for i in range(32): a(f"v_mul_f32 v{XAC+i}, {NLOG2E}, v{XAC+i}")
    for i in range(16): a(f"v_cvt_pk_bf16_f32 v{XAC+i}, v{XAC+i}, v{XAC+16+i}")
    a("s_cmp_eq_u32 s27, 3\ns_cbranch_scc1 FK_XA3")
    for i in range(16): a(f"ds_write_b32 v7, v{XAC+i} offset:{((i>>2)*8+(i&3))*ROWB}")
    a(f"""
    s_branch FK_XA4
FK_XA3:
    s_mov_b32 exec_hi, 0
    ds_write_b32 v7, v{XAC} offset:0
    ds_write_b32 v7, v{XAC+1} offset:{ROWB}
    s_mov_b64 exec, -1
    s_branch FK_XA4
FK_XU:
    v_lshl_add_u32 v8, v3, 9, v{L4N}
    s_lshl_b32 s31, s2, 14
    s_lshl_b32 s30, s27, 12
    s_add_u32 s31, s31, s30
    s_add_u32 s31, s31, {WS_XU}
    """)
    for i in range(16): a(f"v_cvt_pk_bf16_f32 v{XAC+i}, v{XAC+i}, v{XAC+16+i}")
    for i in range(16):
        if i==2: a("s_cmp_eq_u32 s27, 3\ns_cbranch_scc1 FK_XA4")
        a(f"buffer_store_dword v{XAC+i}, v8, s[12:15], s31 offen offset:{((i>>2)*8+(i&3))*128}")
    a(f"""
FK_XA4:
    s_waitcnt lgkmcnt(0)
    s_mov_b32 exec_lo, 0
    v_mov_b32 v{WC[0]}, {BIG16<<16}
    v_mov_b32 v{WC[0]+1}, 0
    v_mov_b32 v{WC[1]}, {BIG16<<16}
    v_mov_b32 v{WC[1]+1}, 0
    s_mov_b32 exec_lo, -1
FK_XAD:
    s_lshl_b32 s29, s3, 8
    s_add_u32 s29, s29, {L_ADJ}
    s_lshl_b32 s30, s3, 6
    s_add_u32 s30, s30, {L_BM}
    s_mov_b32 s31, 400000
    s_mov_b64 s[64:65], -1
    """)
    stamp()
    a(f"""
FK_POLL:
    s_waitcnt vmcnt(0)
    v_and_b32 v8, 0xff000000, v38
    v_cmp_eq_u32 s[34:35], s93, v39
    v_cmp_eq_u32 s[36:37], s92, v8
    s_nand_b64 s[34:35], s[34:35], s[36:37]
    s_cbranch_scc0 FK_GOT
    """)
    if opts.get("pfn",0):
        a(f"""
        s_andn2_b64 s[36:37], s[64:65], s[34:35]
        s_cbranch_scc0 FK_NOPF
        s_mov_b64 s[64:65], s[34:35]
        s_mov_b64 exec, s[36:37]
        v_and_b32 v9, 0xfff, v38
        v_bfe_u32 v10, v38, 12, 12
        v_mad_u32_u24 v9, v9, 12, v{S_CB}
        v_mad_u32_u24 v10, v10, 12, v9
        buffer_load_dword v11, v9, s[12:15], 0 offen sc1
        {'buffer_load_dword v14, v10, s[12:15], 0 offen sc1' if opts['pfn']>1 else ''}
FK_NOPF:
        """)
    a(f"""
    s_sub_u32 s31, s31, 1
    s_cbranch_scc1 FK_GOT
    s_sleep {opts.get('sleep',4)}
    s_mov_b64 exec, s[34:35]
    buffer_load_dwordx2 v[38:39], v{S_PO}, s[12:15], s26 offen sc1
    s_mov_b64 exec, -1
    s_branch FK_POLL
FK_GOT:
    s_mov_b64 exec, -1
    """)
    dbg(6)
    stamp()
    a(f"""
    v_bfe_u32 v8, v38, 12, 12
    v_and_b32 v9, 0xfff, v38
    v_mov_b32 v{T+6}, v8
    v_min_u32 v8, s17, v8
    v_subrev_u32 v8, s16, v8
    v_max_i32 v8, 0, v8
    v_mov_b32 v10, v8
    v_add_u32 v9, s16, v9
    """)
    dpp_scan(a, 10)
    B0=T+8
    a(f"""
    v_cmp_lt_u32 s[34:35], 0, v8
    v_sub_u32 v11, v10, v8
    v_readlane_b32 s20, v10, 63
    v_sub_u32 v9, v9, v11
    v_mul_i32_i24 v9, 12, v9
    v_add_u32 v9, v9, v{S_CB}
    v_mbcnt_lo_u32_b32 v12, s34, 0
    v_mbcnt_hi_u32_b32 v12, s35, v12
    v_lshl_add_u32 v12, v12, 2, s29
    v_add_u32 v13, -1, v11
    v_lshrrev_b32 v14, 5, v13
    v_min_u32 v14, 15, v14
    v_lshl_add_u32 v14, v14, 2, s30
    v_lshlrev_b32 v13, v13, 1
    v_cmp_lt_u32 s[36:37], 0, v11
    v_mov_b32 v{T+5}, s30
    s_mov_b64 exec, s[34:35]
    ds_write_b32 v12, v9
    s_and_b64 exec, s[34:35], s[36:37]
    ds_or_b32 v14, v13
    s_mov_b64 exec, -1
    ds_read_b128 {vr(B0,4)}, v{T+5}
    ds_read_b128 {vr(B0+4,4)}, v{T+5} offset:16
    ds_read_b128 {vr(B0+8,4)}, v{T+5} offset:32
    ds_read_b128 {vr(B0+12,4)}, v{T+5} offset:48
    s_lshr_b32 s31, s29, 2
    v_mov_b32 v15, s31
    """)
    for p in range(NPASS):
        a(f"""
        s_sub_i32 s31, s20, {64*p}
        v_cmp_gt_i32 {msk(p)}, s31, v1
        """)
    for p in range(NPASS):
        if p%2==0: a(f"s_waitcnt lgkmcnt({3-p//2+p})")
        lo=B0+2*p; hi=lo+1
        a(f"""
        v_mbcnt_lo_u32_b32 v{HA+p}, v{lo}, v15
        v_mbcnt_hi_u32_b32 v{HA+p}, v{hi}, v{HA+p}
        {'v_bcnt_u32_b32 v15, v%d, v15'%lo if p<NPASS-1 else ''}
        v_lshlrev_b32 v{HA+p}, 2, v{HA+p}
        {'v_bcnt_u32_b32 v15, v%d, v15'%hi if p<NPASS-1 else ''}
        ds_read_b32 v{HA+p}, v{HA+p}
        """)
    for p in range(NPASS):
        a(f"""
        s_waitcnt lgkmcnt({NPASS-1-p})
        v_add_u32 v{HA+p}, v{HA+p}, v{S_L12}
        {'s_mov_b32 s31, %d'%(768*p) if p>5 else ''}
        s_mov_b64 exec, {msk(p)}
        buffer_load_dwordx3 {vr(rec(p),3)}, v{HA+p}, s[12:15], {'s31 offen' if p>5 else '0 offen offset:%d'%(768*p)} {opts.get('ldf','sc1')}
        {'s_mov_b64 exec, -1' if p>=4 else ''}
        """)
    a(f"""
    s_cmp_gt_u32 s20, {64*NPASS}
    s_cselect_b32 s71, 0x10000, 0
    s_or_b32 s31, s71, s18
    s_cbranch_scc0 FK_NOMAX
    v_or_b32 v{T+6}, s71, v{T+6}
    ds_max_u32 v{S_FA}, v{T+6}
FK_NOMAX:
    v_lshl_add_u32 v8, v2, 2, s29
    v_mov_b32 v9, 0
    ds_write_b32 v8, v9
    s_mov_b32 s62, s29
    v_mov_b32 v{T+7}, 1
    v_add_u32 v{T+17}, {L_HIST}, v{S_L8}
    s_mov_b32 s31, {L_HIST}
    s_mov_b32 m0, s24
    """)
    stamp()
    for p in range(NPASS):
        q=rec(p)
        a(f"""
        s_waitcnt vmcnt({NPASS-1-p})
        s_mov_b64 exec, {msk(p)}
        {'s_cbranch_execz FK_HD' if p>=5 else ''}
        v_bfe_u32 v{HA+p}, v{q+2}, 16, 7
        v_lshl_add_u32 v{HA+p}, v{HA+p}, 2, s31
        ds_add_rtn_u32 v{q+3}, v{HA+p}, v{T+7}
        """)
    a(f"""
FK_HD:
    s_mov_b64 exec, -1
    s_waitcnt vmcnt(0)
    """)
    xpf(a,opts.get("xpf1",0),opts.get("xpf2",0),168)
    a("s_waitcnt lgkmcnt(0)")
    stamp()
    a("s_barrier")
    a(f"""
    ds_read_b64 v[{T+20}:{T+21}], v{T+17}
    ds_read_b32 v{T+19}, v{S_FA}
    s_waitcnt lgkmcnt(0)
    v_add_u32 v{T+2}, 3, v{T+20}
    v_add_u32 v{T+3}, 3, v{T+21}
    v_and_b32 v{T+2}, 0xfffffffc, v{T+2}
    v_and_b32 v{T+3}, 0xfffffffc, v{T+3}
    v_add_u32 v{T+3}, v{T+2}, v{T+3}
    v_mov_b32 v{T+4}, v{T+3}
    v_readfirstlane_b32 s19, v{T+19}
    """)
    dpp_scan(a, T+4)
    a(f"""
    v_sub_u32 v{T+22}, v{T+4}, v{T+3}
    v_add_u32 v{T+23}, v{T+22}, v{T+2}
    v_readlane_b32 s20, v{T+4}, 63     ; 4Q
    ds_write_b64 v{T+17}, v[{T+22}:{T+23}] offset:{L_SB-L_HIST}
    s_cmp_lg_u32 s18, 0
    s_cbranch_scc1 FK_OK
    s_cmp_ge_u32 s19, 0x10000
    s_cbranch_scc1 FK_GOSLOW
    s_cmp_le_u32 s20, {CAP}
    s_cbranch_scc1 FK_OK
FK_GOSLOW:
    s_mov_b32 s18, 1
    s_mov_b32 s17, {SLOWR}
    s_branch FK_REBATCH
FK_OK:
    """)
    for p in range(NPASS):
        a(f"""
        s_mov_b64 exec, {msk(p)}
        {'s_cbranch_execz FK_RD' if p>=5 else ''}
        ds_read_b32 v{HA+p}, v{HA+p} offset:{L_SB-L_HIST}
        """)
    a(f"""
FK_RD:
    s_mov_b64 exec, -1
    s_and_b32 s19, s19, 0xffff
    s_add_u32 s26, s20, 31
    s_lshr_b32 s26, s26, 5             ; TT
    s_lshl_b32 s29, s26, 5             ; 32TT
    s_lshr_b32 s27, s26, 3             ; NT0
    s_and_b32 s26, s26, 7              ; rem
    s_mul_i32 s22, s3, s27
    s_min_u32 s28, s3, s26
    s_add_u32 s22, s22, s28
    s_lshl_b32 s22, s22, 3             ; qs0
    s_cmp_lt_u32 s3, s26
    s_cselect_b32 s28, 1, 0
    s_add_u32 s21, s27, s28            ; NT
    s_lshl_b32 s28, s21, 2             ; 4NT
    s_add_u32 s23, s22, s28            ; qs1
    s_cmp_eq_u32 s3, 1
    s_cbranch_scc1 FK_JOBD
    s_bitcmp1_b32 s3, 0
    s_cselect_b64 s[34:35], -1, 0
    v_cndmask_b32_e64 v4, v{T+20}, v{T+21}, s[34:35]
    v_cndmask_b32_e64 v5, v{T+22}, v{T+23}, s[34:35]
    s_lshr_b32 s27, s3, 1
    v_mov_b32 v8, 0
    v_mov_b32 v9, 0
    v_mov_b32 v10, {FLAG16<<16}
    s_cmp_lg_u32 s27, 0
    s_cbranch_scc1 FK_PADJOB
    v_add_u32 v5, s20, v1
    v_cmp_ge_u32 vcc, s29, v5
    s_branch FK_PADW
FK_PADJOB:
    v_sub_u32 v6, 0, v4
    v_and_b32 v6, 3, v6
    v_add3_u32 v5, v5, v4, s27
    v_add_u32 v5, -1, v5
    v_cmp_le_u32 vcc, s27, v6
FK_PADW:
    v_lshlrev_b32 v6, 3, v5
    v_add_u32 v6, {L_EA}, v6
    v_lshlrev_b32 v7, 2, v5
    v_add_u32 v7, {L_SF}, v7
    s_mov_b64 exec, vcc
    ds_write_b64 v6, v[8:9]
    ds_write_b32 v7, v10
    s_mov_b64 exec, -1
    s_waitcnt lgkmcnt(2)
    s_branch FK_JOBE
FK_JOBD:
    s_waitcnt lgkmcnt(0)
FK_JOBE:
    s_mov_b32 s30, {L_EA}
    s_mov_b32 s31, {L_SF}
    """)
    for p in range(NPASS):
        q=rec(p); h=HA+p
        a(f"""
        s_mov_b64 exec, {msk(p)}
        {'s_cbranch_execz FK_SD' if p>=5 else ''}
        v_add_u32 v{h}, v{h}, v{q+3}
        v_lshl_add_u32 v{q+3}, v{h}, 3, s30
        ds_write_b64 v{q+3}, v[{q}:{q+1}]
        v_lshl_add_u32 v{h}, v{h}, 2, s31
        v_and_b32 v{q+2}, 0xffff, v{q+2}
        ds_write_b32 v{h}, v{q+2}
        """)
    a(f"""
FK_SD:
    s_mov_b64 exec, -1
    v_mul_u32_u24 v4, s28, v{S_R1}
    v_add_u32 v4, s22, v4
    v_lshl_add_u32 v{SRA}, v4, 4, v{S_C1}
    v_mul_u32_u24 v4, s28, v{S_HS}
    v_add_u32 v4, s22, v4
    v_mad_u32_u24 v{AEA}, v4, v{S_SC}, v{S_C0}
    s_lshl_b32 s30, s21, 3
    v_lshrrev_b32 v4, 2, v{T+22}
    v_lshrrev_b32 v5, 2, v{T+23}
    v_subrev_u32 v4, s22, v4
    v_subrev_u32 v5, s22, v5
    v_cmp_gt_u32 s[34:35], s30, v4
    v_cmp_gt_u32 s[36:37], s30, v5
    v_cmp_lt_u32 s[38:39], 0, v{T+20}
    v_cmp_lt_u32 s[58:59], 0, v{T+21}
    v_add_u32 v4, s62, v4
    v_add_u32 v5, s62, v5
    v_lshl_add_u32 v6, v1, 1, 1
    v_lshl_add_u32 v7, v1, 1, 2
    s_and_b64 exec, s[34:35], s[38:39]
    ds_write_b8 v4, v6
    s_and_b64 exec, s[36:37], s[58:59]
    ds_write_b8 v5, v7
    s_mov_b64 exec, -1
    s_waitcnt lgkmcnt(0)
    """)
    stamp()
    a(f"""
    s_barrier
    s_cmp_eq_u32 s21, 0
    s_cbranch_scc1 FK_LOOPDONE
    ds_read_b128 {vr(SFV,4)}, v{SRA}
    ds_read2_b32 {vr(AE,2)}, v{AEA} offset0:0 offset1:1
    v_mul_u32_u24 v4, s28, v3
    v_add_u32 v4, s22, v4                ; qs[h]
    v_lshl_add_u32 v{T+16}, v2, 1, v4    ; u_a
    s_sub_u32 s30, s62, s22
    v_add_u32 v{T+17}, s30, v{T+16}
    ds_read_u16 v5, v{T+17}
    {INC_SR}
    {INC_AE}
    s_waitcnt lgkmcnt(2)
    """)
    for s in dv_calc()+dma(): a(s)
    a(f"""
    s_lshl_b32 s30, s22, 2
    s_lshl_b32 s31, s23, 2
    v_cmp_ge_u32 s[34:35], s30, v{T+22}
    v_cmp_ge_u32 s[36:37], s30, v{T+23}
    v_cmp_ge_u32 s[38:39], s31, v{T+22}
    v_cmp_ge_u32 s[58:59], s31, v{T+23}
    ds_read_b128 {vr(SFV,4)}, v{SRA}
    {INC_SR}
    v_lshlrev_b32 v{QIA}, 2, v4
    v_add_u32 v{QIA}, {L_QI}, v{QIA}
    s_bcnt1_i32_b64 s30, s[34:35]
    s_bcnt1_i32_b64 s31, s[36:37]
    s_add_u32 s56, s30, s31
    s_bcnt1_i32_b64 s30, s[38:39]
    s_bcnt1_i32_b64 s31, s[58:59]
    s_add_u32 s57, s30, s31
    v_mov_b32 v{T+18}, s56
    s_mov_b32 exec_lo, 0
    v_mov_b32 v{T+18}, s57
    s_mov_b32 exec_lo, -1
    s_lshr_b32 s20, s20, 2               ; Q
    s_mov_b32 s64, {512-ROWB}
    s_lshl_b32 s26, s3, 1
    s_add_u32 s26, s26, {R_PART}
    v_add_u32 v10, s26, v3
    v_lshlrev_b32 v11, 1, v2
    v_cmp_gt_u32 s[38:39], s28, v11
    s_waitcnt lgkmcnt(1)
    s_nop 0
    v_cndmask_b32_e64 v4, 0, v5, s[38:39]
    v_and_b32 v5, 0xff, v4
    v_lshrrev_b32 v6, 8, v4
    v_max_u32 v7, v5, v6
    v_readlane_b32 s30, v5, 0
    v_readlane_b32 s31, v5, 32
    """)
    dpp_scan(a, 7, op="v_max_u32", full=False)
    a(f"""
    v_mov_b32 v8, 0
    s_cmp_eq_u32 s30, 0
    s_cselect_b32 s34, -1, 0
    s_cmp_lt_u32 s22, s20
    s_cselect_b32 s34, s34, 0
    v_mov_b32_dpp v8, v7 wave_shr:1 row_mask:0xf bank_mask:0xf
    s_cmp_eq_u32 s31, 0
    s_cselect_b32 s35, -1, 0
    s_cmp_lt_u32 s23, s20
    s_cselect_b32 s35, s35, 0
    v_max3_u32 v8, v8, v5, v{T+18}
    v_max_u32 v7, v7, v{T+18}
    v_add_u32 v12, 1, v10
    v_cmp_eq_u32 s[36:37], v8, v{T+18}
    v_cmp_eq_u32 s[58:59], v7, v{T+18}
    s_and_b64 s[36:37], s[36:37], s[34:35]
    s_and_b64 s[58:59], s[58:59], s[34:35]
    v_cndmask_b32_e64 v8, v8, v12, s[36:37]
    v_cndmask_b32_e64 v7, v7, v12, s[58:59]
    v_add_u32 v13, 1, v{T+16}
    v_mov_b32 v12, {R_ZERO+1}
    v_cmp_gt_u32 s[36:37], s20, v{T+16}
    v_cmp_gt_u32 s[66:67], s20, v13
    v_cmp_eq_u32 s[58:59], 0, v5
    v_cmp_eq_u32 s[60:61], 0, v6
    v_cmp_lt_u32 s[62:63], 0, v2
    v_cndmask_b32_e64 v8, v12, v8, s[36:37]
    v_cndmask_b32_e64 v7, v12, v7, s[66:67]
    s_and_b64 s[58:59], s[58:59], s[36:37]
    s_and_b64 s[58:59], s[58:59], s[62:63]
    s_and_b64 s[60:61], s[60:61], s[66:67]
    v_mul_u32_u24 v{T}, {ROWB}, v8
    v_mul_u32_u24 v{T+1}, {ROWB}, v7
    v_add_u32 v{T}, {-ROWB}, v{T}
    v_add_u32 v{T+1}, {-ROWB}, v{T+1}
    v_cndmask_b32_e64 v{T+2}, 0, 1.0, s[58:59]
    v_cndmask_b32_e64 v{T+3}, 0, 1.0, s[60:61]
    v_lshlrev_b32 v13, 2, v{T+16}
    v_add_u32 v13, {L_QI}, v13
    s_mov_b64 exec, s[38:39]
    ds_write_b64 v13, v[{T}:{T+1}]
    ds_write_b64 v13, v[{T+2}:{T+3}] offset:{QKOFF}
    s_and_b64 exec, s[34:35], s[34:35]
    s_cbranch_execz FK_NOCONT
    v_mul_u32_u24 v14, {ROWB}, v{T+18}
    v_add3_u32 v14, v14, v{L4N}, s64
    ds_read_b32 v15, v14
    v_mul_u32_u24 v14, {ROWB}, v10
    v_add_u32 v14, v14, v{L4N}
    v_lshlrev_b32 v13, 2, v{T+18}
    v_add_u32 v13, {L_PMAX-4}, v13
    s_waitcnt lgkmcnt(0)
    ds_write_b32 v14, v15 offset:512
    s_and_b32 exec_lo, exec_lo, 1
    s_and_b32 exec_hi, exec_hi, 1
    ds_max_u32 v13, v10
    ds_min_u32 v13, v10 offset:{L_PMIN-L_PMAX}
FK_NOCONT:
    s_mov_b64 exec, -1
    """)
    for s in xaf_read(0)+kp_read(0,0): a(s)
    a(f"""
    s_nand_b32 s30, s60, s61
    s_nand_b32 s31, s58, s59
    s_lshr_b32 s31, s31, 1
    s_bitreplicate_b64_b32 s[44:45], s30
    s_bitreplicate_b64_b32 s[46:47], s31
    s_mov_b32 s30, 0x55555555
    s_mov_b32 s31, 0x55555555
    s_and_b64 s[44:45], s[44:45], s[30:31]
    s_andn2_b64 s[46:47], s[46:47], s[30:31]
    s_or_b64 s[44:45], s[44:45], s[46:47]
    s_sub_u32 s30, s28, 1
    s_bitset1_b64 s[44:45], s30
    """)
    for r in (ACD[0]+3,ACD[1]+3,ACN[0]+3,ACN[1]+3): a(f"v_mov_b32 v{r}, 0")
    a("s_waitcnt lgkmcnt(0)")
    for s in xaf_adds()+bx_reads()+["s_waitcnt vmcnt(0)"]+a_reads(0)+dv_calc(): a(s)
    a("s_waitcnt lgkmcnt(0)")
    a("s_cmp_lt_u32 s21, 2\ns_cbranch_scc1 FK_SKD0")
    for s in dma(): a(s)
    a("FK_SKD0:")
    for s in xaf_read(1)+g_mfmas(0,0)+src_read()+[INC_SR]+g_mfmas(1,0): a(s)
    a("s_waitcnt lgkmcnt(0)")
    for s in xaf_adds()+ae_read()+bx_reads()+dv_calc(): a(s)
    for i in range(16): a(f"v_exp_f32 v{EE[0]+i}, v{GA[0]+i}")
    a("s_waitcnt vmcnt(0)")
    for s in a_reads(1): a(s)
    for i in range(16): a(f"v_add_f32 v{EE[0]+i}, 1.0, v{EE[0]+i}")
    a("s_waitcnt lgkmcnt(0)")
    a("s_cmp_lt_u32 s21, 3\ns_cbranch_scc1 FK_SKD1")
    for s in dma(): a(s)
    a("FK_SKD1:")
    for s in src_read(): a(s)
    stamp(); rstamp(59); dbg(3)
    a("s_sub_u32 s25, s21, 1")
    a("FK_LOOP:")
    for par in range(2):
        a(f"s_cmp_eq_u32 s25, 0\ns_cbranch_scc1 FK_LAST{par}")
        tile(a,0,par,False)
        a("s_sub_u32 s25, s25, 1")
    a("s_branch FK_LOOP")
    for x in lp4.STUBS: a(x)
    lp4.STUBS.clear()
    for par in range(2):
        a(f"FK_LAST{par}:")
        tile(a,0,par,True)
        a("s_branch FK_LOOPDONE")
    for x in lp4.STUBS: a(x)
    a(f"""
FK_LOOPDONE:
    s_setprio 0
    """)
    rstamp(60); stamp(); dbg(4)
    XR=128; X=[136,140]; B=[144,176]; M=[4,10]
    a(f"""
    v_and_b32 v23, 7, v0
    v_lshrrev_b32 v20, 3, v0
    v_lshlrev_b32 v20, 7, v20
    v_lshl_add_u32 v20, v23, 3, v20
    s_mul_i32 s26, s70, {NB*128}
    v_add_u32 v20, s26, v20
    v_add_u32 v21, 8192, v20
    v_lshlrev_b32 v22, 4, v0
    s_lshl_b32 s27, s2, 14
    s_add_u32 s27, s27, {WS_XU}
    s_add_u32 s28, s27, 8192
    v_cmp_gt_u32 vcc, {NB*8-512}, v0
    s_mov_b64 s[34:35], vcc
    buffer_load_dwordx2 v[{XR}:{XR+1}], v20, s[4:7], 0 offen
    buffer_load_dwordx2 v[{XR+2}:{XR+3}], v20, s[4:7], 0 offen offset:64
    buffer_load_dwordx4 {vr(X[0],4)}, v22, s[12:15], s27 offen
    s_mov_b64 exec, s[34:35]
    buffer_load_dwordx2 v[{XR+4}:{XR+5}], v21, s[4:7], 0 offen
    buffer_load_dwordx2 v[{XR+6}:{XR+7}], v21, s[4:7], 0 offen offset:64
    buffer_load_dwordx4 {vr(X[1],4)}, v22, s[12:15], s28 offen
    s_mov_b64 exec, -1
    v_lshlrev_b32 v23, 4, v23
    """)
    for it in range(2):
        m=M[it]
        a(f"""
        v_lshrrev_b32 v{m}, 3, v0
        {'v_add_u32 v%d, 64, v%d'%(m,m) if it else ''}
        v_lshlrev_b32 v{m+1}, 2, v{m}
        v_add_u32 v{m+1}, {L_HIST}, v{m+1}
        ds_read_b32 v{m+5}, v{m+1}
        """)
    a(f"v_mov_b32 v37, {R_ZERO}\ns_waitcnt lgkmcnt(0)")
    for it in range(2):
        m=M[it]
        a(f"""
        v_cmp_eq_u32 s[36:37], 0, v{m+5}
        s_nop 1
        v_cndmask_b32_e64 v{m}, v{m}, v37, s[36:37]
        v_mul_u32_u24 v{m}, {ROWB}, v{m}
        v_add_u32 v{m}, v{m}, v23
        """)
    a("s_barrier")
    stamp()
    for it in range(2):
        m=M[it]; b=B[it]
        if it==1: a("s_mov_b64 exec, s[34:35]")
        a(f"""
        ds_read_b32 v{m+2}, v{m+1} offset:{L_PMAX-L_HIST}
        ds_read_b32 v{m+3}, v{m+1} offset:{L_PMIN-L_HIST}
        """)
    for it in range(2):
        m=M[it]; b=B[it]
        a("s_mov_b64 exec, s[34:35]" if it else "s_mov_b64 exec, -1")
        a(f"""
        ds_read_b128 {vr(b,4)}, v{m}
        ds_read_b128 {vr(b+4,4)}, v{m} offset:128
        ds_read_b128 {vr(b+8,4)}, v{m} offset:256
        ds_read_b128 {vr(b+12,4)}, v{m} offset:384
        """)
    a("s_waitcnt lgkmcnt(8)")
    for it in range(2):
        m=M[it]; b=B[it]; x=X[it]; xr=XR+4*it
        if it==1:
            a(f"""
            s_cmp_eq_u64 s[34:35], 0
            s_cbranch_scc1 FK_FIN
            s_mov_b64 exec, s[34:35]
            """)
        else: a("s_mov_b64 exec, -1")
        a(f"""
FK_PL{it}:
        v_cmp_le_u32 s[36:37], v{m+3}, v{m+2}
        s_nop 1
        v_cndmask_b32_e64 v{m+5}, v37, v{m+3}, s[36:37]
        v_mul_u32_u24 v{m+5}, {ROWB}, v{m+5}
        v_add_u32 v{m+5}, v{m+5}, v23
        ds_read_b128 {vr(b+16,4)}, v{m+5}
        ds_read_b128 {vr(b+20,4)}, v{m+5} offset:128
        ds_read_b128 {vr(b+24,4)}, v{m+5} offset:256
        ds_read_b128 {vr(b+28,4)}, v{m+5} offset:384
        v_add_u32 v{m+3}, 1, v{m+3}
        v_cmp_le_u32 vcc, v{m+3}, v{m+2}
        s_waitcnt lgkmcnt(0)
        """)
        for i in range(16): a(f"v_add_f32 v{b+i}, v{b+i}, v{b+16+i}")
        a(f"s_cbranch_vccnz FK_PL{it}")
        a(f"""
        s_cmp_eq_u32 s18, 0
        s_cbranch_scc1 FK_NOSLOW{it}
        s_mul_i32 s26, s2, {NB*512}
        s_add_u32 s26, s26, {WS_TOT+it*512*64}
        v_lshlrev_b32 v{m+5}, 6, v0
        s_cmp_eq_u32 s16, 0
        s_cbranch_scc1 FK_NOLD{it}
        """)
        for j in range(4): a(f"buffer_load_dwordx4 {vr(b+16+4*j,4)}, v{m+5}, s[12:15], s26 offen offset:{16*j} sc1")
        a("s_waitcnt vmcnt(0)")
        for i in range(16): a(f"v_add_f32 v{b+i}, v{b+i}, v{b+16+i}")
        a(f"FK_NOLD{it}:")
        for j in range(4): a(f"buffer_store_dwordx4 {vr(b+4*j,4)}, v{m+5}, s[12:15], s26 offen offset:{16*j} sc1")
        a(f"s_waitcnt vmcnt(0)\nFK_NOSLOW{it}:")
        for i in range(8): a(f"v_add_f32 v{b+i}, 0x358637bd, v{b+i}")
        for i in range(8): a(f"v_rcp_f32 v{b+i}, v{b+i}")
        a("s_waitcnt vmcnt(3)" if it==0 else "s_waitcnt vmcnt(2)")
        for i in range(4):
            a(f"v_lshlrev_b32 v{b+16+i}, 16, v{x+i}")
            a(f"v_and_b32 v{b+20+i}, 0xffff0000, v{x+i}")
        for i in range(8): a(f"v_fma_f32 v{b+i}, v{b+i}, v{b+8+i}, v{b+16+i}")
        for i in range(4):
            a(f"v_lshlrev_b32 v{b+8+2*i}, 16, v{xr+i}")
            a(f"v_and_b32 v{b+9+2*i}, 0xffff0000, v{xr+i}")
        for i in range(8): a(f"v_max_f32 v{b+i}, 0, v{b+i}")
        for i in range(8): a(f"v_add_f32 v{b+i}, v{b+i}, v{b+8+i}")
        for i in range(4): a(f"v_cvt_pk_bf16_f32 v{b+8+i}, v{b+2*i}, v{b+1+2*i}")
        a(f"buffer_store_dwordx2 {vr(b+8,2)}, v{20+it}, s[8:11], 0 offen")
        a(f"buffer_store_dwordx2 {vr(b+10,2)}, v{20+it}, s[8:11], 0 offen offset:64")
    a(f"""
FK_FIN:
    s_mov_b64 exec, -1
    """)
    if opts.get("dbg"): a("s_waitcnt vmcnt(0)")
    dbg(5)
    stamp()
    if STAMP:
        a("s_waitcnt vmcnt(0)")
        stamp(); rstamp(62)
        a(f"""
        v_writelane_b32 v{SV}, s21, 63
        s_lshl_b32 s26, s2, 3
        s_add_u32 s26, s26, s3
        s_lshl_b32 s26, s26, 8
        s_add_u32 s26, s26, {WS_STAMP}
        v_lshlrev_b32 v4, 2, v1
        buffer_store_dword v{SV}, v4, s[12:15], s26 offen
        """)
    a(f"""
    s_cmp_eq_u32 s18, 0
    s_cbranch_scc1 FK_END
    s_add_u32 s16, s16, {SLOWR}
    s_add_u32 s17, s17, {SLOWR}
    s_cmp_ge_u32 s16, s19
    s_cbranch_scc1 FK_END
FK_REBATCH:
    s_waitcnt vmcnt(0) lgkmcnt(0)
    s_barrier
    v_mov_b32 v4, 0
    v_mov_b32 v5, 0
    v_mov_b32 v6, 0
    v_mov_b32 v7, 0
    v_mov_b32 v8, 0x10000
    v_mov_b32 v9, 0x10000
    v_add_u32 v11, {L_PMIN}, v{S_L8}
    ds_write_b64 v11, v[8:9]
    s_lshl_b32 s30, s3, 6
    s_add_u32 s30, s30, {L_BM}
    v_lshl_add_u32 v11, v1, 2, s30
    v_lshlrev_b32 v10, 4, v0
    v_add_u32 v10, {L_Z}, v10
    v_cmp_gt_u32 vcc, {(L_ZEND-L_Z)//16}, v0
    s_mov_b64 exec, 0xffff
    ds_write_b32 v11, v4
    s_and_b64 exec, vcc, vcc
    ds_write_b128 v10, v[4:7]
    s_mov_b64 exec, -1
    s_lshl_b32 s26, s70, 3
    s_add_u32 s26, s26, {WS_OFF}
    buffer_load_dwordx2 v[38:39], v{S_PO}, s[12:15], s26 offen sc1
    s_waitcnt lgkmcnt(0)
    s_barrier
    s_branch FK_XAD
FK_END:
    s_endpgm
    """)
    a(kd(name, 256, 102))
    return f"; @launch grid=({NBUCK},1,1) block=(512,1,1) lds={L_END}"
```

```python
from asmlib import *
from consts import *
import lp5 as lp4
from lp5 import *

S_HS=56; S_SC=57; S_C0=58; S_R1=59; S_C1=60; S_L12=61; S_L8=62; S_CB=63; S_PO=16; S_FA=17
SV=19
REC=128; HA=160; MASK=40
def rec(p): return REC+4*p
def msk(p): return sr(MASK+2*p,2)
D=[128,132]; S=[136,140]; EAr=[144,152]; BK=[160,164]; RK=[168,172]; T1=[176,180]
SC=184; WBR=200; WAU=148; XAC=224; PUB=[208,216]; CPO=[224,240]
TP=224
L1_HIST=[CH_BYTES,CH_BYTES+1024]; L1_BASE=[CH_BYTES+2048,CH_BYTES+3072]
SUBB=512*4*12
L_WCL=L_QI

def dpp_scan(a, v, op="v_add_u32", full=True):
    for sh in (1,2,4,8):
        a(f"s_nop 1\n{op}_dpp v{v}, v{v}, v{v} row_shr:{sh} row_mask:0xf bank_mask:0xf bound_ctrl:0")
    a(f"s_nop 1\n{op}_dpp v{v}, v{v}, v{v} row_bcast:15 row_mask:0xa bank_mask:0xf")
    if full: a(f"s_nop 1\n{op}_dpp v{v}, v{v}, v{v} row_bcast:31 row_mask:0xc bank_mask:0xf")

def xpf(a, first, n, dst):
    if n<=0: return
    a(f"""
    s_lshr_b32 s30, s2, 3
    s_mul_i32 s30, s30, 102400
    s_mul_i32 s31, s3, 12800
    s_add_u32 s30, s30, s31
    s_add_u32 s30, s30, {first*1024}
    v_lshlrev_b32 v{dst}, 4, v1
    """)
    for i in range(n):
        if i and i%4==0: a("s_add_u32 s30, s30, 4096")
        a(f"buffer_load_dwordx4 v[{dst+2}:{dst+5}], v{dst}, s[4:7], s30 offen offset:{(i%4)*1024}")

def gen_fk(a, opts):
    lp4.OPT.clear(); lp4.OPT.update(opts); lp4.WMODE=opts.get("wmode","stub"); lp4.STUBS.clear()
    name="gather_scatter__edge_featured_mpnn_gatedgcn__graph_kernel"
    a(khead(name))
    STAMP=opts.get("stamp",0)
    STF=opts.get("stf","sc1")
    LF=opts.get("lf","")
    WE=opts.get("we",0)
    RP1=opts.get("rp1",0)
    LATE1=opts.get("late1",1)
    cnt=[0]
    def stamp():
        if not STAMP: return
        a(f"s_memtime s[100:101]\ns_waitcnt lgkmcnt(0)\nv_writelane_b32 v{SV}, s100, {cnt[0]}")
        cnt[0]+=1
    def dbg(slot):
        if not opts.get("dbg"): return
        lab=a.label("DBG")
        a(f"""
        s_lshr_b32 s100, s2, 1
        s_or_b32 s100, s100, s3
        s_cbranch_scc1 {lab}
        s_mul_i32 s101, s2, 28
        v_mov_b32 v18, s101
        s_memrealtime s[100:101]
        s_waitcnt lgkmcnt(0)
        v_mov_b32 v19, s100
        s_mov_b64 exec, 1
        global_store_dword v18, v19, s[88:89] offset:{slot*4}
        s_mov_b64 exec, -1
{lab}:
        """)
    def rstamp(i):
        if STAMP: a(f"s_memrealtime s[100:101]\ns_waitcnt lgkmcnt(0)\nv_writelane_b32 v{SV}, s100, {i}")
    T=TP
    NT=512
    a(f"""
    s_cmp_ge_u32 s2, {NBUCK}
    s_cbranch_scc1 FK_END
    s_load_dwordx16 s[68:83], s[0:1], 0
    s_load_dwordx8 s[84:91], s[0:1], 64
    s_memrealtime s[94:95]
    v_lshrrev_b32 v2, 6, v0
    v_and_b32 v1, 63, v0
    v_readfirstlane_b32 s3, v2
    s_mul_i32 s26, s2, {CH_QUADS}
    v_add_u32 v4, s26, v0              ; quad0
    v_lshlrev_b32 v5, 4, v4
    v_lshlrev_b32 v6, 5, v4
    v_add_u32 v7, {NT}, v4
    v_cmp_gt_u32 vcc, {E//4}, v4
    s_mov_b64 s[40:41], vcc
    v_cmp_gt_u32 vcc, {CH_QUADS-NT}, v0
    s_mov_b64 s[42:43], vcc
    v_cmp_gt_u32 vcc, {E//4}, v7
    s_and_b64 s[42:43], s[42:43], vcc
    v_add_u32 v8, {NT*16}, v5
    v_add_u32 v9, {NT*32}, v6
    v_lshlrev_b32 v23, 4, v0           ; tid*16
    v_mov_b32 v12, 0
    v_mov_b32 v13, 0
    v_mov_b32 v14, 0
    v_mov_b32 v15, 0
    v_lshlrev_b32 v{S_L8}, 3, v1
    s_cmp_lg_u32 s3, 7
    s_cbranch_scc1 FK_N7
    v_mov_b32 v10, 0x10000
    v_mov_b32 v11, 0x10000
    v_add_u32 v22, {L_PMIN}, v{S_L8}
    ds_write_b64 v22, v[10:11]
FK_N7:
    s_cmp_lg_u32 s3, 6
    s_cbranch_scc1 FK_N6
    v_lshlrev_b32 v11, 4, v1
    ds_write_b128 v11, v[12:15] offset:{L1_HIST[0]}
    ds_write_b128 v11, v[12:15] offset:{L1_HIST[1]}
FK_N6:
    s_lshl_b32 s30, s3, 6
    s_add_u32 s30, s30, {L_BM}
    v_lshl_add_u32 v11, v1, 2, s30
    v_add_u32 v22, {L_Z}, v23
    v_cmp_gt_u32 vcc, {(L_ZEND-L_Z)//16}, v0
    s_mov_b64 exec, 0xffff
    ds_write_b32 v11, v12
    s_and_b64 exec, vcc, vcc
    s_cbranch_execz FK_NOZ
    ds_write_b128 v22, v[12:15]
FK_NOZ:
    s_mov_b64 exec, -1
    """)
    rstamp(61); stamp()
    a(f"""
    s_waitcnt lgkmcnt(0)
    s_barrier
    """)
    F,Gs=opts.get("order",[0,1])
    def loads(u):
        return f"""
    s_mov_b64 exec, {sr(40+2*u,2)}
    global_load_dwordx4 {vr(D[u],4)}, v{[5,8][u]+(200 if False else 0)}, s[74:75] {LF}
    global_load_dwordx4 {vr(S[u],4)}, v{[5,8][u]}, s[72:73] {LF}
    global_load_dwordx4 {vr(EAr[u],4)}, v{[6,9][u]}, s[56:57] {LF}
    global_load_dwordx4 {vr(EAr[u]+4,4)}, v{[6,9][u]}, s[56:57] offset:16 {LF}
    s_mov_b64 exec, -1
    """
    a("s_mov_b64 s[56:57], s[70:71]")
    a(loads(F))
    if F==1: a("v_mov_b32 v8, v5\nv_mov_b32 v9, v6")
    set1=loads(1) if F==0 else loads(0).replace("v5,","v8,").replace("v6,","v9,")
    dbg(2)
    a(f"""
    s_or_b32 s30, s2, s3
    s_cbranch_scc1 FK_N0
    v_mov_b32 v12, s94
    v_mov_b32 v13, s95
    v_mov_b32 v4, 0
    s_mov_b64 exec, 1
    global_store_dwordx2 v4, v[12:13], s[88:89] sc0 sc1
    s_mov_b64 exec, -1
FK_N0:
    s_and_b32 s70, s2, 7
    s_lshl_b32 s70, s70, 5
    s_lshr_b32 s30, s2, 3
    s_or_b32 s70, s70, s30             ; bucket
    {'s_mov_b32 s70, s2' if opts.get('nomap') else ''}
    s_mov_b32 s4, s68
    s_and_b32 s5, s69, 0xffff
    s_mov_b32 s6, {N*128}
    s_mov_b32 s7, 0x20000
    s_lshr_b32 s27, s3, 1              ; nt
    s_and_b32 s28, s3, 1               ; cb
    v_lshrrev_b32 v12, 3, v1           ; r3
    v_and_b32 v13, 7, v1               ; c
    v_lshrrev_b32 v14, 2, v12
    v_xor_b32 v13, v13, v14
    v_lshlrev_b32 v13, 4, v13          ; swz0
    s_mul_i32 s29, s70, {NB}
    s_lshl_b32 s30, s27, 5
    s_add_u32 s29, s29, s30
    s_lshl_b32 s30, s28, 1
    s_add_u32 s29, s29, s30
    s_lshl_b32 s29, s29, 7
    v_lshlrev_b32 v14, 9, v12
    v_add_u32 v14, s29, v14
    s_lshl_b32 s30, s28, 6
    v_xor_b32 v15, s30, v13
    v_add_u32 v20, v14, v15
    v_xor_b32 v15, 32, v15
    v_add3_u32 v21, v14, v15, 64
    v_add_u32 v21, 64, v21
    v_lshlrev_b32 v5, 4, v1
    v_mov_b32 v7, 1
    """)
    def scale8(src, tmp):
        for i in range(4):
            a(f"v_lshlrev_b32 v{tmp+2*i}, 16, v{src+i}")
            a(f"v_and_b32 v{tmp+2*i+1}, 0xffff0000, v{src+i}")
        for i in range(8): a(f"v_mul_f32 v{tmp+i}, {NLOG2E}, v{tmp+i}")
        for i in range(4): a(f"v_cvt_pk_bf16_f32 v{src+i}, v{tmp+2*i}, v{tmp+2*i+1}")
    def hist1(u):
        a(f"s_mov_b64 exec, {sr(40+2*u,2)}")
        if u==1: a("s_cbranch_execz FK_NH1")
        for i in range(4): a(f"v_mul_u32_u24 v{BK[u]+i}, {BMAGIC}, v{D[u]+i}")
        for i in range(4): a(f"v_lshrrev_b32 v{BK[u]+i}, {BSHIFT}, v{BK[u]+i}")
        for i in range(4): a(f"v_mul_u32_u24 v{T1[u]+i}, {NB}, v{BK[u]+i}")
        for i in range(4): a(f"v_lshlrev_b32 v{BK[u]+i}, 2, v{BK[u]+i}")
        for i in range(4): a(f"ds_add_rtn_u32 v{RK[u]+i}, v{BK[u]+i}, v7 offset:{L1_HIST[u]}")
        for i in range(4): a(f"v_sub_u32 v{D[u]+i}, v{D[u]+i}, v{T1[u]+i}")
        if u==1: a("FK_NH1:")
        a("s_mov_b64 exec, -1")
    def scan1(u):
        a(f"""
        s_waitcnt lgkmcnt(0)
        v_add_u32 v{SC+5}, v{SC}, v{SC+1}
        v_add_u32 v{SC+6}, v{SC+5}, v{SC+2}
        v_add_u32 v{SC+7}, v{SC+6}, v{SC+3}
        v_mov_b32 v{SC+4}, v{SC+7}
        """)
        dpp_scan(a, SC+4)
        a(f"""
        v_sub_u32 v{SC+8}, v{SC+4}, v{SC+7}
        {'v_add_u32 v%d, 2048, v%d'%(SC+8,SC+8) if u else ''}
        v_add_u32 v{SC+9}, v{SC+8}, v{SC}
        v_add_u32 v{SC+10}, v{SC+8}, v{SC+5}
        v_add_u32 v{SC+11}, v{SC+8}, v{SC+6}
        ds_write_b128 v5, v[{SC+8}:{SC+11}] offset:{L1_BASE[u]}
        s_mov_b64 exec, {sr(40+2*u,2)}
        """)
        for i in range(4): a(f"ds_read_b32 v{T1[u]+i}, v{BK[u]+i} offset:{L1_BASE[u]}")
        a("s_mov_b64 exec, -1")
        for c in range(4): a(f"v_lshl_or_b32 v{PUB[u]+2*c}, v{SC+c}, 12, v{SC+8+c}")
    def scat1(u):
        a(f"s_mov_b64 exec, {sr(40+2*u,2)}")
        for i in range(4): a(f"v_add_u32 v{T1[u]+i}, v{T1[u]+i}, v{RK[u]+i}")
        for i in range(4): a(f"v_mul_u32_u24 v{T1[u]+i}, 12, v{T1[u]+i}")
        for i in range(4): a(f"v_lshl_or_b32 v{S[u]+i}, v{D[u]+i}, 16, v{S[u]+i}")
        for i in range(4):
            a(f"ds_write2_b32 v{T1[u]+i}, v{EAr[u]+2*i}, v{EAr[u]+1+2*i} offset0:0 offset1:1")
            a(f"ds_write_b32 v{T1[u]+i}, v{S[u]+i} offset:8")
        a("s_mov_b64 exec, -1")
    def wl():
        a(f"""
        s_lshl_b32 s30, s3, 10
        s_add_u32 m0, s30, {L_STG+8192}
        global_load_dwordx4 {vr(WBR,4)}, v23, s[78:79]
        global_load_lds_dwordx4 v23, s[84:85]
        s_add_u32 m0, s30, {L_STG+16384}
        s_lshl_b32 s31, s3, 11
        global_load_lds_dwordx4 v23, s[76:77]
        s_add_u32 m0, s30, {L_STG+24576}
        s_nop 0
        global_load_lds_dwordx4 v23, s[82:83]
        s_add_u32 m0, s31, {L_EA}
        s_nop 0
        buffer_load_dwordx4 v20, s[4:7], 0 offen lds
        s_add_u32 m0, s31, {L_EA+1024}
        s_nop 0
        buffer_load_dwordx4 v21, s[4:7], 0 offen lds
        s_mov_b32 exec_hi, 0
        global_load_dwordx4 v[12:15], v5, s[80:81]
        s_mov_b32 exec_hi, -1
        """)
    if WE==1: wl()
    a(f"""
    s_mul_i32 s26, s2, {CH_BYTES}
    s_add_u32 s26, s26, {WS_REC}
    s_add_u32 s32, s90, s26
    s_addc_u32 s33, s91, 0
    s_and_b32 s33, s33, 0xffff
    s_mov_b32 s34, {CH_BYTES}
    s_mov_b32 s35, 0x20000
    """)
    a(f"""
    s_sub_u32 s96, s68, 3072
    s_subb_u32 s97, s69, 0
    s_and_b32 s97, s97, 0xffff
    s_mov_b32 s98, {N*128+3072}
    s_mov_b32 s99, 0x20000
    v_lshrrev_b32 v233, 3, v1
    v_and_b32 v234, 7, v1
    v_lshrrev_b32 v232, 2, v233
    v_xor_b32 v234, v234, v232
    v_lshlrev_b32 v234, 4, v234
    s_mov_b32 s8, s86
    s_and_b32 s9, s87, 0xffff
    s_mov_b32 s10, {N*128}
    s_mov_b32 s11, 0x20000
    s_mov_b32 s16, 0
    s_mov_b32 s17, 0xffff
    s_mov_b32 s18, 0
    s_mov_b32 s67, 0
    v_add_u32 v{SWZ}, 3072, v234
    v_xor_b32 v{SWZ+1}, 32, v234
    v_add_u32 v{SWZ+1}, 2048, v{SWZ+1}
    v_xor_b32 v{SWZ+2}, 64, v234
    v_add_u32 v{SWZ+2}, 1024, v{SWZ+2}
    v_xor_b32 v{SWZ+3}, 96, v234
    v_and_b32 v{S_R1}, 1, v233
    v_lshrrev_b32 v{S_C1}, 1, v233
    v_lshlrev_b32 v{S_C1}, 4, v{S_C1}
    v_add_u32 v{S_C1}, {L_SF}, v{S_C1}
    v_and_b32 v2, 31, v1
    v_lshrrev_b32 v3, 5, v1
    v_lshlrev_b32 v{L4N}, 2, v2
    v_and_b32 v224, 3, v2
    v_lshrrev_b32 v231, 2, v2
    v_lshlrev_b32 v225, 10, v224
    v_lshl_add_u32 v225, v231, 7, v225
    v_lshrrev_b32 v226, 2, v231
    v_lshl_or_b32 v226, v224, 1, v226
    v_xor_b32 v226, v226, v3
    v_lshl_add_u32 v225, v226, 4, v225
    s_lshl_b32 s24, s3, 12
    s_add_u32 s24, s24, {L_STG}
    v_add_u32 v{AAD}, s24, v225
    v_xor_b32 v226, 32, v225
    v_add_u32 v{AAD+1}, s24, v226
    v_xor_b32 v226, 64, v225
    v_add_u32 v{AAD+2}, s24, v226
    v_xor_b32 v226, 96, v225
    v_add_u32 v{AAD+3}, s24, v226
    v_and_b32 v{S_HS}, 1, v231
    v_lshrrev_b32 v227, 1, v231
    v_lshl_add_u32 v228, v227, 2, v224
    v_lshlrev_b32 v{AEI}, 6, v3
    v_sub_u32 v{AEI}, 128, v{AEI}
    v_lshrrev_b32 v{S_SC}, 2, v{AEI}
    v_lshrrev_b32 v229, 4, v{AEI}
    v_mul_u32_u24 v230, {L_SF-L_EA}, v3
    v_mad_u32_u24 v{S_C0}, v228, v229, v230
    v_add_u32 v{S_C0}, {L_EA}, v{S_C0}
    v_cmp_eq_u32 s[36:37], v{S_HS}, v3
    v_mov_b32 v228, 7
    v_mov_b32 v229, 0x3f80
    v_cndmask_b32_e64 v227, v228, v227, s[36:37]
    """)
    a(f"""
    v_and_b32 v228, 1, v227
    v_lshlrev_b32 v228, 4, v228
    v_lshlrev_b32 v229, v228, v229
    v_lshrrev_b32 v227, 1, v227
    v_cmp_eq_u32 s[60:61], 0, v227
    v_cmp_eq_u32 s[62:63], 1, v227
    v_mul_u32_u24 v{S_L12}, 12, v1
    v_mov_b32 v{S_FA}, {L_FLAG}
    v_cndmask_b32_e64 v{AOH[0]}, 0, v229, s[60:61]
    v_cndmask_b32_e64 v{AOH[0]+1}, 0, v229, s[62:63]
    """)
    a(f"""
    s_lshl_b32 s31, s3, 5
    v_add_u32 v224, s31, v2
    v_mul_u32_u24 v{S_CB}, {CH_BYTES}, v224
    v_add_u32 v{S_CB}, {WS_REC}, v{S_CB}
    v_lshlrev_b32 v{S_PO}, 12, v224
    v_lshl_add_u32 v{S_PO}, v3, 11, v{S_PO}
    """)
    a(f"""
    v_and_b32 v227, 15, v1
    v_lshrrev_b32 v228, 2, v227
    v_lshlrev_b32 v228, 7, v228
    v_and_b32 v227, 3, v227
    v_lshl_add_u32 v228, v227, 3, v228
    v_lshl_add_u32 v228, v3, 10, v228
    v_and_b32 v227, 16, v1
    v_lshl_add_u32 v228, v227, 1, v228
    v_add_u32 v40, {L_STG}, v228
    s_lshr_b32 s58, s3, 2
    s_and_b32 s59, s3, 3               ; nt
    s_lshl_b32 s30, s58, 13
    v_add_u32 v41, s30, v40
    v_add_u32 v42, {L_WCL}, v228
    s_lshl_b32 s30, s59, 12
    s_sub_u32 s30, s30, s24
    s_add_u32 s30, s30, {L_EA}
    """)
    for s in range(4): a(f"v_add_u32 v{204+s}, s30, v{AAD+s}")
    stamp()
    a("s_waitcnt vmcnt(10)" if WE==1 else "s_waitcnt vmcnt(3)")
    a(set1)
    if WE==2: wl()
    if opts.get("warm",1):
        a(f"""
        s_cmp_lt_u32 s3, 5
        s_cbranch_scc1 FK_NOWARM
        v_lshlrev_b32 v10, 7, v1
        s_cmp_eq_u32 s3, 7
        s_cbranch_scc1 FK_WARM7
        s_cmp_eq_u32 s3, 5
        s_cselect_b32 s36, s78, s76
        s_cselect_b32 s37, s79, s77
        s_cselect_b32 s38, s84, s82
        s_cselect_b32 s39, s85, s83
        global_load_dword v11, v10, s[36:37]
        global_load_dword v12, v10, s[38:39]
        s_branch FK_NOWARM
FK_WARM7:
        s_mul_i32 s30, s70, {NB*128}
        buffer_load_dword v11, v10, s[4:7], s30 offen
        s_add_u32 s30, s30, 8192
        buffer_load_dword v12, v10, s[4:7], s30 offen
FK_NOWARM:
        """)
    stamp()
    NC={0:3,1:2}; OFFS={0:0,1:SUBB}
    s_lab=[0]
    def only1(u,fn):
        if u==1:
            s_lab[0]+=1; l=f"FK_O1_{s_lab[0]}"
            a(f"s_cmp_gt_u32 s3, 4\ns_cbranch_scc1 {l}"); fn(); a(f"{l}:")
        else: fn()
    hist1(F)
    a(f"s_waitcnt lgkmcnt(0)\ns_barrier\nds_read_b128 v[{SC}:{SC+3}], v5 offset:{L1_HIST[F]}")
    def part1():
        scan1(F); a("s_waitcnt vmcnt(11) lgkmcnt(0)" if WE else "s_waitcnt vmcnt(4) lgkmcnt(0)"); scat1(F)
    only1(F,part1)
    stamp()
    a("s_waitcnt vmcnt(10)" if WE==2 else "s_waitcnt vmcnt(3)")
    hist1(Gs)
    def stg():
        scale8(WBR, 240)
        a(f"""
        v_add_u32 v10, {L_STG}, v23
        ds_write_b128 v10, {vr(WBR,4)}
        s_cmp_lg_u32 s3, 7
        s_cbranch_scc1 FK_N7C
        """)
        scale8(12, 240)
        a(f"""
        v_add_u32 v10, {L_WCL}, v5
        s_mov_b32 exec_hi, 0
        ds_write_b128 v10, v[12:15]
        s_mov_b32 exec_hi, -1
FK_N7C:
        """)
    if WE==1: stg()
    a("s_waitcnt lgkmcnt(0)")
    stamp()
    a("s_barrier")
    for i in range(NC[F]): a(f"ds_read_b128 {vr(CPO[0]+4*i,4)}, v23 offset:{OFFS[F]+i*NT*16}")
    a(f"ds_read_b128 v[{SC}:{SC+3}], v5 offset:{L1_HIST[Gs]}")
    a("v_mov_b32 v37, 0\nglobal_load_dwordx2 v[38:39], v37, s[88:89] sc0 sc1")
    if F==1: a(f"s_mov_b32 s34, {CH_BYTES}")
    for i in range(NC[F]):
        a(f"s_waitcnt lgkmcnt({NC[F]-i})")
        a(f"s_mov_b32 s31, {OFFS[F]+i*NT*16}")
        a(f"buffer_store_dwordx4 {vr(CPO[0]+4*i,4)}, v23, s[32:35], s31 offen {STF}")
    stamp()
    def part2():
        scan1(Gs); a(f"s_waitcnt vmcnt({NC[F]+1+(7 if WE==2 else 0)}) lgkmcnt(0)"); scat1(Gs)
    only1(Gs,part2)
    if WE==2:
        a(f"s_waitcnt vmcnt({NC[F]+1}) lgkmcnt(0)")
        stg()
    a("s_waitcnt lgkmcnt(0)")
    stamp()
    a("s_barrier")
    for i in range(NC[Gs]): a(f"ds_read_b128 {vr(CPO[1]+4*i,4)}, v23 offset:{OFFS[Gs]+i*NT*16}")
    for i in range(NC[Gs]):
        a(f"s_waitcnt lgkmcnt({NC[Gs]-1-i})")
        a(f"s_mov_b32 s31, {OFFS[Gs]+i*NT*16}")
        a(f"buffer_store_dwordx4 {vr(CPO[1]+4*i,4)}, v23, s[32:35], s31 offen {STF}")
    if WE:
        for s in range(4): a(f"ds_read_b128 {vr(A[0]+4*s,4)}, v{204+s}")
        for cb in range(2):
            for s in range(4):
                for hh in range(2):
                    a(f"ds_read_b64_tr_b16 {vr(WAU+(cb*4+s)*4+2*hh,2)}, v41 offset:{16384+s*2048+cb*64+hh*512}")
        a(f"""
        s_waitcnt lgkmcnt(8)
        """)
        for cb in range(2):
            if cb: a("s_waitcnt lgkmcnt(0)")
            for s in range(4):
                a(f"v_mfma_f32_32x32x16_bf16 {vr(XAC+16*cb,16)}, {vr(A[0]+4*s,4)}, {vr(WAU+16*cb+4*s,4)}, {'0' if s==0 else vr(XAC+16*cb,16)}")
    stamp()
    a(f"""
    s_mov_b32 s12, s90
    s_and_b32 s13, s91, 0xffff
    s_mov_b32 s14, {WS_SIZE}
    s_mov_b32 s15, 0x20000
    """)
    a(f"""
    s_waitcnt vmcnt(5)
    s_mov_b32 s31, 400000
FK_NONCE:
    v_readfirstlane_b32 s92, v38
    v_readfirstlane_b32 s93, v39
    s_or_b32 s30, s92, s93
    s_cbranch_scc1 FK_NONCED
    s_sub_u32 s31, s31, 1
    s_cbranch_scc1 FK_NONCED
    s_sleep 1
    global_load_dwordx2 v[38:39], v37, s[88:89] sc0 sc1
    s_waitcnt vmcnt(0)
    s_branch FK_NONCE
FK_NONCED:
    s_lshr_b64 s[94:95], s[92:93], 8
    s_lshl_b32 s92, s92, 24
    s_mov_b32 s93, s94
    s_cmp_lg_u32 s3, 0
    s_cbranch_scc1 FK_NOPW
    """)
    for u in range(2):
        for c in range(4): a(f"v_or_b32 v{PUB[u]+2*c}, s92, v{PUB[u]+2*c}\nv_mov_b32 v{PUB[u]+2*c+1}, s93")
    a(f"""
    v_lshlrev_b32 v6, 5, v1
    s_lshl_b32 s29, s2, 12
    s_add_u32 s29, s29, {WS_OFF}
FK_NOPW:
    """)
    stamp()
    a("s_waitcnt vmcnt(0)")
    stamp()
    a(f"""
    s_barrier
    s_cmp_lg_u32 s3, 0
    s_cbranch_scc1 FK_NOPUB
    buffer_store_dwordx4 {vr(PUB[0],4)}, v6, s[12:15], s29 offen sc1
    buffer_store_dwordx4 {vr(PUB[0]+4,4)}, v6, s[12:15], s29 offen offset:16 sc1
    buffer_store_dwordx4 {vr(PUB[1],4)}, v6, s[12:15], s29 offen offset:2048 sc1
    buffer_store_dwordx4 {vr(PUB[1]+4,4)}, v6, s[12:15], s29 offen offset:2064 sc1
    s_lshl_b32 s29, s2, 2
    s_add_u32 s29, s29, {WS_RDY}
    s_mov_b64 exec, 1
    buffer_store_dword v{PUB[0]+1}, v37, s[12:15], s29 offen sc1
    s_mov_b64 exec, -1
FK_NOPUB:
    """)
    dbg(7)
    rstamp(55)
    a(f"""
    s_lshl_b32 s26, s70, 3
    s_add_u32 s26, s26, {WS_OFF}
    """)
    if not WE:
        a(f"""
        s_lshl_b32 s30, s3, 10
        s_add_u32 m0, s30, {L_STG+8192}
        global_load_dwordx4 {vr(WBR,4)}, v23, s[78:79]
        global_load_lds_dwordx4 v23, s[84:85]
        s_add_u32 m0, s30, {L_STG+16384}
        s_lshl_b32 s31, s3, 11
        global_load_lds_dwordx4 v23, s[76:77]
        s_add_u32 m0, s30, {L_STG+24576}
        s_nop 0
        global_load_lds_dwordx4 v23, s[82:83]
        s_add_u32 m0, s31, {L_EA}
        s_nop 0
        buffer_load_dwordx4 v20, s[4:7], 0 offen lds
        s_add_u32 m0, s31, {L_EA+1024}
        s_nop 0
        buffer_load_dwordx4 v21, s[4:7], 0 offen lds
        s_mov_b32 exec_hi, 0
        global_load_dwordx4 v[12:15], v5, s[80:81]
        s_mov_b32 exec_hi, -1
        """)

        if STAMP==2: stamp()
        a("s_waitcnt vmcnt(0)")
        if STAMP==2: stamp()
        scale8(WBR, SC)
        a(f"""
        v_add_u32 v10, {L_STG}, v23
        ds_write_b128 v10, {vr(WBR,4)}
        s_cmp_lg_u32 s3, 7
        s_cbranch_scc1 FK_N7B
        """)
        scale8(12, SC)
        a(f"""
        v_add_u32 v10, {L_WCL}, v5
        s_mov_b32 exec_hi, 0
        ds_write_b128 v10, v[12:15]
        s_mov_b32 exec_hi, -1
FK_N7B:
        """)
        a("s_waitcnt lgkmcnt(0)\ns_barrier")
        for s in range(4): a(f"ds_read_b128 {vr(A[0]+4*s,4)}, v{204+s}")
        for cb in range(2):
            for s in range(4):
                for hh in range(2):
                    a(f"ds_read_b64_tr_b16 {vr(WAU+(cb*4+s)*4+2*hh,2)}, v41 offset:{16384+s*2048+cb*64+hh*512}")
        a(f"""
        s_waitcnt lgkmcnt(8)
        """)
        for cb in range(2):
            if cb: a("s_waitcnt lgkmcnt(0)")
            for s in range(4):
                a(f"v_mfma_f32_32x32x16_bf16 {vr(XAC+16*cb,16)}, {vr(A[0]+4*s,4)}, {vr(WAU+16*cb+4*s,4)}, {'0' if s==0 else vr(XAC+16*cb,16)}")
    if STAMP==2: stamp()
    a(f"""
    s_lshl_b32 s27, s3, 7
    s_add_u32 s27, s27, {WS_RDY}
    {'' if RP1 else 'buffer_load_dword v38, v%d, s[12:15], s27 offen sc1'%L4N}
    """)
    for m in range(2):
        for s in range(4):
            for cb in range(2):
                for hh in range(2):
                    a(f"ds_read_b64_tr_b16 {vr(WB+m*32+(s*2+cb)*4+2*hh,2)}, v40 offset:{m*8192+s*2048+cb*64+hh*512}")
    a(f"""
    ds_read_b64_tr_b16 {vr(WC[0],2)}, v42
    ds_read_b64_tr_b16 {vr(WC[1],2)}, v42 offset:64
    """)
    if STAMP==2: stamp()
    a(f"""
    s_cmp_lg_u32 s58, 0
    s_cbranch_scc1 FK_XU
    v_mul_u32_u24 v7, {4*ROWB}, v3
    v_add_u32 v7, v{L4N}, v7
    s_mul_i32 s31, s59, {32*ROWB}
    s_add_u32 s31, s31, 512
    v_add_u32 v7, s31, v7
    """)
    for i in range(32): a(f"v_mul_f32 v{XAC+i}, {NLOG2E}, v{XAC+i}")
    for i in range(16): a(f"v_cvt_pk_bf16_f32 v{XAC+i}, v{XAC+i}, v{XAC+16+i}")
    a("s_cmp_eq_u32 s59, 3\ns_cbranch_scc1 FK_XA3")
    for i in range(16): a(f"ds_write_b32 v7, v{XAC+i} offset:{((i>>2)*8+(i&3))*ROWB}")
    a(f"""
    s_branch FK_XA4
FK_XA3:
    s_mov_b32 exec_hi, 0
    ds_write_b32 v7, v{XAC} offset:0
    ds_write_b32 v7, v{XAC+1} offset:{ROWB}
    s_mov_b64 exec, -1
    s_branch FK_XA4
FK_XU:
    v_lshl_add_u32 v8, v3, 9, v{L4N}
    s_lshl_b32 s31, s2, 14
    s_lshl_b32 s30, s59, 12
    s_add_u32 s31, s31, s30
    s_add_u32 s31, s31, {WS_XU}
    """)
    XD=opts.get("xud",0)
    XS_=208 if XD else XAC
    for i in range(16): a(f"v_cvt_pk_bf16_f32 v{XS_+i}, v{XAC+i}, v{XAC+16+i}")
    def xust(lab):
        for i in range(16):
            if i==2: a(f"s_cmp_eq_u32 s59, 3\ns_cbranch_scc1 {lab}")
            a(f"buffer_store_dword v{XS_+i}, v{193 if XD else 8}, s[12:15], s{73 if XD else 31} offen offset:{((i>>2)*8+(i&3))*128} {opts.get('xuf','')}")
    if XD: a("v_mov_b32 v193, v8\ns_mov_b32 s73, s31")
    else: xust("FK_XA4")
    a(f"""
FK_XA4:
    s_waitcnt lgkmcnt(0)
    s_mov_b32 exec_lo, 0
    v_mov_b32 v{WC[0]}, {BIG16<<16}
    v_mov_b32 v{WC[0]+1}, 0
    v_mov_b32 v{WC[1]}, {BIG16<<16}
    v_mov_b32 v{WC[1]+1}, 0
    s_mov_b32 exec_lo, -1
FK_XAD:
    s_mov_b32 s74, 0x05040100
    s_mov_b32 s75, 0x07060302
    s_lshl_b32 s29, s3, 8
    s_add_u32 s29, s29, {L_ADJ}
    s_lshl_b32 s30, s3, 6
    s_add_u32 s30, s30, {L_BM}
    s_mov_b32 s31, 400000
    s_mov_b64 s[64:65], -1
    """)
    stamp()
    if RP1:
        a(f"""
        s_cmp_lg_u32 s67, 0
        s_cbranch_scc1 FK_RGOT
        s_cmp_lg_u32 s3, {opts.get('rpw',7)}
        s_cbranch_scc1 FK_RBAR
        v_lshlrev_b32 v12, 4, v1
        s_mov_b32 s27, {WS_RDY}
FK_RPOLL:
        buffer_load_dwordx4 v[8:11], v12, s[12:15], s27 offen sc1
        s_waitcnt vmcnt(0)
        v_cmp_ne_u32 s[34:35], s93, v8
        v_cmp_ne_u32 s[36:37], s93, v9
        v_cmp_ne_u32 s[38:39], s93, v10
        v_cmp_ne_u32 vcc, s93, v11
        s_or_b64 s[34:35], s[34:35], s[36:37]
        s_or_b64 s[38:39], s[38:39], vcc
        s_or_b64 s[34:35], s[34:35], s[38:39]
        s_cbranch_scc0 FK_RBAR
        s_sub_u32 s31, s31, 1
        s_cbranch_scc1 FK_RBAR
        s_sleep {opts.get('rsleep',8)}
        s_branch FK_RPOLL
FK_RBAR:
        s_barrier
        """)
    else:
        a(f"""
FK_RPOLL:
        s_waitcnt vmcnt(0)
        v_cmp_ne_u32 vcc, s93, v38
        s_cbranch_vccz FK_RGOT
        s_sub_u32 s31, s31, 1
        s_cbranch_scc1 FK_RGOT
        s_sleep {opts.get('sleep',2)}
        buffer_load_dword v38, v{L4N}, s[12:15], s27 offen sc1
        s_branch FK_RPOLL
        """)
    a(f"""
FK_RGOT:
    s_mov_b32 s31, 400000
    """)
    rstamp(56)
    a(f"""
    buffer_load_dwordx2 v[38:39], v{S_PO}, s[12:15], s26 offen sc1
FK_POLL:
    s_waitcnt vmcnt(0)
    v_and_b32 v8, 0xff000000, v38
    v_cmp_eq_u32 s[34:35], s93, v39
    v_cmp_eq_u32 s[36:37], s92, v8
    s_nand_b64 s[34:35], s[34:35], s[36:37]
    s_cbranch_scc0 FK_GOT
    """)
    if opts.get("pfn",0):
        a(f"""
        s_andn2_b64 s[36:37], s[64:65], s[34:35]
        s_cbranch_scc0 FK_NOPF
        s_mov_b64 s[64:65], s[34:35]
        s_mov_b64 exec, s[36:37]
        v_and_b32 v9, 0xfff, v38
        v_bfe_u32 v10, v38, 12, 12
        v_mad_u32_u24 v9, v9, 12, v{S_CB}
        v_mad_u32_u24 v10, v10, 12, v9
        buffer_load_dword v11, v9, s[12:15], 0 offen sc1
        {'buffer_load_dword v14, v10, s[12:15], 0 offen sc1' if opts['pfn']>1 else ''}
FK_NOPF:
        """)
    a(f"""
    s_sub_u32 s31, s31, 1
    s_cbranch_scc1 FK_GOT
    s_sleep {opts.get('sleep',4)}
    s_mov_b64 exec, s[34:35]
    buffer_load_dwordx2 v[38:39], v{S_PO}, s[12:15], s26 offen sc1
    s_mov_b64 exec, -1
    s_branch FK_POLL
FK_GOT:
    s_mov_b64 exec, -1
    """)
    dbg(6)
    rstamp(57)
    stamp()
    a(f"""
    v_bfe_u32 v8, v38, 12, 12
    v_and_b32 v9, 0xfff, v38
    v_mov_b32 v{T+6}, v8
    v_min_u32 v8, s17, v8
    v_subrev_u32 v8, s16, v8
    v_max_i32 v8, 0, v8
    v_mov_b32 v10, v8
    v_add_u32 v9, s16, v9
    """)
    dpp_scan(a, 10)
    B0=T+8
    a(f"""
    v_cmp_lt_u32 s[34:35], 0, v8
    v_sub_u32 v11, v10, v8
    v_readlane_b32 s20, v10, 63
    v_sub_u32 v9, v9, v11
    v_mul_i32_i24 v9, 12, v9
    v_add_u32 v9, v9, v{S_CB}
    v_mbcnt_lo_u32_b32 v12, s34, 0
    v_mbcnt_hi_u32_b32 v12, s35, v12
    v_lshl_add_u32 v12, v12, 2, s29
    v_add_u32 v13, -1, v11
    v_lshrrev_b32 v14, 5, v13
    v_min_u32 v14, 15, v14
    v_lshl_add_u32 v14, v14, 2, s30
    v_lshlrev_b32 v13, v13, 1
    v_cmp_lt_u32 s[36:37], 0, v11
    v_mov_b32 v{T+5}, s30
    s_mov_b64 exec, s[34:35]
    ds_write_b32 v12, v9
    s_and_b64 exec, s[34:35], s[36:37]
    ds_or_b32 v14, v13
    s_mov_b64 exec, -1
    ds_read_b128 {vr(B0,4)}, v{T+5}
    ds_read_b128 {vr(B0+4,4)}, v{T+5} offset:16
    ds_read_b128 {vr(B0+8,4)}, v{T+5} offset:32
    ds_read_b128 {vr(B0+12,4)}, v{T+5} offset:48
    s_lshr_b32 s31, s29, 2
    v_mov_b32 v15, s31
    """)
    for p in range(NPASS):
        a(f"""
        s_sub_i32 s31, s20, {64*p}
        v_cmp_gt_i32 {msk(p)}, s31, v1
        """)
    def adr(p):
        if p%2==0: a(f"s_waitcnt lgkmcnt({3-p//2+p})")
        lo=B0+2*p; hi=lo+1
        a(f"""
        v_mbcnt_lo_u32_b32 v{HA+p}, v{lo}, v15
        v_mbcnt_hi_u32_b32 v{HA+p}, v{hi}, v{HA+p}
        {'v_bcnt_u32_b32 v15, v%d, v15'%lo if p<NPASS-1 else ''}
        v_lshlrev_b32 v{HA+p}, 2, v{HA+p}
        {'v_bcnt_u32_b32 v15, v%d, v15'%hi if p<NPASS-1 else ''}
        ds_read_b32 v{HA+p}, v{HA+p}
        """)
    def ld(p,n):
        a(f"""
        s_waitcnt lgkmcnt({n-1-p})
        v_add_u32 v{HA+p}, v{HA+p}, v{S_L12}
        {'s_mov_b32 s31, %d'%(768*p) if p>5 else ''}
        s_mov_b64 exec, {msk(p)}
        buffer_load_dwordx3 {vr(rec(p),3)}, v{HA+p}, s[12:15], {'s31 offen' if p>5 else '0 offen offset:%d'%(768*p)} {opts.get('ldf','sc1')}
        """)
    def mid(n):
        l=f"FK_NOMAX{n}"
        a(f"""
        s_mov_b64 exec, -1
        s_cmp_gt_u32 s20, {64*NPASS}
        s_cselect_b32 s71, 0x10000, 0
        s_or_b32 s31, s71, s18
        s_cbranch_scc0 {l}
        v_or_b32 v{T+6}, s71, v{T+6}
        ds_max_u32 v{S_FA}, v{T+6}
{l}:
        v_lshl_add_u32 v8, v2, 2, s29
        v_mov_b32 v9, 0
        ds_write_b32 v8, v9
        s_mov_b32 s62, s29
        v_mov_b32 v{T+7}, 1
        v_add_u32 v{T+17}, {L_HIST}, v{S_L8}
        s_mov_b32 s31, {L_HIST}
        s_mov_b32 m0, s24
        """)
    def hs(p,n):
        q=rec(p)
        a(f"""
        s_waitcnt vmcnt({n-1-p})
        s_mov_b64 exec, {msk(p)}
        v_bfe_u32 v{HA+p}, v{q+2}, 16, 7
        v_lshl_add_u32 v{HA+p}, v{HA+p}, 2, s31
        ds_add_rtn_u32 v{q+3}, v{HA+p}, v{T+7}
        """)
    for p in range(6): adr(p)
    a("s_cmp_gt_u32 s20, 384\ns_cbranch_scc1 FK_P7")
    c0=cnt[0]
    for n in (6,7,8):
        cnt[0]=c0
        if n==7:
            a("FK_P7:"); adr(6); a("s_cmp_gt_u32 s20, 448\ns_cbranch_scc1 FK_P8")
        if n==8:
            a("FK_P8:"); adr(7)
        for p in range(n): ld(p,n)
        mid(n)
        stamp()
        for p in range(n): hs(p,n)
        if n<8: a("s_branch FK_HD")
    a(f"""
FK_HD:
    s_mov_b64 exec, -1
    s_waitcnt vmcnt(0)
    """)
    if opts.get("xud",0):
        a("s_cmp_eq_u32 s58, 0\ns_cbranch_scc1 FK_XUD\ns_cmp_lg_u32 s67, 0\ns_cbranch_scc1 FK_XUD")
        xust("FK_XUD")
        a("FK_XUD:")
    xpf(a,opts.get("xpf1",0),opts.get("xpf2",0),168)
    a("s_waitcnt lgkmcnt(0)")
    stamp()
    a("s_barrier")
    a(f"""
    ds_read_b64 v[{T+20}:{T+21}], v{T+17}
    ds_read_b32 v{T+19}, v{S_FA}
    s_waitcnt lgkmcnt(0)
    v_add_u32 v{T+2}, 3, v{T+20}
    v_add_u32 v{T+3}, 3, v{T+21}
    v_and_b32 v{T+2}, 0xfffffffc, v{T+2}
    v_and_b32 v{T+3}, 0xfffffffc, v{T+3}
    v_add_u32 v{T+3}, v{T+2}, v{T+3}
    v_mov_b32 v{T+4}, v{T+3}
    v_readfirstlane_b32 s19, v{T+19}
    """)
    dpp_scan(a, T+4)
    a(f"""
    v_sub_u32 v{T+22}, v{T+4}, v{T+3}
    v_add_u32 v{T+23}, v{T+22}, v{T+2}
    v_readlane_b32 s20, v{T+4}, 63     ; 4Q
    ds_write_b64 v{T+17}, v[{T+22}:{T+23}] offset:{L_SB-L_HIST}
    s_cmp_lg_u32 s18, 0
    s_cbranch_scc1 FK_OK
    s_cmp_ge_u32 s19, 0x10000
    s_cbranch_scc1 FK_GOSLOW
    s_cmp_le_u32 s20, {CAP}
    s_cbranch_scc1 FK_OK
FK_GOSLOW:
    s_mov_b32 s18, 1
    s_mov_b32 s17, {SLOWR}
    s_branch FK_REBATCH
FK_OK:
    """)
    for p in range(NPASS):
        a(f"""
        s_mov_b64 exec, {msk(p)}
        {'s_cbranch_execz FK_RD' if p>=5 else ''}
        ds_read_b32 v{HA+p}, v{HA+p} offset:{L_SB-L_HIST}
        """)
    a(f"""
FK_RD:
    s_mov_b64 exec, -1
    s_and_b32 s19, s19, 0xffff
    s_add_u32 s26, s20, 31
    s_lshr_b32 s26, s26, 5             ; TT
    s_lshl_b32 s29, s26, 5             ; 32TT
    s_lshr_b32 s27, s26, 3             ; NT0
    s_and_b32 s26, s26, 7              ; rem
    s_mul_i32 s22, s3, s27
    s_min_u32 s28, s3, s26
    s_add_u32 s22, s22, s28
    s_lshl_b32 s22, s22, 3             ; qs0
    s_cmp_lt_u32 s3, s26
    s_cselect_b32 s28, 1, 0
    s_add_u32 s21, s27, s28            ; NT
    s_lshl_b32 s28, s21, 2             ; 4NT
    s_add_u32 s23, s22, s28            ; qs1
    s_cmp_eq_u32 s3, 1
    s_cbranch_scc1 FK_JOBD
    s_bitcmp1_b32 s3, 0
    s_cselect_b64 s[34:35], -1, 0
    v_cndmask_b32_e64 v4, v{T+20}, v{T+21}, s[34:35]
    v_cndmask_b32_e64 v5, v{T+22}, v{T+23}, s[34:35]
    s_lshr_b32 s27, s3, 1
    v_mov_b32 v8, 0
    v_mov_b32 v9, 0
    v_mov_b32 v10, {FLAG16<<16}
    s_cmp_lg_u32 s27, 0
    s_cbranch_scc1 FK_PADJOB
    v_add_u32 v5, s20, v1
    v_cmp_ge_u32 vcc, s29, v5
    s_branch FK_PADW
FK_PADJOB:
    v_sub_u32 v6, 0, v4
    v_and_b32 v6, 3, v6
    v_add3_u32 v5, v5, v4, s27
    v_add_u32 v5, -1, v5
    v_cmp_le_u32 vcc, s27, v6
FK_PADW:
    v_lshlrev_b32 v6, 3, v5
    v_add_u32 v6, {L_EA}, v6
    v_lshlrev_b32 v7, 2, v5
    v_add_u32 v7, {L_SF}, v7
    s_mov_b64 exec, vcc
    ds_write_b64 v6, v[8:9]
    ds_write_b32 v7, v10
    s_mov_b64 exec, -1
    s_waitcnt lgkmcnt(2)
    s_branch FK_JOBE
FK_JOBD:
    s_waitcnt lgkmcnt(0)
FK_JOBE:
    s_mov_b32 s30, {L_EA}
    s_mov_b32 s31, {L_SF}
    """)
    for p in range(NPASS):
        q=rec(p); h=HA+p
        a(f"""
        s_mov_b64 exec, {msk(p)}
        {'s_cbranch_execz FK_SD' if p>=5 else ''}
        v_add_u32 v{h}, v{h}, v{q+3}
        v_lshl_add_u32 v{q+3}, v{h}, 3, s30
        ds_write_b64 v{q+3}, v[{q}:{q+1}]
        v_lshl_add_u32 v{h}, v{h}, 2, s31
        v_and_b32 v{q+2}, 0xffff, v{q+2}
        ds_write_b32 v{h}, v{q+2}
        """)
    a(f"""
FK_SD:
    s_mov_b64 exec, -1
    v_mul_u32_u24 v4, s28, v{S_R1}
    v_add_u32 v4, s22, v4
    v_lshl_add_u32 v{SRA}, v4, 4, v{S_C1}
    s_waitcnt lgkmcnt(0)
    """)
    stamp()
    a(f"""
    s_barrier
    s_cmp_eq_u32 s21, 0
    s_cbranch_scc1 FK_LOOPDONE
    ds_read_b128 {vr(SFV,4)}, v{SRA}
    v_mul_u32_u24 v4, s28, v{S_HS}
    v_add_u32 v4, s22, v4
    v_mad_u32_u24 v{AEA}, v4, v{S_SC}, v{S_C0}
    {INC_SR}
    s_waitcnt lgkmcnt(0)
    """)
    for s in dv_calc()+dma(): a(s)
    a(f"""
    ds_read2_b32 {vr(AE,2)}, v{AEA} offset0:0 offset1:1
    {INC_AE}
    s_lshl_b32 s30, s21, 3
    v_lshrrev_b32 v4, 2, v{T+22}
    v_lshrrev_b32 v5, 2, v{T+23}
    v_subrev_u32 v4, s22, v4
    v_subrev_u32 v5, s22, v5
    v_cmp_gt_u32 s[34:35], s30, v4
    v_cmp_gt_u32 s[36:37], s30, v5
    v_cmp_lt_u32 s[38:39], 0, v{T+20}
    v_cmp_lt_u32 s[58:59], 0, v{T+21}
    v_add_u32 v4, s62, v4
    v_add_u32 v5, s62, v5
    v_lshl_add_u32 v6, v1, 1, 1
    v_lshl_add_u32 v7, v1, 1, 2
    s_and_b64 exec, s[34:35], s[38:39]
    ds_write_b8 v4, v6
    s_and_b64 exec, s[36:37], s[58:59]
    ds_write_b8 v5, v7
    s_mov_b64 exec, -1
    v_mul_u32_u24 v4, s28, v3
    v_add_u32 v4, s22, v4                ; qs[h]
    v_lshl_add_u32 v{T+16}, v2, 1, v4    ; u_a
    s_sub_u32 s30, s62, s22
    v_add_u32 v{T+17}, s30, v{T+16}
    ds_read_u16 v5, v{T+17}
    """)
    if STAMP==3: stamp()
    a(f"""
    s_lshl_b32 s30, s22, 2
    s_lshl_b32 s31, s23, 2
    v_cmp_ge_u32 s[34:35], s30, v{T+22}
    v_cmp_ge_u32 s[36:37], s30, v{T+23}
    v_cmp_ge_u32 s[38:39], s31, v{T+22}
    v_cmp_ge_u32 s[58:59], s31, v{T+23}
    ds_read_b128 {vr(SFV,4)}, v{SRA}
    {INC_SR}
    v_lshlrev_b32 v{QIA}, 2, v4
    v_add_u32 v{QIA}, {L_QI}, v{QIA}
    s_bcnt1_i32_b64 s30, s[34:35]
    s_bcnt1_i32_b64 s31, s[36:37]
    s_add_u32 s56, s30, s31
    s_bcnt1_i32_b64 s30, s[38:39]
    s_bcnt1_i32_b64 s31, s[58:59]
    s_add_u32 s57, s30, s31
    v_mov_b32 v{T+18}, s56
    s_mov_b32 exec_lo, 0
    v_mov_b32 v{T+18}, s57
    s_mov_b32 exec_lo, -1
    s_lshr_b32 s20, s20, 2               ; Q
    s_mov_b32 s64, {512-ROWB}
    s_lshl_b32 s26, s3, 1
    s_add_u32 s26, s26, {R_PART}
    v_add_u32 v10, s26, v3
    v_lshlrev_b32 v11, 1, v2
    v_cmp_gt_u32 s[38:39], s28, v11
    s_waitcnt lgkmcnt(1)
    s_nop 0
    v_cndmask_b32_e64 v4, 0, v5, s[38:39]
    v_and_b32 v5, 0xff, v4
    v_lshrrev_b32 v6, 8, v4
    v_max_u32 v7, v5, v6
    v_readlane_b32 s30, v5, 0
    v_readlane_b32 s31, v5, 32
    """)
    dpp_scan(a, 7, op="v_max_u32", full=False)
    a(f"""
    v_mov_b32 v8, 0
    s_cmp_eq_u32 s30, 0
    s_cselect_b32 s34, -1, 0
    s_cmp_lt_u32 s22, s20
    s_cselect_b32 s34, s34, 0
    v_mov_b32_dpp v8, v7 wave_shr:1 row_mask:0xf bank_mask:0xf
    s_cmp_eq_u32 s31, 0
    s_cselect_b32 s35, -1, 0
    s_cmp_lt_u32 s23, s20
    s_cselect_b32 s35, s35, 0
    v_max3_u32 v8, v8, v5, v{T+18}
    v_max_u32 v7, v7, v{T+18}
    v_add_u32 v12, 1, v10
    v_cmp_eq_u32 s[36:37], v8, v{T+18}
    v_cmp_eq_u32 s[58:59], v7, v{T+18}
    s_and_b64 s[36:37], s[36:37], s[34:35]
    s_and_b64 s[58:59], s[58:59], s[34:35]
    v_cndmask_b32_e64 v8, v8, v12, s[36:37]
    v_cndmask_b32_e64 v7, v7, v12, s[58:59]
    v_add_u32 v13, 1, v{T+16}
    v_mov_b32 v12, {R_ZERO+1}
    v_cmp_gt_u32 s[36:37], s20, v{T+16}
    v_cmp_gt_u32 s[66:67], s20, v13
    v_cmp_eq_u32 s[58:59], 0, v5
    v_cmp_eq_u32 s[60:61], 0, v6
    v_cmp_lt_u32 s[62:63], 0, v2
    v_cndmask_b32_e64 v8, v12, v8, s[36:37]
    v_cndmask_b32_e64 v7, v12, v7, s[66:67]
    s_and_b64 s[58:59], s[58:59], s[36:37]
    s_and_b64 s[58:59], s[58:59], s[62:63]
    s_and_b64 s[60:61], s[60:61], s[66:67]
    v_mul_u32_u24 v{T}, {ROWB}, v8
    v_mul_u32_u24 v{T+1}, {ROWB}, v7
    v_add_u32 v{T}, {-ROWB}, v{T}
    v_add_u32 v{T+1}, {-ROWB}, v{T+1}
    v_cndmask_b32_e64 v{T+2}, 0, 1.0, s[58:59]
    v_cndmask_b32_e64 v{T+3}, 0, 1.0, s[60:61]
    v_lshlrev_b32 v13, 2, v{T+16}
    v_add_u32 v13, {L_QI}, v13
    s_mov_b64 exec, s[38:39]
    ds_write_b64 v13, v[{T}:{T+1}]
    ds_write_b64 v13, v[{T+2}:{T+3}] offset:{QKOFF}
    s_and_b64 exec, s[34:35], s[34:35]
    s_cbranch_execz FK_NOCONT
    v_mul_u32_u24 v14, {ROWB}, v{T+18}
    v_add3_u32 v14, v14, v{L4N}, s64
    ds_read_b32 v15, v14
    v_mul_u32_u24 v14, {ROWB}, v10
    v_add_u32 v14, v14, v{L4N}
    v_lshlrev_b32 v13, 2, v{T+18}
    v_add_u32 v13, {L_PMAX-4}, v13
    s_waitcnt lgkmcnt(0)
    ds_write_b32 v14, v15 offset:512
    s_and_b32 exec_lo, exec_lo, 1
    s_and_b32 exec_hi, exec_hi, 1
    ds_max_u32 v13, v10
    ds_min_u32 v13, v10 offset:{L_PMIN-L_PMAX}
FK_NOCONT:
    s_mov_b64 exec, -1
    """)
    for s in xaf_read(0)+kp_read(0,0): a(s)
    a(f"""
    s_nand_b32 s30, s60, s61
    s_nand_b32 s31, s58, s59
    s_lshr_b32 s31, s31, 1
    s_bitreplicate_b64_b32 s[44:45], s30
    s_bitreplicate_b64_b32 s[46:47], s31
    s_mov_b32 s30, 0x55555555
    s_mov_b32 s31, 0x55555555
    s_and_b64 s[44:45], s[44:45], s[30:31]
    s_andn2_b64 s[46:47], s[46:47], s[30:31]
    s_or_b64 s[44:45], s[44:45], s[46:47]
    s_sub_u32 s30, s28, 1
    s_bitset1_b64 s[44:45], s30
    """)
    for r in (ACD[0]+3,ACD[1]+3,ACN[0]+3,ACN[1]+3): a(f"v_mov_b32 v{r}, 0")
    a("s_waitcnt lgkmcnt(0)")
    for s in xaf_adds()+bx_reads(): a(s)
    if STAMP==3: stamp()
    a("s_waitcnt vmcnt(0)")
    if STAMP==3: stamp()
    for s in a_reads(0)+dv_calc(): a(s)
    a("s_waitcnt lgkmcnt(0)")
    a("s_cmp_lt_u32 s21, 2\ns_cbranch_scc1 FK_SKD0")
    for s in dma(): a(s)
    a("FK_SKD0:")
    for s in bx_pack()+xaf_read(1)+src_read()+g_mfmas(0,0)+[INC_SR]+g_mfmas(1,0): a(s)
    a("s_waitcnt lgkmcnt(0)")
    for s in xaf_adds()+ae_read()+bx_reads()+dv_calc(): a(s)
    for i in range(16): a(f"v_exp_f32 v{EE[0]+i}, v{GA[0]+i}")
    if STAMP==3: stamp()
    a("s_waitcnt vmcnt(0)")
    if STAMP==3: stamp()
    for s in a_reads(1): a(s)
    for i in range(16): a(f"v_add_f32 v{EE[0]+i}, 1.0, v{EE[0]+i}")
    a("s_waitcnt lgkmcnt(0)")
    a("s_cmp_lt_u32 s21, 3\ns_cbranch_scc1 FK_SKD1")
    for s in dma(): a(s)
    a("FK_SKD1:")
    for s in src_read(): a(s)
    stamp(); rstamp(59); dbg(3)
    a("s_sub_u32 s25, s21, 1")
    a("FK_LOOP:")
    for par in range(2):
        a(f"s_cmp_eq_u32 s25, 0\ns_cbranch_scc1 FK_LAST{par}")
        tile(a,0,par,False)
        a("s_sub_u32 s25, s25, 1")
    a("s_branch FK_LOOP")
    for x in lp4.STUBS: a(x)
    lp4.STUBS.clear()
    for par in range(2):
        a(f"FK_LAST{par}:")
        tile(a,0,par,True)
        a("s_branch FK_LOOPDONE")
    for x in lp4.STUBS: a(x)
    a(f"""
FK_LOOPDONE:
    s_setprio 0
    """)
    rstamp(60); stamp(); dbg(4)
    XR=128; X=[136,140]; B=[144,176]; M=[4,10]
    a(f"""
    v_and_b32 v23, 7, v0
    v_lshrrev_b32 v20, 3, v0
    v_lshlrev_b32 v20, 7, v20
    v_lshl_add_u32 v20, v23, 3, v20
    s_mul_i32 s26, s70, {NB*128}
    v_add_u32 v20, s26, v20
    v_add_u32 v21, 8192, v20
    v_lshlrev_b32 v22, 4, v0
    s_lshl_b32 s27, s2, 14
    s_add_u32 s27, s27, {WS_XU}
    s_add_u32 s28, s27, 8192
    v_cmp_gt_u32 vcc, {NB*8-512}, v0
    s_mov_b64 s[34:35], vcc
    buffer_load_dwordx2 v[{XR}:{XR+1}], v20, s[4:7], 0 offen
    buffer_load_dwordx2 v[{XR+2}:{XR+3}], v20, s[4:7], 0 offen offset:64
    buffer_load_dwordx4 {vr(X[0],4)}, v22, s[12:15], s27 offen
    s_mov_b64 exec, s[34:35]
    buffer_load_dwordx2 v[{XR+4}:{XR+5}], v21, s[4:7], 0 offen
    buffer_load_dwordx2 v[{XR+6}:{XR+7}], v21, s[4:7], 0 offen offset:64
    buffer_load_dwordx4 {vr(X[1],4)}, v22, s[12:15], s28 offen
    s_mov_b64 exec, -1
    v_lshlrev_b32 v23, 4, v23
    """)
    for it in range(2):
        m=M[it]
        a(f"""
        v_lshrrev_b32 v{m}, 3, v0
        {'v_add_u32 v%d, 64, v%d'%(m,m) if it else ''}
        v_lshlrev_b32 v{m+1}, 2, v{m}
        v_add_u32 v{m+1}, {L_HIST}, v{m+1}
        ds_read_b32 v{m+5}, v{m+1}
        """)
    a(f"v_mov_b32 v37, {R_ZERO}\ns_waitcnt lgkmcnt(0)")
    for it in range(2):
        m=M[it]
        a(f"""
        v_cmp_eq_u32 s[36:37], 0, v{m+5}
        s_nop 1
        v_cndmask_b32_e64 v{m}, v{m}, v37, s[36:37]
        v_mul_u32_u24 v{m}, {ROWB}, v{m}
        v_add_u32 v{m}, v{m}, v23
        """)
    a("s_barrier")
    stamp()
    for it in range(2):
        m=M[it]; b=B[it]
        if it==1: a("s_mov_b64 exec, s[34:35]")
        a(f"""
        ds_read_b32 v{m+2}, v{m+1} offset:{L_PMAX-L_HIST}
        ds_read_b32 v{m+3}, v{m+1} offset:{L_PMIN-L_HIST}
        """)
    for it in range(2):
        m=M[it]; b=B[it]
        a("s_mov_b64 exec, s[34:35]" if it else "s_mov_b64 exec, -1")
        a(f"""
        ds_read_b128 {vr(b,4)}, v{m}
        ds_read_b128 {vr(b+4,4)}, v{m} offset:128
        ds_read_b128 {vr(b+8,4)}, v{m} offset:256
        ds_read_b128 {vr(b+12,4)}, v{m} offset:384
        """)
    a("s_waitcnt lgkmcnt(8)")
    for it in range(2):
        m=M[it]; b=B[it]; x=X[it]; xr=XR+4*it
        if it==1:
            a(f"""
            s_cmp_eq_u64 s[34:35], 0
            s_cbranch_scc1 FK_FIN
            s_mov_b64 exec, s[34:35]
            """)
        else: a("s_mov_b64 exec, -1")
        a(f"""
FK_PL{it}:
        v_cmp_le_u32 s[36:37], v{m+3}, v{m+2}
        s_nop 1
        v_cndmask_b32_e64 v{m+5}, v37, v{m+3}, s[36:37]
        v_mul_u32_u24 v{m+5}, {ROWB}, v{m+5}
        v_add_u32 v{m+5}, v{m+5}, v23
        ds_read_b128 {vr(b+16,4)}, v{m+5}
        ds_read_b128 {vr(b+20,4)}, v{m+5} offset:128
        ds_read_b128 {vr(b+24,4)}, v{m+5} offset:256
        ds_read_b128 {vr(b+28,4)}, v{m+5} offset:384
        v_add_u32 v{m+3}, 1, v{m+3}
        v_cmp_le_u32 vcc, v{m+3}, v{m+2}
        s_waitcnt lgkmcnt(0)
        """)
        for i in range(16): a(f"v_add_f32 v{b+i}, v{b+i}, v{b+16+i}")
        a(f"s_cbranch_vccnz FK_PL{it}")
        a(f"""
        s_cmp_eq_u32 s18, 0
        s_cbranch_scc1 FK_NOSLOW{it}
        s_mul_i32 s26, s2, {NB*512}
        s_add_u32 s26, s26, {WS_TOT+it*512*64}
        v_lshlrev_b32 v{m+5}, 6, v0
        s_cmp_eq_u32 s16, 0
        s_cbranch_scc1 FK_NOLD{it}
        """)
        for j in range(4): a(f"buffer_load_dwordx4 {vr(b+16+4*j,4)}, v{m+5}, s[12:15], s26 offen offset:{16*j} sc1")
        a("s_waitcnt vmcnt(0)")
        for i in range(16): a(f"v_add_f32 v{b+i}, v{b+i}, v{b+16+i}")
        a(f"FK_NOLD{it}:")
        for j in range(4): a(f"buffer_store_dwordx4 {vr(b+4*j,4)}, v{m+5}, s[12:15], s26 offen offset:{16*j} sc1")
        a(f"s_waitcnt vmcnt(0)\nFK_NOSLOW{it}:")
        for i in range(8): a(f"v_add_f32 v{b+i}, 0x358637bd, v{b+i}")
        for i in range(8): a(f"v_rcp_f32 v{b+i}, v{b+i}")
        a("s_waitcnt vmcnt(3)" if it==0 else "s_waitcnt vmcnt(2)")
        for i in range(4):
            a(f"v_lshlrev_b32 v{b+16+i}, 16, v{x+i}")
            a(f"v_and_b32 v{b+20+i}, 0xffff0000, v{x+i}")
        for i in range(8): a(f"v_fma_f32 v{b+i}, v{b+i}, v{b+8+i}, v{b+16+i}")
        for i in range(4):
            a(f"v_lshlrev_b32 v{b+8+2*i}, 16, v{xr+i}")
            a(f"v_and_b32 v{b+9+2*i}, 0xffff0000, v{xr+i}")
        for i in range(8): a(f"v_max_f32 v{b+i}, 0, v{b+i}")
        for i in range(8): a(f"v_add_f32 v{b+i}, v{b+i}, v{b+8+i}")
        for i in range(4): a(f"v_cvt_pk_bf16_f32 v{b+8+i}, v{b+2*i}, v{b+1+2*i}")
        a(f"buffer_store_dwordx2 {vr(b+8,2)}, v{20+it}, s[8:11], 0 offen {opts.get('outf','')}")
        a(f"buffer_store_dwordx2 {vr(b+10,2)}, v{20+it}, s[8:11], 0 offen offset:64 {opts.get('outf','')}")
    a(f"""
FK_FIN:
    s_mov_b64 exec, -1
    """)
    if opts.get("dbg"): a("s_waitcnt vmcnt(0)")
    dbg(5)
    stamp()
    if STAMP:
        a("s_waitcnt vmcnt(0)")
        stamp(); rstamp(62)
        a(f"""
        v_writelane_b32 v{SV}, s21, 63
        s_lshl_b32 s26, s2, 3
        s_add_u32 s26, s26, s3
        s_lshl_b32 s26, s26, 8
        s_add_u32 s26, s26, {WS_STAMP}
        v_lshlrev_b32 v4, 2, v1
        buffer_store_dword v{SV}, v4, s[12:15], s26 offen
        """)
    a(f"""
    s_cmp_eq_u32 s18, 0
    s_cbranch_scc1 FK_END
    s_add_u32 s16, s16, {SLOWR}
    s_add_u32 s17, s17, {SLOWR}
    s_cmp_ge_u32 s16, s19
    s_cbranch_scc1 FK_END
FK_REBATCH:
    s_waitcnt vmcnt(0) lgkmcnt(0)
    s_barrier
    v_mov_b32 v4, 0
    v_mov_b32 v5, 0
    v_mov_b32 v6, 0
    v_mov_b32 v7, 0
    v_mov_b32 v8, 0x10000
    v_mov_b32 v9, 0x10000
    v_add_u32 v11, {L_PMIN}, v{S_L8}
    ds_write_b64 v11, v[8:9]
    s_lshl_b32 s30, s3, 6
    s_add_u32 s30, s30, {L_BM}
    v_lshl_add_u32 v11, v1, 2, s30
    v_lshlrev_b32 v10, 4, v0
    v_add_u32 v10, {L_Z}, v10
    v_cmp_gt_u32 vcc, {(L_ZEND-L_Z)//16}, v0
    s_mov_b64 exec, 0xffff
    ds_write_b32 v11, v4
    s_and_b64 exec, vcc, vcc
    ds_write_b128 v10, v[4:7]
    s_mov_b64 exec, -1
    s_lshl_b32 s26, s70, 3
    s_add_u32 s26, s26, {WS_OFF}
    v_mov_b32 v38, s93
    s_mov_b32 s67, 1
    s_waitcnt lgkmcnt(0)
    s_barrier
    s_branch FK_XAD
FK_END:
    s_endpgm
    """)
    a(kd(name, 256, 102))
    return f"; @launch grid=({NBUCK},1,1) block=(512,1,1) lds={L_END}"
```

```python
from asmlib import *
from consts import *
KP=[4,8]; XAF=12; SFV=20; DV=20; SWZ=24; AAD=28
AEA=32; AEI=33; SRA=34; QIA=35; L4N=36; FT=37
AE=50; BX=40; WC=[46,54]; AOH=[48,48]; BW=[44,52]
WB=64; WV=96
GA=[128,224]; EE=[144,160]; H=176; A=[192,208]
ACD=[240,248]; ACN=[244,252]
QKOFF=CAP
def wb(s,cb): return WB+(s*2+cb)*4
def wv(s,cb): return WV+(s*2+cb)*4
OPT={}
EXP=""; WMODE="stub"; STUBS=[]; _wl=[0]
SHIFT_M=["s_lshr_b64 s[44:45], s[44:45], 4"]
XS="s[96:99]"
def interleave(main, extra):
    out=[]
    for i,m in enumerate(main):
        out+=extra.get(i,[])
        out.append(m)
    out+=extra.get(len(main),[])
    return out
def g_mfmas(cb,ap):
    g=vr(GA[cb],16); l=[]
    for s in range(4):
        l.append(f"v_mfma_f32_32x32x16_bf16 {g}, {vr(A[ap]+4*s,4)}, {vr(wb(s,cb),4)}, {'0' if s==0 else g}")
    l.append(f"v_mfma_f32_32x32x16_bf16 {g}, {vr(AOH[0],4)}, {vr(BW[cb],4)}, {g}")
    return l
def h_mfmas(cb,ap):
    h=vr(H,16)
    return [f"v_mfma_f32_32x32x16_bf16 {h}, {vr(A[ap]+4*s,4)}, {vr(wv(s,cb),4)}, {'0' if s==0 else h}" for s in range(4)]
def dv_calc(): return [f"v_lshl_add_u32 v{DV+k}, v{SFV+k}, 7, v{SWZ+k}" for k in range(4)]
def dma(): return [f"buffer_load_dwordx4 v{DV+k}, {XS}, 0 offen offset:{k*1024} lds" for k in range(4)]
def a_reads(ap): return [f"ds_read_b128 {vr(A[ap]+4*s,4)}, v{AAD+s}" for s in range(4)]
def ae_read(): return [f"ds_read2_b32 {vr(AE,2)}, v{AEA} offset0:0 offset1:1"]
def xaf_read(dt): return [f"ds_read_b128 {vr(XAF,4)}, v{QIA} offset:{16*dt}"]
def kp_read(par,dt): return [f"ds_read_b128 {vr(KP[par],4)}, v{QIA} offset:{QKOFF+16*dt}"]
def xaf_adds(): return [f"v_add_u32 v{XAF+m}, v{XAF+m}, v{L4N}" for m in range(4)]
def bx_reads(): return [f"ds_read_b32 v{BX+m}, v{XAF+m} offset:512" for m in range(4)]
def bx_pack(): return [f"v_perm_b32 v{BW[0]}, v{BX+1}, v{BX}, s74", f"v_perm_b32 v{BW[0]+1}, v{BX+3}, v{BX+2}, s74", f"v_perm_b32 v{BW[1]}, v{BX+1}, v{BX}, s75", f"v_perm_b32 v{BW[1]+1}, v{BX+3}, v{BX+2}, s75"]
def src_read(): return [f"ds_read_b128 {vr(SFV,4)}, v{SRA}"]
INC_QI=f"v_add_u32 v{QIA}, 16, v{QIA}"; INC_SR=f"v_add_u32 v{SRA}, 64, v{SRA}"; INC_AE=f"v_add_u32 v{AEA}, v{AEA}, v{AEI}"
def chains(cb,par):
    g=EE[cb]; h=H; l=[]
    for m in range(4):
        d0=ACD[cb]+(m+3)%4; d=ACD[cb]+m; n0=ACN[cb]+(m+3)%4; n=ACN[cb]+m
        k=KP[par]+m
        l.append(f"v_mul_f32 v{n}, v{n0}, v{k}")
        l.append(f"v_fma_f32 v{d}, v{d0}, v{k}, v{g+4*m}")
        for r in range(4):
            l.append(f"v_fmac_f32 v{n}, v{g+4*m+r}, v{h+4*m+r}")
            if r<3: l.append(f"v_add_f32 v{d}, v{d}, v{g+4*m+r+1}")
    return l
AD=[16,56]
def flush(par=0):
    if WMODE=="none": return []
    l=[]
    _wl[0]+=1; top=f"FKQ_{_wl[0]}"
    if WMODE in ("keep","keepbit"):
        mv=[f"v_mov_b32 v{AD[par]+m}, v{XAF+m}" for m in range(4)]
        def body(m): return [f"ds_write2_b32 v{AD[par]+m}, v{ACD[0]+m}, v{ACD[1]+m} offset0:0 offset1:32", f"ds_write2_b32 v{AD[par]+m}, v{ACN[0]+m}, v{ACN[1]+m} offset0:64 offset1:96"]
        if WMODE=="keep":
            st=[f"{top}S:"]
            for m in range(4):
                lab=f"{top}_{m}"
                st+=[f"s_bitcmp1_b32 s44, {m}", f"s_cbranch_scc0 {lab}"]+body(m)+[f"{lab}:"]
            STUBS.extend(st+[f"s_branch {top}"])
            return ["s_and_b32 s30, s44, 15", f"s_cbranch_scc1 {top}S", f"{top}:"]+SHIFT_M+mv
        for m in range(4):
            lab=f"{top}_{m}"
            l+=[f"s_bitcmp1_b32 s44, {m}", f"s_cbranch_scc1 {lab}S", f"{lab}:"]
            STUBS.extend([f"{lab}S:"]+body(m)+[f"s_branch {lab}"])
        return l+SHIFT_M+mv
    if WMODE=="bit":
        for m in range(4):
            lab=f"{top}_{m}"
            l+=[f"s_bitcmp1_b32 s44, {m}", f"s_cbranch_scc1 {lab}S", f"{lab}:"]
            STUBS.extend([f"{lab}S:", f"ds_read_b32 v{FT}, v{QIA} offset:{4*m}", "s_waitcnt lgkmcnt(0)", f"v_add_u32 v{FT}, v{FT}, v{L4N}",
             f"ds_write2_b32 v{FT}, v{ACD[0]+m}, v{ACD[1]+m} offset0:0 offset1:32",
             f"ds_write2_b32 v{FT}, v{ACN[0]+m}, v{ACN[1]+m} offset0:64 offset1:96", f"s_branch {lab}"])
        return l+SHIFT_M
    if WMODE=="jt":
        body=[]
        for c in range(1,16):
            body.append(f"{top}_c{c}:")
            ms=[m for m in range(4) if c>>m&1]
            regs=[FT,16,17,18]
            for i,m in enumerate(ms): body.append(f"ds_read_b32 v{regs[i]}, v{QIA} offset:{4*m}")
            body.append("s_waitcnt lgkmcnt(0)")
            for i,m in enumerate(ms):
                body+=[f"v_add_u32 v{regs[i]}, v{regs[i]}, v{L4N}", f"ds_write2_b32 v{regs[i]}, v{ACD[0]+m}, v{ACD[1]+m} offset0:0 offset1:32", f"ds_write2_b32 v{regs[i]}, v{ACN[0]+m}, v{ACN[1]+m} offset0:64 offset1:96"]
            body.append(f"s_branch {top}")
        tab=[f"{top}T:"]+[f"s_branch {top}" if c==0 else f"s_branch {top}_c{c}" for c in range(16)]
        STUBS.extend([f"{top}S:", "s_getpc_b64 s[46:47]", "s_lshl_b32 s30, s30, 2", "s_add_u32 s46, s46, s30", "s_addc_u32 s47, s47, 0", "s_add_u32 s46, s46, 24", "s_addc_u32 s47, s47, 0", "s_setpc_b64 s[46:47]"]+tab+body)
        return ["s_and_b32 s30, s44, 15", f"s_cbranch_scc1 {top}S", f"{top}:"]+SHIFT_M
    st=[f"{top}S:"]
    for m in range(4):
        lab=f"{top}_{m}"
        st+=[f"s_bitcmp1_b32 s44, {m}", f"s_cbranch_scc0 {lab}",
             f"ds_read_b32 v{FT}, v{QIA} offset:{4*m}", "s_waitcnt lgkmcnt(0)", f"v_add_u32 v{FT}, v{FT}, v{L4N}",
             f"ds_write2_b32 v{FT}, v{ACD[0]+m}, v{ACD[1]+m} offset0:0 offset1:32",
             f"ds_write2_b32 v{FT}, v{ACN[0]+m}, v{ACN[1]+m} offset0:64 offset1:96", f"{lab}:"]
    st+=[f"s_branch {top}"]
    STUBS.extend(st)
    return ["s_and_b32 s30, s44, 15", f"s_cbranch_scc1 {top}S", f"{top}:"]+SHIFT_M
def s_part(a, cb, par, do_exp, do_g, extra=[], pre=[]):
    cn=cb^1
    ex=[f"v_exp_f32 v{EE[cn]+i}, v{GA[cn]+i}" for i in range(16)] if do_exp else []
    rc=[f"v_rcp_f32 v{EE[cb]+i}, v{EE[cb]+i}" for i in range(16)]
    hm=h_mfmas(cb,par)
    for x in pre: a(x)
    a(f"s_setprio 1")
    tr=ex+rc
    if do_g:
        gm=g_mfmas(cb,par^1)
        hp=OPT.get("hp",[17,20,24,27]); gp=OPT.get("gp",[0,3,7,10,14])
        ext={}
        for p,m in zip(hp,hm): ext.setdefault(p,[]).append(m)
        for p,m in zip(gp,gm): ext.setdefault(p,[]).append(m)
        for p,x in extra: ext.setdefault(p,[]).extend(x)
        seq=interleave(tr,ext)
    elif do_exp:
        seq=interleave(tr,{0:[hm[0]],4:[hm[1]],8:[hm[2]],12:[hm[3]]})
    else:
        seq=interleave(tr,{0:[hm[0]],3:[hm[1]],6:[hm[2]],9:[hm[3]]})+["s_nop 7"]
    for s in seq: a(s)
def p_part(a, cb, par, do_add, extra={}):
    cn=cb^1
    a("s_setprio 0")
    pl=[]
    if do_add: pl+=[f"v_add_f32 v{EE[cn]+i}, 1.0, v{EE[cn]+i}" for i in range(16)]
    pl+=chains(cb,par)
    pl=interleave(pl,extra)
    for s in pl: a(s)
def tile(a, role, par, last):
    if EXP:
        a0=a
        class F:
            def label(self,b): return a0.label(b)
            def __call__(self,x):
                for l in x.split("\n"):
                    t=l.strip()
                    if "nolds" in EXP and (t.startswith("ds_") or t.startswith("buffer_") or t.startswith("s_waitcnt")): continue
                    if "nodma" in EXP and t.startswith("buffer_"): continue
                    a0(t)
        a=F()
    lab=a.label("SKD")
    skipdma=["s_cmp_lt_u32 s25, 3", f"s_cbranch_scc1 {lab}"]+dma()+[f"{lab}:"]
    if OPT.get("noskip"): skipdma=dma()
    v=OPT.get("v",0)
    if last:
        s_part(a,0,par,True,False)
        p_part(a,0,par,True)
        s_part(a,1,par,False,False)
        p_part(a,1,par,False)
        for s in flush(par): a(s)
        return
    qreads=kp_read(par^1,1)+xaf_read(2)
    feed=["s_waitcnt vmcnt(0)"]+a_reads(par)+ae_read()+bx_reads()
    if v==0:
        s_part(a,0,par,True,True,[(1,bx_pack()[:2]),(5,bx_pack()[2:]),(30,dv_calc())],["s_waitcnt lgkmcnt(0)"])
        p_part(a,0,par,True,{0:qreads, 40:["s_waitcnt lgkmcnt(0)"]+xaf_adds()+[INC_AE, INC_SR]})
        s_part(a,1,par,True,True)
        p_part(a,1,par,True,{0:feed, 30:["s_waitcnt lgkmcnt(5)"]+skipdma+src_read()})
        for s in flush(par)+[INC_QI]: a(s)
    elif v==1:
        s_part(a,0,par,True,True,[(2,qreads[:1]),(5,qreads[1:]),(30,dv_calc())],["s_waitcnt lgkmcnt(0)"])
        p_part(a,0,par,True,{30:["s_waitcnt lgkmcnt(0)"]+xaf_adds()+[INC_AE, INC_SR]})
        s_part(a,1,par,True,True,[(28,["s_waitcnt vmcnt(0)"]+a_reads(par)[:2]),(29,a_reads(par)[2:]),(30,ae_read()+bx_reads()[:2]),(31,bx_reads()[2:])])
        p_part(a,1,par,True,{20:["s_waitcnt lgkmcnt(5)"]+skipdma+src_read()})
        for s in flush(par)+[INC_QI]: a(s)
    elif v==2:
        f=feed
        s_part(a,0,par,True,True,[(30,dv_calc())],["s_waitcnt lgkmcnt(0)"])
        p_part(a,0,par,True,{4:qreads[:1],10:qreads[1:], 40:["s_waitcnt lgkmcnt(0)"]+xaf_adds()+[INC_AE, INC_SR]})
        s_part(a,1,par,True,True)
        ex={2*i:[x] for i,x in enumerate(f)}
        ex[34]=["s_waitcnt lgkmcnt(5)"]+skipdma+src_read()
        p_part(a,1,par,True,ex)
        for s in flush(par)+[INC_QI]: a(s)
def bench_init(a):
    a(f"""
    v_add_u32 v{AAD}, s24, v2
    v_add_u32 v{AAD+1}, 1024, v{AAD}
    v_add_u32 v{AAD+2}, 2048, v{AAD}
    v_add_u32 v{AAD+3}, 3072, v{AAD}
    v_and_b32 v{SWZ}, 7, v1
    v_lshlrev_b32 v{SWZ}, 4, v{SWZ}
    v_mov_b32 v{SWZ+1}, v{SWZ}
    v_mov_b32 v{SWZ+2}, v{SWZ}
    v_mov_b32 v{SWZ+3}, v{SWZ}
    v_lshrrev_b32 v{SRA}, 3, v0
    v_lshlrev_b32 v{SRA}, 7, v{SRA}
    v_add_u32 v{SRA}, {L_SF}, v{SRA}
    v_lshlrev_b32 v{AEA}, 3, v1
    v_add_u32 v{AEA}, {L_EA}, v{AEA}
    v_mov_b32 v{AEI}, 128
    v_mov_b32 v{QIA}, {L_QI}
    s_mov_b32 m0, s24
    s_mov_b32 s96, s4
    s_mov_b32 s97, s5
    s_mov_b32 s98, s6
    s_mov_b32 s99, s7
    s_mov_b32 s74, 0x05040100
    s_mov_b32 s75, 0x07060302
    """)
    for r in range(WB,WB+64): a(f"v_mov_b32 v{r}, 0x3c003c00")
```

```python
import sys
sys.path.insert(0,'gen')
from asmlib import *
from fk11 import gen_fk
import json
opts=json.loads(sys.argv[2]) if len(sys.argv)>2 else {}
out=sys.argv[1] if len(sys.argv)>1 else 'gather_scatter__edge_featured_mpnn_gatedgcn__graph.s'
ref=open('gather_scatter__edge_featured_mpnn_gatedgcn__graph.s.ref').read().split('\n')
hdr=[l for l in ref if l.startswith(';') and '@launch' not in l and 'Override' not in l and 'grid=ceil' not in l]
a=Asm()
l1=gen_fk(a,opts)
txt="\n".join(hdr)+"\n"+l1+"\n"+'.amdgcn_target "amdgcn-amd-amdhsa--gfx950"\n'+a.text()
open(out,'w').write(txt)
print("wrote",out,len(txt))
```

```python
from asmlib import *
from consts import *
KP=[4,8]; XAF=12; SFV=20; DV=20; SWZ=24; AAD=28
AEA=32; AEI=33; SRA=34; QIA=35; L4N=36; FT=37
AE=50; BX=40; WC=[46,54]; AOH=[48,48]; BW=[44,52]
WB=64; WV=96
GA=[128,224]; EE=[144,160]; H=176; A=[192,208]
ACD=[240,248]; ACN=[244,252]
QKOFF=CAP
def wb(s,cb): return WB+(s*2+cb)*4
def wv(s,cb): return WV+(s*2+cb)*4
OPT={}
EXP=""; WMODE="stub"; STUBS=[]; _wl=[0]
SHIFT_M=["s_lshr_b64 s[44:45], s[44:45], 4"]
XS="s[96:99]"
def interleave(main, extra):
    out=[]
    for i,m in enumerate(main):
        out+=extra.get(i,[])
        out.append(m)
    out+=extra.get(len(main),[])
    return out
def g_mfmas(cb,ap):
    g=vr(GA[cb],16); l=[]
    for s in range(4):
        l.append(f"v_mfma_f32_32x32x16_bf16 {g}, {vr(A[ap]+4*s,4)}, {vr(wb(s,cb),4)}, {'0' if s==0 else g}")
    l.append(f"v_mfma_f32_32x32x16_bf16 {g}, {vr(AOH[0],4)}, {vr(BW[cb],4)}, {g}")
    return l
def h_mfmas(cb,ap):
    h=vr(H,16)
    return [f"v_mfma_f32_32x32x16_bf16 {h}, {vr(A[ap]+4*s,4)}, {vr(wv(s,cb),4)}, {'0' if s==0 else h}" for s in range(4)]
def dv_calc(): return [f"v_lshl_add_u32 v{DV+k}, v{SFV+k}, 7, v{SWZ+k}" for k in range(4)]
def dma(): return [f"buffer_load_dwordx4 v{DV+k}, {XS}, 0 offen offset:{k*1024} lds" for k in range(4)]
def a_reads(ap): return [f"ds_read_b128 {vr(A[ap]+4*s,4)}, v{AAD+s}" for s in range(4)]
def ae_read(): return [f"ds_read2_b32 {vr(AE,2)}, v{AEA} offset0:0 offset1:1"]
def xaf_read(dt): return [f"ds_read_b128 {vr(XAF,4)}, v{QIA} offset:{16*dt}"]
def kp_read(par,dt): return [f"ds_read_b128 {vr(KP[par],4)}, v{QIA} offset:{QKOFF+16*dt}"]
def xaf_adds(): return [f"v_add_u32 v{XAF+m}, v{XAF+m}, v{L4N}" for m in range(4)]
def bx_reads(): return [f"ds_read_b32 v{BX+m}, v{XAF+m} offset:512" for m in range(4)]
def bx_pack(): return [f"v_perm_b32 v{BW[0]}, v{BX+1}, v{BX}, s74", f"v_perm_b32 v{BW[0]+1}, v{BX+3}, v{BX+2}, s74", f"v_perm_b32 v{BW[1]}, v{BX+1}, v{BX}, s75", f"v_perm_b32 v{BW[1]+1}, v{BX+3}, v{BX+2}, s75"]
def src_read(): return [f"ds_read_b128 {vr(SFV,4)}, v{SRA}"]
INC_QI=f"v_add_u32 v{QIA}, 16, v{QIA}"; INC_SR=f"v_add_u32 v{SRA}, 64, v{SRA}"; INC_AE=f"v_add_u32 v{AEA}, v{AEA}, v{AEI}"
def chains(cb,par):
    g=EE[cb]; h=H; l=[]
    for m in range(4):
        d0=ACD[cb]+(m+3)%4; d=ACD[cb]+m; n0=ACN[cb]+(m+3)%4; n=ACN[cb]+m
        k=KP[par]+m
        l.append(f"v_mul_f32 v{n}, v{n0}, v{k}")
        l.append(f"v_fma_f32 v{d}, v{d0}, v{k}, v{g+4*m}")
        for r in range(4):
            l.append(f"v_fmac_f32 v{n}, v{g+4*m+r}, v{h+4*m+r}")
            if r<3: l.append(f"v_add_f32 v{d}, v{d}, v{g+4*m+r+1}")
    return l
AD=[16,56]
def flush(par=0):
    if WMODE=="none": return []
    l=[]
    _wl[0]+=1; top=f"FKQ_{_wl[0]}"
    if WMODE in ("keep","keepbit"):
        mv=[f"v_mov_b32 v{AD[par]+m}, v{XAF+m}" for m in range(4)]
        def body(m): return [f"ds_write2_b32 v{AD[par]+m}, v{ACD[0]+m}, v{ACD[1]+m} offset0:0 offset1:32", f"ds_write2_b32 v{AD[par]+m}, v{ACN[0]+m}, v{ACN[1]+m} offset0:64 offset1:96"]
        if WMODE=="keep":
            st=[f"{top}S:"]
            for m in range(4):
                lab=f"{top}_{m}"
                st+=[f"s_bitcmp1_b32 s44, {m}", f"s_cbranch_scc0 {lab}"]+body(m)+[f"{lab}:"]
            STUBS.extend(st+[f"s_branch {top}"])
            return ["s_and_b32 s30, s44, 15", f"s_cbranch_scc1 {top}S", f"{top}:"]+SHIFT_M+mv
        for m in range(4):
            lab=f"{top}_{m}"
            l+=[f"s_bitcmp1_b32 s44, {m}", f"s_cbranch_scc1 {lab}S", f"{lab}:"]
            STUBS.extend([f"{lab}S:"]+body(m)+[f"s_branch {lab}"])
        return l+SHIFT_M+mv
    if WMODE=="pre":
        st=[f"{top}S:", "s_waitcnt lgkmcnt(1)" if par!=9 else "s_waitcnt lgkmcnt(0)"]
        for m in range(4):
            lab=f"{top}_{m}"
            st+=[f"s_bitcmp1_b32 s44, {m}", f"s_cbranch_scc0 {lab}", f"v_add_u32 v{FT}, v{XAF+m}, v{L4N}",
             f"ds_write2_b32 v{FT}, v{ACD[0]+m}, v{ACD[1]+m} offset0:0 offset1:32",
             f"ds_write2_b32 v{FT}, v{ACN[0]+m}, v{ACN[1]+m} offset0:64 offset1:96", f"{lab}:"]
        STUBS.extend(st+[f"s_branch {top}"])
        return ["s_and_b32 s30, s44, 15", f"s_cbranch_scc1 {top}S", f"{top}:"]+SHIFT_M
    if WMODE=="bit":
        for m in range(4):
            lab=f"{top}_{m}"
            l+=[f"s_bitcmp1_b32 s44, {m}", f"s_cbranch_scc1 {lab}S", f"{lab}:"]
            STUBS.extend([f"{lab}S:", f"ds_read_b32 v{FT}, v{QIA} offset:{4*m}", "s_waitcnt lgkmcnt(0)", f"v_add_u32 v{FT}, v{FT}, v{L4N}",
             f"ds_write2_b32 v{FT}, v{ACD[0]+m}, v{ACD[1]+m} offset0:0 offset1:32",
             f"ds_write2_b32 v{FT}, v{ACN[0]+m}, v{ACN[1]+m} offset0:64 offset1:96", f"s_branch {lab}"])
        return l+SHIFT_M
    if WMODE=="jt":
        body=[]
        for c in range(1,16):
            body.append(f"{top}_c{c}:")
            ms=[m for m in range(4) if c>>m&1]
            regs=[FT,16,17,18]
            for i,m in enumerate(ms): body.append(f"ds_read_b32 v{regs[i]}, v{QIA} offset:{4*m}")
            body.append("s_waitcnt lgkmcnt(0)")
            for i,m in enumerate(ms):
                body+=[f"v_add_u32 v{regs[i]}, v{regs[i]}, v{L4N}", f"ds_write2_b32 v{regs[i]}, v{ACD[0]+m}, v{ACD[1]+m} offset0:0 offset1:32", f"ds_write2_b32 v{regs[i]}, v{ACN[0]+m}, v{ACN[1]+m} offset0:64 offset1:96"]
            body.append(f"s_branch {top}")
        tab=[f"{top}T:"]+[f"s_branch {top}" if c==0 else f"s_branch {top}_c{c}" for c in range(16)]
        STUBS.extend([f"{top}S:", "s_getpc_b64 s[46:47]", "s_lshl_b32 s30, s30, 2", "s_add_u32 s46, s46, s30", "s_addc_u32 s47, s47, 0", "s_add_u32 s46, s46, 24", "s_addc_u32 s47, s47, 0", "s_setpc_b64 s[46:47]"]+tab+body)
        return ["s_and_b32 s30, s44, 15", f"s_cbranch_scc1 {top}S", f"{top}:"]+SHIFT_M
    st=[f"{top}S:"]
    for m in range(4):
        lab=f"{top}_{m}"
        st+=[f"s_bitcmp1_b32 s44, {m}", f"s_cbranch_scc0 {lab}",
             f"ds_read_b32 v{FT}, v{QIA} offset:{4*m}", "s_waitcnt lgkmcnt(0)", f"v_add_u32 v{FT}, v{FT}, v{L4N}",
             f"ds_write2_b32 v{FT}, v{ACD[0]+m}, v{ACD[1]+m} offset0:0 offset1:32",
             f"ds_write2_b32 v{FT}, v{ACN[0]+m}, v{ACN[1]+m} offset0:64 offset1:96", f"{lab}:"]
    st+=[f"s_branch {top}"]
    STUBS.extend(st)
    return ["s_and_b32 s30, s44, 15", f"s_cbranch_scc1 {top}S", f"{top}:"]+SHIFT_M
def s_part(a, cb, par, do_exp, do_g, extra=[], pre=[]):
    cn=cb^1
    ex=[f"v_exp_f32 v{EE[cn]+i}, v{GA[cn]+i}" for i in range(16)] if do_exp else []
    rc=[f"v_rcp_f32 v{EE[cb]+i}, v{EE[cb]+i}" for i in range(16)]
    hm=h_mfmas(cb,par)
    for x in pre: a(x)
    a(f"s_setprio 1")
    tr=ex+rc
    if do_g:
        gm=g_mfmas(cb,par^1)
        hp=OPT.get("hp",[17,20,24,27]); gp=OPT.get("gp",[0,3,7,10,14])
        ext={}
        for p,m in zip(hp,hm): ext.setdefault(p,[]).append(m)
        for p,m in zip(gp,gm): ext.setdefault(p,[]).append(m)
        for p,x in extra: ext.setdefault(p,[]).extend(x)
        seq=interleave(tr,ext)
    elif do_exp:
        seq=interleave(tr,{0:[hm[0]],4:[hm[1]],8:[hm[2]],12:[hm[3]]})
    else:
        seq=interleave(tr,{0:[hm[0]],3:[hm[1]],6:[hm[2]],9:[hm[3]]})+["s_nop 7"]
    for s in seq: a(s)
def p_part(a, cb, par, do_add, extra={}):
    cn=cb^1
    a("s_setprio 0")
    pl=[]
    if do_add: pl+=[f"v_add_f32 v{EE[cn]+i}, 1.0, v{EE[cn]+i}" for i in range(16)]
    pl+=chains(cb,par)
    pl=interleave(pl,extra)
    for s in pl: a(s)
def tile(a, role, par, last):
    if EXP:
        a0=a
        class F:
            def label(self,b): return a0.label(b)
            def __call__(self,x):
                for l in x.split("\n"):
                    t=l.strip()
                    if "nolds" in EXP and (t.startswith("ds_") or t.startswith("buffer_") or t.startswith("s_waitcnt")): continue
                    if "nodma" in EXP and t.startswith("buffer_"): continue
                    a0(t)
        a=F()
    lab=a.label("SKD")
    skipdma=["s_cmp_lt_u32 s25, 3", f"s_cbranch_scc1 {lab}"]+dma()+[f"{lab}:"]
    if OPT.get("noskip"): skipdma=dma()
    if OPT.get("eexp"):
        skipdma=skipdma+[f"v_mul_u32_u24 v38, 4099, v{AE}", f"v_and_b32 v38, 0x7ffff8, v38", "s_mov_b32 exec_hi, 0", f"buffer_load_dwordx2 v[38:39], v38, s[76:79], 0 offen {OPT.get('ef','')}", "s_mov_b32 exec_hi, -1"]
    v=OPT.get("v",0)
    if last:
        s_part(a,0,par,True,False)
        p_part(a,0,par,True)
        s_part(a,1,par,False,False)
        p_part(a,1,par,False,{0:xaf_read(0)} if WMODE=="pre" else {})
        for s in flush(9 if WMODE=="pre" else par): a(s)
        return
    qreads=kp_read(par^1,1)+xaf_read(2)
    feed=["s_waitcnt vmcnt(0)"]+a_reads(par)+ae_read()+bx_reads()
    if v==0:
        s_part(a,0,par,True,True,[(1,bx_pack()[:2]),(5,bx_pack()[2:]),(30,dv_calc())],["s_waitcnt lgkmcnt(0)"])
        p_part(a,0,par,True,{0:qreads, 40:["s_waitcnt lgkmcnt(0)"]+xaf_adds()+[INC_AE, INC_SR]})
        s_part(a,1,par,True,True)
        if WMODE=="pre": p_part(a,1,par,True,{0:feed+xaf_read(0), 30:["s_waitcnt lgkmcnt(6)"]+skipdma+src_read()})
        else: p_part(a,1,par,True,{0:feed, 30:["s_waitcnt lgkmcnt(5)"]+skipdma+src_read()})
        for s in flush(par)+[INC_QI]: a(s)
    elif v==1:
        s_part(a,0,par,True,True,[(2,qreads[:1]),(5,qreads[1:]),(30,dv_calc())],["s_waitcnt lgkmcnt(0)"])
        p_part(a,0,par,True,{30:["s_waitcnt lgkmcnt(0)"]+xaf_adds()+[INC_AE, INC_SR]})
        s_part(a,1,par,True,True,[(28,["s_waitcnt vmcnt(0)"]+a_reads(par)[:2]),(29,a_reads(par)[2:]),(30,ae_read()+bx_reads()[:2]),(31,bx_reads()[2:])])
        p_part(a,1,par,True,{20:["s_waitcnt lgkmcnt(5)"]+skipdma+src_read()})
        for s in flush(par)+[INC_QI]: a(s)
    elif v==2:
        f=feed
        s_part(a,0,par,True,True,[(30,dv_calc())],["s_waitcnt lgkmcnt(0)"])
        p_part(a,0,par,True,{4:qreads[:1],10:qreads[1:], 40:["s_waitcnt lgkmcnt(0)"]+xaf_adds()+[INC_AE, INC_SR]})
        s_part(a,1,par,True,True)
        ex={2*i:[x] for i,x in enumerate(f)}
        ex[34]=["s_waitcnt lgkmcnt(5)"]+skipdma+src_read()
        p_part(a,1,par,True,ex)
        for s in flush(par)+[INC_QI]: a(s)
def bench_init(a):
    a(f"""
    v_add_u32 v{AAD}, s24, v2
    v_add_u32 v{AAD+1}, 1024, v{AAD}
    v_add_u32 v{AAD+2}, 2048, v{AAD}
    v_add_u32 v{AAD+3}, 3072, v{AAD}
    v_and_b32 v{SWZ}, 7, v1
    v_lshlrev_b32 v{SWZ}, 4, v{SWZ}
    v_mov_b32 v{SWZ+1}, v{SWZ}
    v_mov_b32 v{SWZ+2}, v{SWZ}
    v_mov_b32 v{SWZ+3}, v{SWZ}
    v_lshrrev_b32 v{SRA}, 3, v0
    v_lshlrev_b32 v{SRA}, 7, v{SRA}
    v_add_u32 v{SRA}, {L_SF}, v{SRA}
    v_lshlrev_b32 v{AEA}, 3, v1
    v_add_u32 v{AEA}, {L_EA}, v{AEA}
    v_mov_b32 v{AEI}, 128
    v_mov_b32 v{QIA}, {L_QI}
    s_mov_b32 m0, s24
    s_mov_b32 s96, s4
    s_mov_b32 s97, s5
    s_mov_b32 s98, s6
    s_mov_b32 s99, s7
    s_mov_b32 s74, 0x05040100
    s_mov_b32 s75, 0x07060302
    """)
    for r in range(WB,WB+64): a(f"v_mov_b32 v{r}, 0x3c003c00")
```

```python
from asmlib import *
from consts import *
import lp5 as lp4
from lp5 import *

S_HS=56; S_SC=57; S_C0=58; S_R1=59; S_C1=60; S_L12=61; S_L8=62; S_CB=63; S_PO=16; S_FA=17
SV=19
REC=128; HA=160; MASK=40
def rec(p): return REC+4*p
def msk(p): return sr(MASK+2*p,2)
D=[128,132]; S=[136,140]; EAr=[144,152]; BK=[160,164]; RK=[168,172]; T1=[176,180]
SC=184; WBR=200; WAU=148; XAC=224; PUB=[208,216]; CPO=[224,240]
TP=224
L1_HIST=[CH_BYTES,CH_BYTES+1024]; L1_BASE=[CH_BYTES+2048,CH_BYTES+3072]
SUBB=512*4*12
L_WCL=L_QI

def dpp_scan(a, v, op="v_add_u32", full=True):
    for sh in (1,2,4,8):
        a(f"s_nop 1\n{op}_dpp v{v}, v{v}, v{v} row_shr:{sh} row_mask:0xf bank_mask:0xf bound_ctrl:0")
    a(f"s_nop 1\n{op}_dpp v{v}, v{v}, v{v} row_bcast:15 row_mask:0xa bank_mask:0xf")
    if full: a(f"s_nop 1\n{op}_dpp v{v}, v{v}, v{v} row_bcast:31 row_mask:0xc bank_mask:0xf")

def xpf(a, first, n, dst):
    if n<=0: return
    a(f"""
    s_lshr_b32 s30, s2, 3
    s_mul_i32 s30, s30, 102400
    s_mul_i32 s31, s3, 12800
    s_add_u32 s30, s30, s31
    s_add_u32 s30, s30, {first*1024}
    v_lshlrev_b32 v{dst}, 4, v1
    """)
    for i in range(n):
        if i and i%4==0: a("s_add_u32 s30, s30, 4096")
        a(f"buffer_load_dwordx4 v[{dst+2}:{dst+5}], v{dst}, s[4:7], s30 offen offset:{(i%4)*1024}")

def gen_fk(a, opts):
    lp4.OPT.clear(); lp4.OPT.update(opts); lp4.WMODE=opts.get("wmode","stub"); lp4.STUBS.clear()
    name="gather_scatter__edge_featured_mpnn_gatedgcn__graph_kernel"
    a(khead(name))
    STAMP=opts.get("stamp",0)
    STF=opts.get("stf","sc1")
    LF=opts.get("lf","")
    WE=opts.get("we",0)
    RP1=opts.get("rp1",0)
    LATE1=opts.get("late1",1)
    cnt=[0]
    def stamp():
        if not STAMP: return
        a(f"s_memtime s[100:101]\ns_waitcnt lgkmcnt(0)\nv_writelane_b32 v{SV}, s100, {cnt[0]}")
        cnt[0]+=1
    def dbg(slot):
        if not opts.get("dbg"): return
        lab=a.label("DBG")
        a(f"""
        s_lshr_b32 s100, s2, 1
        s_or_b32 s100, s100, s3
        s_cbranch_scc1 {lab}
        s_mul_i32 s101, s2, 28
        v_mov_b32 v18, s101
        s_memrealtime s[100:101]
        s_waitcnt lgkmcnt(0)
        v_mov_b32 v19, s100
        s_mov_b64 exec, 1
        global_store_dword v18, v19, s[88:89] offset:{slot*4}
        s_mov_b64 exec, -1
{lab}:
        """)
    def rstamp(i):
        if STAMP: a(f"s_memrealtime s[100:101]\ns_waitcnt lgkmcnt(0)\nv_writelane_b32 v{SV}, s100, {i}")
    T=TP
    NT=512
    a(f"""
    s_cmp_ge_u32 s2, {NBUCK}
    s_cbranch_scc1 FK_END
    s_load_dwordx16 s[68:83], s[0:1], 0
    s_load_dwordx8 s[84:91], s[0:1], 64
    s_memrealtime s[94:95]
    v_lshrrev_b32 v2, 6, v0
    v_and_b32 v1, 63, v0
    v_readfirstlane_b32 s3, v2
    s_mul_i32 s26, s2, {CH_QUADS}
    v_add_u32 v4, s26, v0              ; quad0
    v_lshlrev_b32 v5, 4, v4
    v_lshlrev_b32 v6, 5, v4
    v_add_u32 v7, {NT}, v4
    v_cmp_gt_u32 vcc, {E//4}, v4
    s_mov_b64 s[40:41], vcc
    v_cmp_gt_u32 vcc, {CH_QUADS-NT}, v0
    s_mov_b64 s[42:43], vcc
    v_cmp_gt_u32 vcc, {E//4}, v7
    s_and_b64 s[42:43], s[42:43], vcc
    v_add_u32 v8, {NT*16}, v5
    v_add_u32 v9, {NT*32}, v6
    v_lshlrev_b32 v23, 4, v0           ; tid*16
    v_mov_b32 v12, 0
    v_mov_b32 v13, 0
    v_mov_b32 v14, 0
    v_mov_b32 v15, 0
    v_lshlrev_b32 v{S_L8}, 3, v1
    s_cmp_lg_u32 s3, 7
    s_cbranch_scc1 FK_N7
    v_mov_b32 v10, 0x10000
    v_mov_b32 v11, 0x10000
    v_add_u32 v22, {L_PMIN}, v{S_L8}
    ds_write_b64 v22, v[10:11]
FK_N7:
    s_cmp_lg_u32 s3, 6
    s_cbranch_scc1 FK_N6
    v_lshlrev_b32 v11, 4, v1
    ds_write_b128 v11, v[12:15] offset:{L1_HIST[0]}
    ds_write_b128 v11, v[12:15] offset:{L1_HIST[1]}
FK_N6:
    s_lshl_b32 s30, s3, 6
    s_add_u32 s30, s30, {L_BM}
    v_lshl_add_u32 v11, v1, 2, s30
    v_add_u32 v22, {L_Z}, v23
    v_cmp_gt_u32 vcc, {(L_ZEND-L_Z)//16}, v0
    s_mov_b64 exec, 0xffff
    ds_write_b32 v11, v12
    s_and_b64 exec, vcc, vcc
    s_cbranch_execz FK_NOZ
    ds_write_b128 v22, v[12:15]
FK_NOZ:
    s_mov_b64 exec, -1
    """)
    rstamp(61); stamp()
    a(f"""
    s_waitcnt lgkmcnt(0)
    s_barrier
    """)
    F,Gs=opts.get("order",[0,1])
    def loads(u):
        return f"""
    s_mov_b64 exec, {sr(40+2*u,2)}
    global_load_dwordx4 {vr(D[u],4)}, v{[5,8][u]+(200 if False else 0)}, s[74:75] {LF}
    global_load_dwordx4 {vr(S[u],4)}, v{[5,8][u]}, s[72:73] {LF}
    global_load_dwordx4 {vr(EAr[u],4)}, v{[6,9][u]}, s[56:57] {LF}
    global_load_dwordx4 {vr(EAr[u]+4,4)}, v{[6,9][u]}, s[56:57] offset:16 {LF}
    s_mov_b64 exec, -1
    """
    a("s_mov_b64 s[56:57], s[70:71]")
    a(loads(F))
    if F==1: a("v_mov_b32 v8, v5\nv_mov_b32 v9, v6")
    set1=loads(1) if F==0 else loads(0).replace("v5,","v8,").replace("v6,","v9,")
    dbg(2)
    a(f"""
    s_or_b32 s30, s2, s3
    s_cbranch_scc1 FK_N0
    v_mov_b32 v12, s94
    v_mov_b32 v13, s95
    v_mov_b32 v4, 0
    s_mov_b64 exec, 1
    global_store_dwordx2 v4, v[12:13], s[88:89] sc0 sc1
    s_mov_b64 exec, -1
FK_N0:
    s_and_b32 s70, s2, 7
    s_lshl_b32 s70, s70, 5
    s_lshr_b32 s30, s2, 3
    s_or_b32 s70, s70, s30             ; bucket
    {'s_mov_b32 s70, s2' if opts.get('nomap') else ''}
    s_mov_b32 s4, s68
    s_and_b32 s5, s69, 0xffff
    s_mov_b32 s6, {N*128}
    s_mov_b32 s7, 0x20000
    s_lshr_b32 s27, s3, 1              ; nt
    s_and_b32 s28, s3, 1               ; cb
    v_lshrrev_b32 v12, 3, v1           ; r3
    v_and_b32 v13, 7, v1               ; c
    v_lshrrev_b32 v14, 2, v12
    v_xor_b32 v13, v13, v14
    v_lshlrev_b32 v13, 4, v13          ; swz0
    s_mul_i32 s29, s70, {NB}
    s_lshl_b32 s30, s27, 5
    s_add_u32 s29, s29, s30
    s_lshl_b32 s30, s28, 1
    s_add_u32 s29, s29, s30
    s_lshl_b32 s29, s29, 7
    v_lshlrev_b32 v14, 9, v12
    v_add_u32 v14, s29, v14
    s_lshl_b32 s30, s28, 6
    v_xor_b32 v15, s30, v13
    v_add_u32 v20, v14, v15
    v_xor_b32 v15, 32, v15
    v_add3_u32 v21, v14, v15, 64
    v_add_u32 v21, 64, v21
    v_lshlrev_b32 v5, 4, v1
    v_mov_b32 v7, 1
    """)
    def scale8(src, tmp):
        for i in range(4):
            a(f"v_lshlrev_b32 v{tmp+2*i}, 16, v{src+i}")
            a(f"v_and_b32 v{tmp+2*i+1}, 0xffff0000, v{src+i}")
        for i in range(8): a(f"v_mul_f32 v{tmp+i}, {NLOG2E}, v{tmp+i}")
        for i in range(4): a(f"v_cvt_pk_bf16_f32 v{src+i}, v{tmp+2*i}, v{tmp+2*i+1}")
    def hist1(u):
        a(f"s_mov_b64 exec, {sr(40+2*u,2)}")
        if u==1: a("s_cbranch_execz FK_NH1")
        for i in range(4): a(f"v_mul_u32_u24 v{BK[u]+i}, {BMAGIC}, v{D[u]+i}")
        for i in range(4): a(f"v_lshrrev_b32 v{BK[u]+i}, {BSHIFT}, v{BK[u]+i}")
        for i in range(4): a(f"v_mul_u32_u24 v{T1[u]+i}, {NB}, v{BK[u]+i}")
        for i in range(4): a(f"v_lshlrev_b32 v{BK[u]+i}, 2, v{BK[u]+i}")
        for i in range(4): a(f"ds_add_rtn_u32 v{RK[u]+i}, v{BK[u]+i}, v7 offset:{L1_HIST[u]}")
        for i in range(4): a(f"v_sub_u32 v{D[u]+i}, v{D[u]+i}, v{T1[u]+i}")
        if u==1: a("FK_NH1:")
        a("s_mov_b64 exec, -1")
    def scan1(u):
        a(f"""
        s_waitcnt lgkmcnt(0)
        v_add_u32 v{SC+5}, v{SC}, v{SC+1}
        v_add_u32 v{SC+6}, v{SC+5}, v{SC+2}
        v_add_u32 v{SC+7}, v{SC+6}, v{SC+3}
        v_mov_b32 v{SC+4}, v{SC+7}
        """)
        dpp_scan(a, SC+4)
        a(f"""
        v_sub_u32 v{SC+8}, v{SC+4}, v{SC+7}
        {'v_add_u32 v%d, 2048, v%d'%(SC+8,SC+8) if u else ''}
        v_add_u32 v{SC+9}, v{SC+8}, v{SC}
        v_add_u32 v{SC+10}, v{SC+8}, v{SC+5}
        v_add_u32 v{SC+11}, v{SC+8}, v{SC+6}
        ds_write_b128 v5, v[{SC+8}:{SC+11}] offset:{L1_BASE[u]}
        s_mov_b64 exec, {sr(40+2*u,2)}
        """)
        for i in range(4): a(f"ds_read_b32 v{T1[u]+i}, v{BK[u]+i} offset:{L1_BASE[u]}")
        a("s_mov_b64 exec, -1")
        for c in range(4): a(f"v_lshl_or_b32 v{PUB[u]+2*c}, v{SC+c}, 12, v{SC+8+c}")
    def scat1(u):
        a(f"s_mov_b64 exec, {sr(40+2*u,2)}")
        for i in range(4): a(f"v_add_u32 v{T1[u]+i}, v{T1[u]+i}, v{RK[u]+i}")
        for i in range(4): a(f"v_mul_u32_u24 v{T1[u]+i}, 12, v{T1[u]+i}")
        for i in range(4): a(f"v_lshl_or_b32 v{S[u]+i}, v{D[u]+i}, 16, v{S[u]+i}")
        for i in range(4):
            a(f"ds_write2_b32 v{T1[u]+i}, v{EAr[u]+2*i}, v{EAr[u]+1+2*i} offset0:0 offset1:1")
            a(f"ds_write_b32 v{T1[u]+i}, v{S[u]+i} offset:8")
        a("s_mov_b64 exec, -1")
    def wl():
        a(f"""
        s_lshl_b32 s30, s3, 10
        s_add_u32 m0, s30, {L_STG+8192}
        global_load_dwordx4 {vr(WBR,4)}, v23, s[78:79]
        global_load_lds_dwordx4 v23, s[84:85]
        s_add_u32 m0, s30, {L_STG+16384}
        s_lshl_b32 s31, s3, 11
        global_load_lds_dwordx4 v23, s[76:77]
        s_add_u32 m0, s30, {L_STG+24576}
        s_nop 0
        global_load_lds_dwordx4 v23, s[82:83]
        s_add_u32 m0, s31, {L_EA}
        s_nop 0
        buffer_load_dwordx4 v20, s[4:7], 0 offen lds
        s_add_u32 m0, s31, {L_EA+1024}
        s_nop 0
        buffer_load_dwordx4 v21, s[4:7], 0 offen lds
        s_mov_b32 exec_hi, 0
        global_load_dwordx4 v[12:15], v5, s[80:81]
        s_mov_b32 exec_hi, -1
        """)
    if WE==1: wl()
    a(f"""
    s_mul_i32 s26, s2, {CH_BYTES}
    s_add_u32 s26, s26, {WS_REC}
    s_add_u32 s32, s90, s26
    s_addc_u32 s33, s91, 0
    s_and_b32 s33, s33, 0xffff
    s_mov_b32 s34, {CH_BYTES}
    s_mov_b32 s35, 0x20000
    """)
    a(f"""
    s_sub_u32 s96, s68, 3072
    s_subb_u32 s97, s69, 0
    s_and_b32 s97, s97, 0xffff
    s_mov_b32 s98, {N*128+3072}
    s_mov_b32 s99, 0x20000
    v_lshrrev_b32 v233, 3, v1
    v_and_b32 v234, 7, v1
    v_lshrrev_b32 v232, 2, v233
    v_xor_b32 v234, v234, v232
    v_lshlrev_b32 v234, 4, v234
    s_mov_b32 s8, s86
    s_and_b32 s9, s87, 0xffff
    s_mov_b32 s10, {N*128}
    s_mov_b32 s11, 0x20000
    s_mov_b32 s16, 0
    s_mov_b32 s17, 0xffff
    s_mov_b32 s18, 0
    s_mov_b32 s67, 0
    v_add_u32 v{SWZ}, 3072, v234
    v_xor_b32 v{SWZ+1}, 32, v234
    v_add_u32 v{SWZ+1}, 2048, v{SWZ+1}
    v_xor_b32 v{SWZ+2}, 64, v234
    v_add_u32 v{SWZ+2}, 1024, v{SWZ+2}
    v_xor_b32 v{SWZ+3}, 96, v234
    v_and_b32 v{S_R1}, 1, v233
    v_lshrrev_b32 v{S_C1}, 1, v233
    v_lshlrev_b32 v{S_C1}, 4, v{S_C1}
    v_add_u32 v{S_C1}, {L_SF}, v{S_C1}
    v_and_b32 v2, 31, v1
    v_lshrrev_b32 v3, 5, v1
    v_lshlrev_b32 v{L4N}, 2, v2
    v_and_b32 v224, 3, v2
    v_lshrrev_b32 v231, 2, v2
    v_lshlrev_b32 v225, 10, v224
    v_lshl_add_u32 v225, v231, 7, v225
    v_lshrrev_b32 v226, 2, v231
    v_lshl_or_b32 v226, v224, 1, v226
    v_xor_b32 v226, v226, v3
    v_lshl_add_u32 v225, v226, 4, v225
    s_lshl_b32 s24, s3, 12
    s_add_u32 s24, s24, {L_STG}
    v_add_u32 v{AAD}, s24, v225
    v_xor_b32 v226, 32, v225
    v_add_u32 v{AAD+1}, s24, v226
    v_xor_b32 v226, 64, v225
    v_add_u32 v{AAD+2}, s24, v226
    v_xor_b32 v226, 96, v225
    v_add_u32 v{AAD+3}, s24, v226
    v_and_b32 v{S_HS}, 1, v231
    v_lshrrev_b32 v227, 1, v231
    v_lshl_add_u32 v228, v227, 2, v224
    v_lshlrev_b32 v{AEI}, 6, v3
    v_sub_u32 v{AEI}, 128, v{AEI}
    v_lshrrev_b32 v{S_SC}, 2, v{AEI}
    v_lshrrev_b32 v229, 4, v{AEI}
    v_mul_u32_u24 v230, {L_SF-L_EA}, v3
    v_mad_u32_u24 v{S_C0}, v228, v229, v230
    v_add_u32 v{S_C0}, {L_EA}, v{S_C0}
    v_cmp_eq_u32 s[36:37], v{S_HS}, v3
    v_mov_b32 v228, 7
    v_mov_b32 v229, 0x3f80
    v_cndmask_b32_e64 v227, v228, v227, s[36:37]
    """)
    a(f"""
    v_and_b32 v228, 1, v227
    v_lshlrev_b32 v228, 4, v228
    v_lshlrev_b32 v229, v228, v229
    v_lshrrev_b32 v227, 1, v227
    v_cmp_eq_u32 s[60:61], 0, v227
    v_cmp_eq_u32 s[62:63], 1, v227
    v_mul_u32_u24 v{S_L12}, 12, v1
    v_mov_b32 v{S_FA}, {L_FLAG}
    v_cndmask_b32_e64 v{AOH[0]}, 0, v229, s[60:61]
    v_cndmask_b32_e64 v{AOH[0]+1}, 0, v229, s[62:63]
    """)
    a(f"""
    s_lshl_b32 s31, s3, 5
    v_add_u32 v224, s31, v2
    v_mul_u32_u24 v{S_CB}, {CH_BYTES}, v224
    v_add_u32 v{S_CB}, {WS_REC}, v{S_CB}
    v_lshlrev_b32 v{S_PO}, 12, v224
    v_lshl_add_u32 v{S_PO}, v3, 11, v{S_PO}
    """)
    a(f"""
    v_and_b32 v227, 15, v1
    v_lshrrev_b32 v228, 2, v227
    v_lshlrev_b32 v228, 7, v228
    v_and_b32 v227, 3, v227
    v_lshl_add_u32 v228, v227, 3, v228
    v_lshl_add_u32 v228, v3, 10, v228
    v_and_b32 v227, 16, v1
    v_lshl_add_u32 v228, v227, 1, v228
    v_add_u32 v40, {L_STG}, v228
    s_lshr_b32 s58, s3, 2
    s_and_b32 s59, s3, 3               ; nt
    s_lshl_b32 s30, s58, 13
    v_add_u32 v41, s30, v40
    v_add_u32 v42, {L_WCL}, v228
    s_lshl_b32 s30, s59, 12
    s_sub_u32 s30, s30, s24
    s_add_u32 s30, s30, {L_EA}
    """)
    for s in range(4): a(f"v_add_u32 v{204+s}, s30, v{AAD+s}")
    stamp()
    a("s_waitcnt vmcnt(10)" if WE==1 else "s_waitcnt vmcnt(3)")
    a(set1)
    if WE==2: wl()
    if opts.get("warm",1):
        a(f"""
        s_cmp_lt_u32 s3, 5
        s_cbranch_scc1 FK_NOWARM
        v_lshlrev_b32 v10, 7, v1
        s_cmp_eq_u32 s3, 7
        s_cbranch_scc1 FK_WARM7
        s_cmp_eq_u32 s3, 5
        s_cselect_b32 s36, s78, s76
        s_cselect_b32 s37, s79, s77
        s_cselect_b32 s38, s84, s82
        s_cselect_b32 s39, s85, s83
        global_load_dword v11, v10, s[36:37]
        global_load_dword v12, v10, s[38:39]
        s_branch FK_NOWARM
FK_WARM7:
        s_mul_i32 s30, s70, {NB*128}
        buffer_load_dword v11, v10, s[4:7], s30 offen
        s_add_u32 s30, s30, 8192
        buffer_load_dword v12, v10, s[4:7], s30 offen
FK_NOWARM:
        """)
    stamp()
    NC={0:3,1:2}; OFFS={0:0,1:SUBB}
    s_lab=[0]
    def only1(u,fn):
        if u==1:
            s_lab[0]+=1; l=f"FK_O1_{s_lab[0]}"
            a(f"s_cmp_gt_u32 s3, 4\ns_cbranch_scc1 {l}"); fn(); a(f"{l}:")
        else: fn()
    hist1(F)
    a(f"s_waitcnt lgkmcnt(0)\ns_barrier\nds_read_b128 v[{SC}:{SC+3}], v5 offset:{L1_HIST[F]}")
    def part1():
        scan1(F); a("s_waitcnt vmcnt(11) lgkmcnt(0)" if WE else "s_waitcnt vmcnt(4) lgkmcnt(0)"); scat1(F)
    only1(F,part1)
    stamp()
    a("s_waitcnt vmcnt(10)" if WE==2 else "s_waitcnt vmcnt(3)")
    hist1(Gs)
    def stg():
        scale8(WBR, 240)
        a(f"""
        v_add_u32 v10, {L_STG}, v23
        ds_write_b128 v10, {vr(WBR,4)}
        s_cmp_lg_u32 s3, 7
        s_cbranch_scc1 FK_N7C
        """)
        scale8(12, 240)
        a(f"""
        v_add_u32 v10, {L_WCL}, v5
        s_mov_b32 exec_hi, 0
        ds_write_b128 v10, v[12:15]
        s_mov_b32 exec_hi, -1
FK_N7C:
        """)
    if WE==1: stg()
    a("s_waitcnt lgkmcnt(0)")
    stamp()
    a("s_barrier")
    for i in range(NC[F]): a(f"ds_read_b128 {vr(CPO[0]+4*i,4)}, v23 offset:{OFFS[F]+i*NT*16}")
    a(f"ds_read_b128 v[{SC}:{SC+3}], v5 offset:{L1_HIST[Gs]}")
    a("v_mov_b32 v37, 0\nglobal_load_dwordx2 v[38:39], v37, s[88:89] sc0 sc1")
    if F==1: a(f"s_mov_b32 s34, {CH_BYTES}")
    for i in range(NC[F]):
        a(f"s_waitcnt lgkmcnt({NC[F]-i})")
        a(f"s_mov_b32 s31, {OFFS[F]+i*NT*16}")
        a(f"buffer_store_dwordx4 {vr(CPO[0]+4*i,4)}, v23, s[32:35], s31 offen {STF}")
    stamp()
    def part2():
        scan1(Gs); a(f"s_waitcnt vmcnt({NC[F]+1+(7 if WE==2 else 0)}) lgkmcnt(0)"); scat1(Gs)
    only1(Gs,part2)
    if WE==2:
        a(f"s_waitcnt vmcnt({NC[F]+1}) lgkmcnt(0)")
        stg()
    a("s_waitcnt lgkmcnt(0)")
    stamp()
    a("s_barrier")
    for i in range(NC[Gs]): a(f"ds_read_b128 {vr(CPO[1]+4*i,4)}, v23 offset:{OFFS[Gs]+i*NT*16}")
    for i in range(NC[Gs]):
        a(f"s_waitcnt lgkmcnt({NC[Gs]-1-i})")
        a(f"s_mov_b32 s31, {OFFS[Gs]+i*NT*16}")
        a(f"buffer_store_dwordx4 {vr(CPO[1]+4*i,4)}, v23, s[32:35], s31 offen {STF}")
    if WE:
        for s in range(4): a(f"ds_read_b128 {vr(A[0]+4*s,4)}, v{204+s}")
        for cb in range(2):
            for s in range(4):
                for hh in range(2):
                    a(f"ds_read_b64_tr_b16 {vr(WAU+(cb*4+s)*4+2*hh,2)}, v41 offset:{16384+s*2048+cb*64+hh*512}")
        a(f"""
        s_waitcnt lgkmcnt(8)
        """)
        for cb in range(2):
            if cb: a("s_waitcnt lgkmcnt(0)")
            for s in range(4):
                a(f"v_mfma_f32_32x32x16_bf16 {vr(XAC+16*cb,16)}, {vr(A[0]+4*s,4)}, {vr(WAU+16*cb+4*s,4)}, {'0' if s==0 else vr(XAC+16*cb,16)}")
    stamp()
    a(f"""
    s_mov_b32 s12, s90
    s_and_b32 s13, s91, 0xffff
    s_mov_b32 s14, {WS_SIZE}
    s_mov_b32 s15, 0x20000
    """)
    a(f"""
    s_waitcnt vmcnt(5)
    s_mov_b32 s31, 400000
FK_NONCE:
    v_readfirstlane_b32 s92, v38
    v_readfirstlane_b32 s93, v39
    s_or_b32 s30, s92, s93
    s_cbranch_scc1 FK_NONCED
    s_sub_u32 s31, s31, 1
    s_cbranch_scc1 FK_NONCED
    s_sleep 1
    global_load_dwordx2 v[38:39], v37, s[88:89] sc0 sc1
    s_waitcnt vmcnt(0)
    s_branch FK_NONCE
FK_NONCED:
    s_lshr_b64 s[94:95], s[92:93], 8
    s_lshl_b32 s92, s92, 24
    s_mov_b32 s93, s94
    s_cmp_lg_u32 s3, 0
    s_cbranch_scc1 FK_NOPW
    """)
    for u in range(2):
        for c in range(4): a(f"v_or_b32 v{PUB[u]+2*c}, s92, v{PUB[u]+2*c}\nv_mov_b32 v{PUB[u]+2*c+1}, s93")
    a(f"""
    v_lshlrev_b32 v6, 5, v1
    s_lshl_b32 s29, s2, 12
    s_add_u32 s29, s29, {WS_OFF}
FK_NOPW:
    """)
    stamp()
    a("s_waitcnt vmcnt(0)")
    stamp()
    a(f"""
    s_barrier
    s_cmp_lg_u32 s3, 0
    s_cbranch_scc1 FK_NOPUB
    buffer_store_dwordx4 {vr(PUB[0],4)}, v6, s[12:15], s29 offen sc1
    buffer_store_dwordx4 {vr(PUB[0]+4,4)}, v6, s[12:15], s29 offen offset:16 sc1
    buffer_store_dwordx4 {vr(PUB[1],4)}, v6, s[12:15], s29 offen offset:2048 sc1
    buffer_store_dwordx4 {vr(PUB[1]+4,4)}, v6, s[12:15], s29 offen offset:2064 sc1
    s_lshl_b32 s29, s2, 2
    s_add_u32 s29, s29, {WS_RDY}
    s_mov_b64 exec, 1
    buffer_store_dword v{PUB[0]+1}, v37, s[12:15], s29 offen sc1
    s_mov_b64 exec, -1
FK_NOPUB:
    """)
    dbg(7)
    rstamp(55)
    a(f"""
    s_lshl_b32 s26, s70, 3
    s_add_u32 s26, s26, {WS_OFF}
    """)
    if not WE:
        a(f"""
        s_lshl_b32 s30, s3, 10
        s_add_u32 m0, s30, {L_STG+8192}
        global_load_dwordx4 {vr(WBR,4)}, v23, s[78:79]
        global_load_lds_dwordx4 v23, s[84:85]
        s_add_u32 m0, s30, {L_STG+16384}
        s_lshl_b32 s31, s3, 11
        global_load_lds_dwordx4 v23, s[76:77]
        s_add_u32 m0, s30, {L_STG+24576}
        s_nop 0
        global_load_lds_dwordx4 v23, s[82:83]
        s_add_u32 m0, s31, {L_EA}
        s_nop 0
        buffer_load_dwordx4 v20, s[4:7], 0 offen lds
        s_add_u32 m0, s31, {L_EA+1024}
        s_nop 0
        buffer_load_dwordx4 v21, s[4:7], 0 offen lds
        s_mov_b32 exec_hi, 0
        global_load_dwordx4 v[12:15], v5, s[80:81]
        s_mov_b32 exec_hi, -1
        """)

        if STAMP==2: stamp()
        a("s_waitcnt vmcnt(0)")
        if STAMP==2: stamp()
        scale8(WBR, SC)
        a(f"""
        v_add_u32 v10, {L_STG}, v23
        ds_write_b128 v10, {vr(WBR,4)}
        s_cmp_lg_u32 s3, 7
        s_cbranch_scc1 FK_N7B
        """)
        scale8(12, SC)
        a(f"""
        v_add_u32 v10, {L_WCL}, v5
        s_mov_b32 exec_hi, 0
        ds_write_b128 v10, v[12:15]
        s_mov_b32 exec_hi, -1
FK_N7B:
        """)
        a("s_waitcnt lgkmcnt(0)\ns_barrier")
        for s in range(4): a(f"ds_read_b128 {vr(A[0]+4*s,4)}, v{204+s}")
        for cb in range(2):
            for s in range(4):
                for hh in range(2):
                    a(f"ds_read_b64_tr_b16 {vr(WAU+(cb*4+s)*4+2*hh,2)}, v41 offset:{16384+s*2048+cb*64+hh*512}")
        a(f"""
        s_waitcnt lgkmcnt(8)
        """)
        for cb in range(2):
            if cb: a("s_waitcnt lgkmcnt(0)")
            for s in range(4):
                a(f"v_mfma_f32_32x32x16_bf16 {vr(XAC+16*cb,16)}, {vr(A[0]+4*s,4)}, {vr(WAU+16*cb+4*s,4)}, {'0' if s==0 else vr(XAC+16*cb,16)}")
    if STAMP==2: stamp()
    a(f"""
    s_lshl_b32 s27, s3, 7
    s_add_u32 s27, s27, {WS_RDY}
    {'' if RP1 else 'buffer_load_dword v38, v%d, s[12:15], s27 offen sc1'%L4N}
    """)
    for m in range(2):
        for s in range(4):
            for cb in range(2):
                for hh in range(2):
                    a(f"ds_read_b64_tr_b16 {vr(WB+m*32+(s*2+cb)*4+2*hh,2)}, v40 offset:{m*8192+s*2048+cb*64+hh*512}")
    a(f"""
    ds_read_b64_tr_b16 {vr(WC[0],2)}, v42
    ds_read_b64_tr_b16 {vr(WC[1],2)}, v42 offset:64
    """)
    if STAMP==2: stamp()
    a(f"""
    s_cmp_lg_u32 s58, 0
    s_cbranch_scc1 FK_XU
    v_mul_u32_u24 v7, {4*ROWB}, v3
    v_add_u32 v7, v{L4N}, v7
    s_mul_i32 s31, s59, {32*ROWB}
    s_add_u32 s31, s31, 512
    v_add_u32 v7, s31, v7
    """)
    for i in range(32): a(f"v_mul_f32 v{XAC+i}, {NLOG2E}, v{XAC+i}")
    for i in range(16): a(f"v_cvt_pk_bf16_f32 v{XAC+i}, v{XAC+i}, v{XAC+16+i}")
    a("s_cmp_eq_u32 s59, 3\ns_cbranch_scc1 FK_XA3")
    for i in range(16): a(f"ds_write_b32 v7, v{XAC+i} offset:{((i>>2)*8+(i&3))*ROWB}")
    a(f"""
    s_branch FK_XA4
FK_XA3:
    s_mov_b32 exec_hi, 0
    ds_write_b32 v7, v{XAC} offset:0
    ds_write_b32 v7, v{XAC+1} offset:{ROWB}
    s_mov_b64 exec, -1
    s_branch FK_XA4
FK_XU:
    v_lshl_add_u32 v8, v3, 9, v{L4N}
    s_lshl_b32 s31, s2, 14
    s_lshl_b32 s30, s59, 12
    s_add_u32 s31, s31, s30
    s_add_u32 s31, s31, {WS_XU}
    """)
    XD=opts.get("xud",0)
    XS_=208 if XD else XAC
    for i in range(16): a(f"v_cvt_pk_bf16_f32 v{XS_+i}, v{XAC+i}, v{XAC+16+i}")
    def xust(lab):
        for i in range(16):
            if i==2: a(f"s_cmp_eq_u32 s59, 3\ns_cbranch_scc1 {lab}")
            a(f"buffer_store_dword v{XS_+i}, v{193 if XD else 8}, s[12:15], s{73 if XD else 31} offen offset:{((i>>2)*8+(i&3))*128} {opts.get('xuf','')}")
    if XD: a("v_mov_b32 v193, v8\ns_mov_b32 s73, s31")
    else: xust("FK_XA4")
    a(f"""
FK_XA4:
    s_waitcnt lgkmcnt(0)
    s_mov_b32 exec_lo, 0
    v_mov_b32 v{WC[0]}, {BIG16<<16}
    v_mov_b32 v{WC[0]+1}, 0
    v_mov_b32 v{WC[1]}, {BIG16<<16}
    v_mov_b32 v{WC[1]+1}, 0
    s_mov_b32 exec_lo, -1
FK_XAD:
    s_mov_b32 s74, 0x05040100
    s_mov_b32 s75, 0x07060302
    s_lshl_b32 s29, s3, 8
    s_add_u32 s29, s29, {L_ADJ}
    s_lshl_b32 s30, s3, 6
    s_add_u32 s30, s30, {L_BM}
    s_mov_b32 s31, 400000
    s_mov_b64 s[64:65], -1
    """)
    stamp()
    if RP1:
        a(f"""
        s_cmp_lg_u32 s67, 0
        s_cbranch_scc1 FK_RGOT
        s_cmp_lg_u32 s3, {opts.get('rpw',7)}
        s_cbranch_scc1 FK_RBAR
        v_lshlrev_b32 v12, 4, v1
        s_mov_b32 s27, {WS_RDY}
FK_RPOLL:
        buffer_load_dwordx4 v[8:11], v12, s[12:15], s27 offen sc1
        s_waitcnt vmcnt(0)
        v_cmp_ne_u32 s[34:35], s93, v8
        v_cmp_ne_u32 s[36:37], s93, v9
        v_cmp_ne_u32 s[38:39], s93, v10
        v_cmp_ne_u32 vcc, s93, v11
        s_or_b64 s[34:35], s[34:35], s[36:37]
        s_or_b64 s[38:39], s[38:39], vcc
        s_or_b64 s[34:35], s[34:35], s[38:39]
        s_cbranch_scc0 FK_RBAR
        s_sub_u32 s31, s31, 1
        s_cbranch_scc1 FK_RBAR
        s_sleep {opts.get('rsleep',8)}
        s_branch FK_RPOLL
FK_RBAR:
        s_barrier
        """)
    else:
        a(f"""
FK_RPOLL:
        s_waitcnt vmcnt(0)
        v_cmp_ne_u32 vcc, s93, v38
        s_cbranch_vccz FK_RGOT
        s_sub_u32 s31, s31, 1
        s_cbranch_scc1 FK_RGOT
        s_sleep {opts.get('sleep',2)}
        buffer_load_dword v38, v{L4N}, s[12:15], s27 offen sc1
        s_branch FK_RPOLL
        """)
    a(f"""
FK_RGOT:
    s_mov_b32 s31, 400000
    """)
    rstamp(56)
    a(f"""
    buffer_load_dwordx2 v[38:39], v{S_PO}, s[12:15], s26 offen sc1
FK_POLL:
    s_waitcnt vmcnt(0)
    v_and_b32 v8, 0xff000000, v38
    v_cmp_eq_u32 s[34:35], s93, v39
    v_cmp_eq_u32 s[36:37], s92, v8
    s_nand_b64 s[34:35], s[34:35], s[36:37]
    s_cbranch_scc0 FK_GOT
    """)
    if opts.get("pfn",0):
        a(f"""
        s_andn2_b64 s[36:37], s[64:65], s[34:35]
        s_cbranch_scc0 FK_NOPF
        s_mov_b64 s[64:65], s[34:35]
        s_mov_b64 exec, s[36:37]
        v_and_b32 v9, 0xfff, v38
        v_bfe_u32 v10, v38, 12, 12
        v_mad_u32_u24 v9, v9, 12, v{S_CB}
        v_mad_u32_u24 v10, v10, 12, v9
        buffer_load_dword v11, v9, s[12:15], 0 offen sc1
        {'buffer_load_dword v14, v10, s[12:15], 0 offen sc1' if opts['pfn']>1 else ''}
FK_NOPF:
        """)
    a(f"""
    s_sub_u32 s31, s31, 1
    s_cbranch_scc1 FK_GOT
    s_sleep {opts.get('sleep',4)}
    s_mov_b64 exec, s[34:35]
    buffer_load_dwordx2 v[38:39], v{S_PO}, s[12:15], s26 offen sc1
    s_mov_b64 exec, -1
    s_branch FK_POLL
FK_GOT:
    s_mov_b64 exec, -1
    """)
    dbg(6)
    rstamp(57)
    stamp()
    a(f"""
    v_bfe_u32 v8, v38, 12, 12
    v_and_b32 v9, 0xfff, v38
    v_mov_b32 v{T+6}, v8
    v_min_u32 v8, s17, v8
    v_subrev_u32 v8, s16, v8
    v_max_i32 v8, 0, v8
    v_mov_b32 v10, v8
    v_add_u32 v9, s16, v9
    """)
    dpp_scan(a, 10)
    B0=T+8
    a(f"""
    v_cmp_lt_u32 s[34:35], 0, v8
    v_sub_u32 v11, v10, v8
    v_readlane_b32 s20, v10, 63
    v_sub_u32 v9, v9, v11
    v_mul_i32_i24 v9, 12, v9
    v_add_u32 v9, v9, v{S_CB}
    v_mbcnt_lo_u32_b32 v12, s34, 0
    v_mbcnt_hi_u32_b32 v12, s35, v12
    v_lshl_add_u32 v12, v12, 2, s29
    v_add_u32 v13, -1, v11
    v_lshrrev_b32 v14, 5, v13
    v_min_u32 v14, 15, v14
    v_lshl_add_u32 v14, v14, 2, s30
    v_lshlrev_b32 v13, v13, 1
    v_cmp_lt_u32 s[36:37], 0, v11
    v_mov_b32 v{T+5}, s30
    s_mov_b64 exec, s[34:35]
    ds_write_b32 v12, v9
    s_and_b64 exec, s[34:35], s[36:37]
    ds_or_b32 v14, v13
    s_mov_b64 exec, -1
    ds_read_b128 {vr(B0,4)}, v{T+5}
    ds_read_b128 {vr(B0+4,4)}, v{T+5} offset:16
    ds_read_b128 {vr(B0+8,4)}, v{T+5} offset:32
    ds_read_b128 {vr(B0+12,4)}, v{T+5} offset:48
    s_lshr_b32 s31, s29, 2
    v_mov_b32 v15, s31
    """)
    for p in range(NPASS):
        a(f"""
        s_sub_i32 s31, s20, {64*p}
        v_cmp_gt_i32 {msk(p)}, s31, v1
        """)
    def adr(p):
        if p%2==0: a(f"s_waitcnt lgkmcnt({3-p//2+p})")
        lo=B0+2*p; hi=lo+1
        a(f"""
        v_mbcnt_lo_u32_b32 v{HA+p}, v{lo}, v15
        v_mbcnt_hi_u32_b32 v{HA+p}, v{hi}, v{HA+p}
        {'v_bcnt_u32_b32 v15, v%d, v15'%lo if p<NPASS-1 else ''}
        v_lshlrev_b32 v{HA+p}, 2, v{HA+p}
        {'v_bcnt_u32_b32 v15, v%d, v15'%hi if p<NPASS-1 else ''}
        ds_read_b32 v{HA+p}, v{HA+p}
        """)
    def ld(p,n):
        a(f"""
        s_waitcnt lgkmcnt({n-1-p})
        v_add_u32 v{HA+p}, v{HA+p}, v{S_L12}
        {'s_mov_b32 s31, %d'%(768*p) if p>5 else ''}
        s_mov_b64 exec, {msk(p)}
        buffer_load_dwordx3 {vr(rec(p),3)}, v{HA+p}, s[12:15], {'s31 offen' if p>5 else '0 offen offset:%d'%(768*p)} {opts.get('ldf','sc1')}
        """)
    def mid(n):
        l=f"FK_NOMAX{n}"
        a(f"""
        s_mov_b64 exec, -1
        s_cmp_gt_u32 s20, {64*NPASS}
        s_cselect_b32 s71, 0x10000, 0
        s_or_b32 s31, s71, s18
        s_cbranch_scc0 {l}
        v_or_b32 v{T+6}, s71, v{T+6}
        ds_max_u32 v{S_FA}, v{T+6}
{l}:
        v_lshl_add_u32 v8, v2, 2, s29
        v_mov_b32 v9, 0
        ds_write_b32 v8, v9
        s_mov_b32 s62, s29
        v_mov_b32 v{T+7}, 1
        v_add_u32 v{T+17}, {L_HIST}, v{S_L8}
        s_mov_b32 s31, {L_HIST}
        s_mov_b32 m0, s24
        """)
    def hs(p,n):
        q=rec(p)
        a(f"""
        s_waitcnt vmcnt({n-1-p})
        s_mov_b64 exec, {msk(p)}
        v_bfe_u32 v{HA+p}, v{q+2}, 16, 7
        v_lshl_add_u32 v{HA+p}, v{HA+p}, 2, s31
        ds_add_rtn_u32 v{q+3}, v{HA+p}, v{T+7}
        """)
    for p in range(6): adr(p)
    a("s_cmp_gt_u32 s20, 384\ns_cbranch_scc1 FK_P7")
    c0=cnt[0]
    for n in (6,7,8):
        cnt[0]=c0
        if n==7:
            a("FK_P7:"); adr(6); a("s_cmp_gt_u32 s20, 448\ns_cbranch_scc1 FK_P8")
        if n==8:
            a("FK_P8:"); adr(7)
        for p in range(n): ld(p,n)
        mid(n)
        stamp()
        for p in range(n): hs(p,n)
        if n<8: a("s_branch FK_HD")
    a(f"""
FK_HD:
    s_mov_b64 exec, -1
    s_waitcnt vmcnt(0)
    """)
    if opts.get("xud",0):
        a("s_cmp_eq_u32 s58, 0\ns_cbranch_scc1 FK_XUD\ns_cmp_lg_u32 s67, 0\ns_cbranch_scc1 FK_XUD")
        xust("FK_XUD")
        a("FK_XUD:")
    xpf(a,opts.get("xpf1",0),opts.get("xpf2",0),168)
    a("s_waitcnt lgkmcnt(0)")
    stamp()
    a("s_barrier")
    a(f"""
    ds_read_b64 v[{T+20}:{T+21}], v{T+17}
    ds_read_b32 v{T+19}, v{S_FA}
    s_waitcnt lgkmcnt(0)
    v_add_u32 v{T+2}, 3, v{T+20}
    v_add_u32 v{T+3}, 3, v{T+21}
    v_and_b32 v{T+2}, 0xfffffffc, v{T+2}
    v_and_b32 v{T+3}, 0xfffffffc, v{T+3}
    v_add_u32 v{T+3}, v{T+2}, v{T+3}
    v_mov_b32 v{T+4}, v{T+3}
    v_readfirstlane_b32 s19, v{T+19}
    """)
    dpp_scan(a, T+4)
    a(f"""
    v_sub_u32 v{T+22}, v{T+4}, v{T+3}
    v_add_u32 v{T+23}, v{T+22}, v{T+2}
    v_readlane_b32 s20, v{T+4}, 63     ; 4Q
    ds_write_b64 v{T+17}, v[{T+22}:{T+23}] offset:{L_SB-L_HIST}
    s_cmp_lg_u32 s18, 0
    s_cbranch_scc1 FK_OK
    s_cmp_ge_u32 s19, 0x10000
    s_cbranch_scc1 FK_GOSLOW
    s_cmp_le_u32 s20, {CAP}
    s_cbranch_scc1 FK_OK
FK_GOSLOW:
    s_mov_b32 s18, 1
    s_mov_b32 s17, {SLOWR}
    s_branch FK_REBATCH
FK_OK:
    """)
    for p in range(NPASS):
        a(f"""
        s_mov_b64 exec, {msk(p)}
        {'s_cbranch_execz FK_RD' if p>=5 else ''}
        ds_read_b32 v{HA+p}, v{HA+p} offset:{L_SB-L_HIST}
        """)
    a(f"""
FK_RD:
    s_mov_b64 exec, -1
    s_and_b32 s19, s19, 0xffff
    s_add_u32 s26, s20, 31
    s_lshr_b32 s26, s26, 5             ; TT
    s_lshl_b32 s29, s26, 5             ; 32TT
    s_lshr_b32 s27, s26, 3             ; NT0
    s_and_b32 s26, s26, 7              ; rem
    s_mul_i32 s22, s3, s27
    s_min_u32 s28, s3, s26
    s_add_u32 s22, s22, s28
    s_lshl_b32 s22, s22, 3             ; qs0
    s_cmp_lt_u32 s3, s26
    s_cselect_b32 s28, 1, 0
    s_add_u32 s21, s27, s28            ; NT
    s_lshl_b32 s28, s21, 2             ; 4NT
    s_add_u32 s23, s22, s28            ; qs1
    s_cmp_eq_u32 s3, 1
    s_cbranch_scc1 FK_JOBD
    s_bitcmp1_b32 s3, 0
    s_cselect_b64 s[34:35], -1, 0
    v_cndmask_b32_e64 v4, v{T+20}, v{T+21}, s[34:35]
    v_cndmask_b32_e64 v5, v{T+22}, v{T+23}, s[34:35]
    s_lshr_b32 s27, s3, 1
    v_mov_b32 v8, 0
    v_mov_b32 v9, 0
    v_mov_b32 v10, {FLAG16<<16}
    s_cmp_lg_u32 s27, 0
    s_cbranch_scc1 FK_PADJOB
    v_add_u32 v5, s20, v1
    v_cmp_ge_u32 vcc, s29, v5
    s_branch FK_PADW
FK_PADJOB:
    v_sub_u32 v6, 0, v4
    v_and_b32 v6, 3, v6
    v_add3_u32 v5, v5, v4, s27
    v_add_u32 v5, -1, v5
    v_cmp_le_u32 vcc, s27, v6
FK_PADW:
    v_lshlrev_b32 v6, 3, v5
    v_add_u32 v6, {L_EA}, v6
    v_lshlrev_b32 v7, 2, v5
    v_add_u32 v7, {L_SF}, v7
    s_mov_b64 exec, vcc
    ds_write_b64 v6, v[8:9]
    ds_write_b32 v7, v10
    s_mov_b64 exec, -1
    s_waitcnt lgkmcnt(2)
    s_branch FK_JOBE
FK_JOBD:
    s_waitcnt lgkmcnt(0)
FK_JOBE:
    s_mov_b32 s30, {L_EA}
    s_mov_b32 s31, {L_SF}
    """)
    for p in range(NPASS):
        q=rec(p); h=HA+p
        a(f"""
        s_mov_b64 exec, {msk(p)}
        {'s_cbranch_execz FK_SD' if p>=5 else ''}
        v_add_u32 v{h}, v{h}, v{q+3}
        v_lshl_add_u32 v{q+3}, v{h}, 3, s30
        ds_write_b64 v{q+3}, v[{q}:{q+1}]
        v_lshl_add_u32 v{h}, v{h}, 2, s31
        v_and_b32 v{q+2}, 0xffff, v{q+2}
        ds_write_b32 v{h}, v{q+2}
        """)
    a(f"""
FK_SD:
    s_mov_b64 exec, -1
    v_mul_u32_u24 v4, s28, v{S_R1}
    v_add_u32 v4, s22, v4
    v_lshl_add_u32 v{SRA}, v4, 4, v{S_C1}
    s_waitcnt lgkmcnt(0)
    """)
    stamp()
    a(f"""
    s_barrier
    s_cmp_eq_u32 s21, 0
    s_cbranch_scc1 FK_LOOPDONE
    ds_read_b128 {vr(SFV,4)}, v{SRA}
    v_mul_u32_u24 v4, s28, v{S_HS}
    v_add_u32 v4, s22, v4
    v_mad_u32_u24 v{AEA}, v4, v{S_SC}, v{S_C0}
    {INC_SR}
    s_waitcnt lgkmcnt(0)
    """)
    for s in dv_calc()+dma(): a(s)
    a(f"""
    ds_read2_b32 {vr(AE,2)}, v{AEA} offset0:0 offset1:1
    {INC_AE}
    s_lshl_b32 s30, s21, 3
    v_lshrrev_b32 v4, 2, v{T+22}
    v_lshrrev_b32 v5, 2, v{T+23}
    v_subrev_u32 v4, s22, v4
    v_subrev_u32 v5, s22, v5
    v_cmp_gt_u32 s[34:35], s30, v4
    v_cmp_gt_u32 s[36:37], s30, v5
    v_cmp_lt_u32 s[38:39], 0, v{T+20}
    v_cmp_lt_u32 s[58:59], 0, v{T+21}
    v_add_u32 v4, s62, v4
    v_add_u32 v5, s62, v5
    v_lshl_add_u32 v6, v1, 1, 1
    v_lshl_add_u32 v7, v1, 1, 2
    s_and_b64 exec, s[34:35], s[38:39]
    ds_write_b8 v4, v6
    s_and_b64 exec, s[36:37], s[58:59]
    ds_write_b8 v5, v7
    s_mov_b64 exec, -1
    v_mul_u32_u24 v4, s28, v3
    v_add_u32 v4, s22, v4                ; qs[h]
    v_lshl_add_u32 v{T+16}, v2, 1, v4    ; u_a
    s_sub_u32 s30, s62, s22
    v_add_u32 v{T+17}, s30, v{T+16}
    ds_read_u16 v5, v{T+17}
    """)
    if STAMP==3: stamp()
    a(f"""
    s_lshl_b32 s30, s22, 2
    s_lshl_b32 s31, s23, 2
    v_cmp_ge_u32 s[34:35], s30, v{T+22}
    v_cmp_ge_u32 s[36:37], s30, v{T+23}
    v_cmp_ge_u32 s[38:39], s31, v{T+22}
    v_cmp_ge_u32 s[58:59], s31, v{T+23}
    ds_read_b128 {vr(SFV,4)}, v{SRA}
    {INC_SR}
    v_lshlrev_b32 v{QIA}, 2, v4
    v_add_u32 v{QIA}, {L_QI}, v{QIA}
    s_bcnt1_i32_b64 s30, s[34:35]
    s_bcnt1_i32_b64 s31, s[36:37]
    s_add_u32 s56, s30, s31
    s_bcnt1_i32_b64 s30, s[38:39]
    s_bcnt1_i32_b64 s31, s[58:59]
    s_add_u32 s57, s30, s31
    v_mov_b32 v{T+18}, s56
    s_mov_b32 exec_lo, 0
    v_mov_b32 v{T+18}, s57
    s_mov_b32 exec_lo, -1
    s_lshr_b32 s20, s20, 2               ; Q
    s_mov_b32 s64, {512-ROWB}
    s_lshl_b32 s26, s3, 1
    s_add_u32 s26, s26, {R_PART}
    v_add_u32 v10, s26, v3
    v_lshlrev_b32 v11, 1, v2
    v_cmp_gt_u32 s[38:39], s28, v11
    s_waitcnt lgkmcnt(1)
    s_nop 0
    v_cndmask_b32_e64 v4, 0, v5, s[38:39]
    v_and_b32 v5, 0xff, v4
    v_lshrrev_b32 v6, 8, v4
    v_max_u32 v7, v5, v6
    v_readlane_b32 s30, v5, 0
    v_readlane_b32 s31, v5, 32
    """)
    dpp_scan(a, 7, op="v_max_u32", full=False)
    a(f"""
    v_mov_b32 v8, 0
    s_cmp_eq_u32 s30, 0
    s_cselect_b32 s34, -1, 0
    s_cmp_lt_u32 s22, s20
    s_cselect_b32 s34, s34, 0
    v_mov_b32_dpp v8, v7 wave_shr:1 row_mask:0xf bank_mask:0xf
    s_cmp_eq_u32 s31, 0
    s_cselect_b32 s35, -1, 0
    s_cmp_lt_u32 s23, s20
    s_cselect_b32 s35, s35, 0
    v_max3_u32 v8, v8, v5, v{T+18}
    v_max_u32 v7, v7, v{T+18}
    v_add_u32 v12, 1, v10
    v_cmp_eq_u32 s[36:37], v8, v{T+18}
    v_cmp_eq_u32 s[58:59], v7, v{T+18}
    s_and_b64 s[36:37], s[36:37], s[34:35]
    s_and_b64 s[58:59], s[58:59], s[34:35]
    v_cndmask_b32_e64 v8, v8, v12, s[36:37]
    v_cndmask_b32_e64 v7, v7, v12, s[58:59]
    v_add_u32 v13, 1, v{T+16}
    v_mov_b32 v12, {R_ZERO+1}
    v_cmp_gt_u32 s[36:37], s20, v{T+16}
    v_cmp_gt_u32 s[66:67], s20, v13
    v_cmp_eq_u32 s[58:59], 0, v5
    v_cmp_eq_u32 s[60:61], 0, v6
    v_cmp_lt_u32 s[62:63], 0, v2
    v_cndmask_b32_e64 v8, v12, v8, s[36:37]
    v_cndmask_b32_e64 v7, v12, v7, s[66:67]
    s_and_b64 s[58:59], s[58:59], s[36:37]
    s_and_b64 s[58:59], s[58:59], s[62:63]
    s_and_b64 s[60:61], s[60:61], s[66:67]
    v_mul_u32_u24 v{T}, {ROWB}, v8
    v_mul_u32_u24 v{T+1}, {ROWB}, v7
    v_add_u32 v{T}, {-ROWB}, v{T}
    v_add_u32 v{T+1}, {-ROWB}, v{T+1}
    v_cndmask_b32_e64 v{T+2}, 0, 1.0, s[58:59]
    v_cndmask_b32_e64 v{T+3}, 0, 1.0, s[60:61]
    v_lshlrev_b32 v13, 2, v{T+16}
    v_add_u32 v13, {L_QI}, v13
    s_mov_b64 exec, s[38:39]
    ds_write_b64 v13, v[{T}:{T+1}]
    ds_write_b64 v13, v[{T+2}:{T+3}] offset:{QKOFF}
    s_and_b64 exec, s[34:35], s[34:35]
    s_cbranch_execz FK_NOCONT
    v_mul_u32_u24 v14, {ROWB}, v{T+18}
    v_add3_u32 v14, v14, v{L4N}, s64
    ds_read_b32 v15, v14
    v_mul_u32_u24 v14, {ROWB}, v10
    v_add_u32 v14, v14, v{L4N}
    v_lshlrev_b32 v13, 2, v{T+18}
    v_add_u32 v13, {L_PMAX-4}, v13
    s_waitcnt lgkmcnt(0)
    ds_write_b32 v14, v15 offset:512
    s_and_b32 exec_lo, exec_lo, 1
    s_and_b32 exec_hi, exec_hi, 1
    ds_max_u32 v13, v10
    ds_min_u32 v13, v10 offset:{L_PMIN-L_PMAX}
FK_NOCONT:
    s_mov_b64 exec, -1
    """)
    for s in xaf_read(0)+kp_read(0,0): a(s)
    a(f"""
    s_nand_b32 s30, s60, s61
    s_nand_b32 s31, s58, s59
    s_lshr_b32 s31, s31, 1
    s_bitreplicate_b64_b32 s[44:45], s30
    s_bitreplicate_b64_b32 s[46:47], s31
    s_mov_b32 s30, 0x55555555
    s_mov_b32 s31, 0x55555555
    s_and_b64 s[44:45], s[44:45], s[30:31]
    s_andn2_b64 s[46:47], s[46:47], s[30:31]
    s_or_b64 s[44:45], s[44:45], s[46:47]
    s_sub_u32 s30, s28, 1
    s_bitset1_b64 s[44:45], s30
    """)
    for r in (ACD[0]+3,ACD[1]+3,ACN[0]+3,ACN[1]+3): a(f"v_mov_b32 v{r}, 0")
    a("s_waitcnt lgkmcnt(0)")
    for s in xaf_adds()+bx_reads(): a(s)
    if STAMP==3: stamp()
    a("s_waitcnt vmcnt(0)")
    if STAMP==3: stamp()
    for s in a_reads(0)+dv_calc(): a(s)
    a("s_waitcnt lgkmcnt(0)")
    a("s_cmp_lt_u32 s21, 2\ns_cbranch_scc1 FK_SKD0")
    for s in dma(): a(s)
    a("FK_SKD0:")
    for s in bx_pack()+xaf_read(1)+src_read()+g_mfmas(0,0)+[INC_SR]+g_mfmas(1,0): a(s)
    a("s_waitcnt lgkmcnt(0)")
    for s in xaf_adds()+ae_read()+bx_reads()+dv_calc(): a(s)
    for i in range(16): a(f"v_exp_f32 v{EE[0]+i}, v{GA[0]+i}")
    if STAMP==3: stamp()
    a("s_waitcnt vmcnt(0)")
    if STAMP==3: stamp()
    for s in a_reads(1): a(s)
    for i in range(16): a(f"v_add_f32 v{EE[0]+i}, 1.0, v{EE[0]+i}")
    a("s_waitcnt lgkmcnt(0)")
    a("s_cmp_lt_u32 s21, 3\ns_cbranch_scc1 FK_SKD1")
    for s in dma(): a(s)
    a("FK_SKD1:")
    for s in src_read(): a(s)
    stamp(); rstamp(59); dbg(3)
    a("s_sub_u32 s25, s21, 1")
    a("FK_LOOP:")
    for par in range(2):
        a(f"s_cmp_eq_u32 s25, 0\ns_cbranch_scc1 FK_LAST{par}")
        tile(a,0,par,False)
        a("s_sub_u32 s25, s25, 1")
    a("s_branch FK_LOOP")
    for x in lp4.STUBS: a(x)
    lp4.STUBS.clear()
    for par in range(2):
        a(f"FK_LAST{par}:")
        tile(a,0,par,True)
        a("s_branch FK_LOOPDONE")
    for x in lp4.STUBS: a(x)
    a(f"""
FK_LOOPDONE:
    s_setprio 0
    """)
    rstamp(60); stamp(); dbg(4)
    XR=128; X=[136,224]; B=[144,176]; M=[4,10]
    a(f"""
    v_lshlrev_b32 v20, 4, v0
    s_mul_i32 s26, s70, {NB*128}
    v_add_u32 v20, s26, v20
    v_add_u32 v21, 8192, v20
    v_lshrrev_b32 v22, 3, v0
    v_lshlrev_b32 v22, 7, v22
    v_and_b32 v23, 3, v0
    v_lshl_add_u32 v22, v23, 5, v22
    s_lshl_b32 s27, s2, 14
    s_add_u32 s27, s27, {WS_XU}
    s_add_u32 s28, s27, 8192
    v_cmp_gt_u32 vcc, {NB*8-512}, v0
    s_mov_b64 s[34:35], vcc
    buffer_load_dwordx4 v[{XR}:{XR+3}], v20, s[4:7], 0 offen
    buffer_load_dwordx4 {vr(X[0],4)}, v22, s[12:15], s27 offen
    buffer_load_dwordx4 {vr(X[0]+4,4)}, v22, s[12:15], s27 offen offset:16
    s_mov_b64 exec, s[34:35]
    buffer_load_dwordx4 v[{XR+4}:{XR+7}], v21, s[4:7], 0 offen
    buffer_load_dwordx4 {vr(X[1],4)}, v22, s[12:15], s28 offen
    buffer_load_dwordx4 {vr(X[1]+4,4)}, v22, s[12:15], s28 offen offset:16
    s_mov_b64 exec, -1
    v_and_b32 v23, 7, v0
    v_and_b32 v22, 4, v0
    v_lshlrev_b32 v22, 2, v22
    v_sub_u32 v22, 16, v22
    v_lshlrev_b32 v23, 5, v23
    """)
    for it in range(2):
        m=M[it]
        a(f"""
        v_lshrrev_b32 v{m}, 3, v0
        {'v_add_u32 v%d, 64, v%d'%(m,m) if it else ''}
        v_lshlrev_b32 v{m+1}, 2, v{m}
        v_add_u32 v{m+1}, {L_HIST}, v{m+1}
        ds_read_b32 v{m+5}, v{m+1}
        """)
    a(f"v_mov_b32 v37, {R_ZERO}\ns_waitcnt lgkmcnt(0)")
    for it in range(2):
        m=M[it]
        a(f"""
        v_cmp_eq_u32 s[36:37], 0, v{m+5}
        s_nop 1
        v_cndmask_b32_e64 v{m}, v{m}, v37, s[36:37]
        v_mul_u32_u24 v{m}, {ROWB}, v{m}
        v_add_u32 v{m}, v{m}, v23
        """)
    a("s_barrier")
    stamp()
    for it in range(2):
        m=M[it]; b=B[it]
        if it==1: a("s_mov_b64 exec, s[34:35]")
        a(f"""
        ds_read_b32 v{m+2}, v{m+1} offset:{L_PMAX-L_HIST}
        ds_read_b32 v{m+3}, v{m+1} offset:{L_PMIN-L_HIST}
        """)
    for it in range(2):
        m=M[it]; b=B[it]
        a("s_mov_b64 exec, s[34:35]" if it else "s_mov_b64 exec, -1")
        a(f"""
        ds_read_b128 {vr(b,4)}, v{m}
        ds_read_b128 {vr(b+4,4)}, v{m} offset:16
        ds_read_b128 {vr(b+8,4)}, v{m} offset:256
        ds_read_b128 {vr(b+12,4)}, v{m} offset:272
        """)
    a("s_waitcnt lgkmcnt(8)")
    for it in range(2):
        m=M[it]; b=B[it]; x=X[it]; xr=XR+4*it
        if it==1:
            a(f"""
            s_cmp_eq_u64 s[34:35], 0
            s_cbranch_scc1 FK_FIN
            s_mov_b64 exec, s[34:35]
            """)
        else: a("s_mov_b64 exec, -1")
        a(f"""
FK_PL{it}:
        v_cmp_le_u32 s[36:37], v{m+3}, v{m+2}
        s_nop 1
        v_cndmask_b32_e64 v{m+5}, v37, v{m+3}, s[36:37]
        v_mul_u32_u24 v{m+5}, {ROWB}, v{m+5}
        v_add_u32 v{m+5}, v{m+5}, v23
        ds_read_b128 {vr(b+16,4)}, v{m+5}
        ds_read_b128 {vr(b+20,4)}, v{m+5} offset:16
        ds_read_b128 {vr(b+24,4)}, v{m+5} offset:256
        ds_read_b128 {vr(b+28,4)}, v{m+5} offset:272
        v_add_u32 v{m+3}, 1, v{m+3}
        v_cmp_le_u32 vcc, v{m+3}, v{m+2}
        s_waitcnt lgkmcnt(0)
        """)
        for i in range(16): a(f"v_add_f32 v{b+i}, v{b+i}, v{b+16+i}")
        a(f"s_cbranch_vccnz FK_PL{it}")
        a(f"""
        s_cmp_eq_u32 s18, 0
        s_cbranch_scc1 FK_NOSLOW{it}
        s_mul_i32 s26, s2, {NB*512}
        s_add_u32 s26, s26, {WS_TOT+it*512*64}
        v_lshlrev_b32 v{m+5}, 6, v0
        s_cmp_eq_u32 s16, 0
        s_cbranch_scc1 FK_NOLD{it}
        """)
        for j in range(4): a(f"buffer_load_dwordx4 {vr(b+16+4*j,4)}, v{m+5}, s[12:15], s26 offen offset:{16*j} sc1")
        a("s_waitcnt vmcnt(0)")
        for i in range(16): a(f"v_add_f32 v{b+i}, v{b+i}, v{b+16+i}")
        a(f"FK_NOLD{it}:")
        for j in range(4): a(f"buffer_store_dwordx4 {vr(b+4*j,4)}, v{m+5}, s[12:15], s26 offen offset:{16*j} sc1")
        a(f"s_waitcnt vmcnt(0)\nFK_NOSLOW{it}:")
        for i in range(8): a(f"v_add_f32 v{b+i}, 0x358637bd, v{b+i}")
        for i in range(8): a(f"v_rcp_f32 v{b+i}, v{b+i}")
        a("s_waitcnt vmcnt(3)" if it==0 else "s_waitcnt vmcnt(1)")
        for i in range(8): a(f"v_lshlrev_b32 v{x+i}, v22, v{x+i}")
        for i in range(8): a(f"v_and_b32 v{x+i}, 0xffff0000, v{x+i}")
        for i in range(8): a(f"v_fma_f32 v{b+i}, v{b+i}, v{b+8+i}, v{x+i}")
        for i in range(4):
            a(f"v_lshlrev_b32 v{b+8+2*i}, 16, v{xr+i}")
            a(f"v_and_b32 v{b+9+2*i}, 0xffff0000, v{xr+i}")
        for i in range(8): a(f"v_max_f32 v{b+i}, 0, v{b+i}")
        for i in range(8): a(f"v_add_f32 v{b+i}, v{b+i}, v{b+8+i}")
        for i in range(4): a(f"v_cvt_pk_bf16_f32 v{b+8+i}, v{b+2*i}, v{b+1+2*i}")
        a(f"buffer_store_dwordx4 {vr(b+8,4)}, v{20+it}, s[8:11], 0 offen {opts.get('outf','')}")
    a(f"""
FK_FIN:
    s_mov_b64 exec, -1
    """)
    if opts.get("dbg"): a("s_waitcnt vmcnt(0)")
    dbg(5)
    stamp()
    if STAMP:
        a("s_waitcnt vmcnt(0)")
        stamp(); rstamp(62)
        a(f"""
        v_writelane_b32 v{SV}, s21, 63
        s_lshl_b32 s26, s2, 3
        s_add_u32 s26, s26, s3
        s_lshl_b32 s26, s26, 8
        s_add_u32 s26, s26, {WS_STAMP}
        v_lshlrev_b32 v4, 2, v1
        buffer_store_dword v{SV}, v4, s[12:15], s26 offen
        """)
    a(f"""
    s_cmp_eq_u32 s18, 0
    s_cbranch_scc1 FK_END
    s_add_u32 s16, s16, {SLOWR}
    s_add_u32 s17, s17, {SLOWR}
    s_cmp_ge_u32 s16, s19
    s_cbranch_scc1 FK_END
FK_REBATCH:
    s_waitcnt vmcnt(0) lgkmcnt(0)
    s_barrier
    v_mov_b32 v4, 0
    v_mov_b32 v5, 0
    v_mov_b32 v6, 0
    v_mov_b32 v7, 0
    v_mov_b32 v8, 0x10000
    v_mov_b32 v9, 0x10000
    v_add_u32 v11, {L_PMIN}, v{S_L8}
    ds_write_b64 v11, v[8:9]
    s_lshl_b32 s30, s3, 6
    s_add_u32 s30, s30, {L_BM}
    v_lshl_add_u32 v11, v1, 2, s30
    v_lshlrev_b32 v10, 4, v0
    v_add_u32 v10, {L_Z}, v10
    v_cmp_gt_u32 vcc, {(L_ZEND-L_Z)//16}, v0
    s_mov_b64 exec, 0xffff
    ds_write_b32 v11, v4
    s_and_b64 exec, vcc, vcc
    ds_write_b128 v10, v[4:7]
    s_mov_b64 exec, -1
    s_lshl_b32 s26, s70, 3
    s_add_u32 s26, s26, {WS_OFF}
    v_mov_b32 v38, s93
    s_mov_b32 s67, 1
    s_waitcnt lgkmcnt(0)
    s_barrier
    s_branch FK_XAD
FK_END:
    s_endpgm
    """)
    a(kd(name, 256, 102))
    return f"; @launch grid=({NBUCK},1,1) block=(512,1,1) lds={L_END}"
```

```python
import sys
sys.path.insert(0,'gen')
from asmlib import *
from fk13 import gen_fk
import json
opts=json.loads(sys.argv[2]) if len(sys.argv)>2 else {}
out=sys.argv[1] if len(sys.argv)>1 else 'gather_scatter__edge_featured_mpnn_gatedgcn__graph.s'
ref=open('gather_scatter__edge_featured_mpnn_gatedgcn__graph.s.ref').read().split('\n')
hdr=[l for l in ref if l.startswith(';') and '@launch' not in l and 'Override' not in l and 'grid=ceil' not in l]
a=Asm()
l1=gen_fk(a,opts)
txt="\n".join(hdr)+"\n"+l1+"\n"+'.amdgcn_target "amdgcn-amd-amdhsa--gfx950"\n'+a.text()
open(out,'w').write(txt)
print("wrote",out,len(txt))
```

```python
from asmlib import *
from consts import *
import lp5 as lp4
from lp5 import *

S_HS=56; S_SC=57; S_C0=58; S_R1=59; S_C1=60; S_L12=61; S_L8=62; S_CB=63; S_PO=16; S_FA=17
SV=19
REC=128; HA=160; MASK=40
def rec(p): return REC+4*p
def msk(p): return sr(MASK+2*p,2)
D=[128,132]; S=[136,140]; EAr=[144,152]; BK=[160,164]; RK=[168,172]; T1=[176,180]
SC=184; WBR=200; WAU=148; XAC=224; PUB=[208,216]; CPO=[224,240]
TP=224
L1_HIST=[CH_BYTES,CH_BYTES+1024]; L1_BASE=[CH_BYTES+2048,CH_BYTES+3072]
SUBB=512*4*12
L_WCL=L_QI

def dpp_scan(a, v, op="v_add_u32", full=True):
    for sh in (1,2,4,8):
        a(f"s_nop 1\n{op}_dpp v{v}, v{v}, v{v} row_shr:{sh} row_mask:0xf bank_mask:0xf bound_ctrl:0")
    a(f"s_nop 1\n{op}_dpp v{v}, v{v}, v{v} row_bcast:15 row_mask:0xa bank_mask:0xf")
    if full: a(f"s_nop 1\n{op}_dpp v{v}, v{v}, v{v} row_bcast:31 row_mask:0xc bank_mask:0xf")

def xpf(a, first, n, dst):
    if n<=0: return
    a(f"""
    s_lshr_b32 s30, s2, 3
    s_mul_i32 s30, s30, 102400
    s_mul_i32 s31, s3, 12800
    s_add_u32 s30, s30, s31
    s_add_u32 s30, s30, {first*1024}
    v_lshlrev_b32 v{dst}, 4, v1
    """)
    for i in range(n):
        if i and i%4==0: a("s_add_u32 s30, s30, 4096")
        a(f"buffer_load_dwordx4 v[{dst+2}:{dst+5}], v{dst}, s[4:7], s30 offen offset:{(i%4)*1024}")

def gen_fk(a, opts):
    lp4.OPT.clear(); lp4.OPT.update(opts); lp4.WMODE=opts.get("wmode","stub"); lp4.STUBS.clear()
    name="gather_scatter__edge_featured_mpnn_gatedgcn__graph_kernel"
    a(khead(name))
    STAMP=opts.get("stamp",0)
    STF=opts.get("stf","sc1")
    LF=opts.get("lf","")
    WE=opts.get("we",0)
    RP1=opts.get("rp1",0)
    LATE1=opts.get("late1",1)
    cnt=[0]
    def stamp():
        if not STAMP: return
        a(f"s_memtime s[100:101]\ns_waitcnt lgkmcnt(0)\nv_writelane_b32 v{SV}, s100, {cnt[0]}")
        cnt[0]+=1
    def dbg(slot):
        if not opts.get("dbg"): return
        lab=a.label("DBG")
        a(f"""
        s_lshr_b32 s100, s2, 1
        s_or_b32 s100, s100, s3
        s_cbranch_scc1 {lab}
        s_mul_i32 s101, s2, 28
        v_mov_b32 v18, s101
        s_memrealtime s[100:101]
        s_waitcnt lgkmcnt(0)
        v_mov_b32 v19, s100
        s_mov_b64 exec, 1
        global_store_dword v18, v19, s[88:89] offset:{slot*4}
        s_mov_b64 exec, -1
{lab}:
        """)
    def rstamp(i):
        if STAMP: a(f"s_memrealtime s[100:101]\ns_waitcnt lgkmcnt(0)\nv_writelane_b32 v{SV}, s100, {i}")
    T=TP
    NT=512
    a(f"""
    s_cmp_ge_u32 s2, {NBUCK}
    s_cbranch_scc1 FK_END
    s_load_dwordx16 s[68:83], s[0:1], 0
    s_load_dwordx8 s[84:91], s[0:1], 64
    s_memrealtime s[94:95]
    v_lshrrev_b32 v2, 6, v0
    v_and_b32 v1, 63, v0
    v_readfirstlane_b32 s3, v2
    s_mul_i32 s26, s2, {CH_QUADS}
    v_add_u32 v4, s26, v0              ; quad0
    v_lshlrev_b32 v5, 4, v4
    v_lshlrev_b32 v6, 5, v4
    v_add_u32 v7, {NT}, v4
    v_cmp_gt_u32 vcc, {E//4}, v4
    s_mov_b64 s[40:41], vcc
    v_cmp_gt_u32 vcc, {CH_QUADS-NT}, v0
    s_mov_b64 s[42:43], vcc
    v_cmp_gt_u32 vcc, {E//4}, v7
    s_and_b64 s[42:43], s[42:43], vcc
    v_add_u32 v8, {NT*16}, v5
    v_add_u32 v9, {NT*32}, v6
    v_lshlrev_b32 v23, 4, v0           ; tid*16
    v_mov_b32 v12, 0
    v_mov_b32 v13, 0
    v_mov_b32 v14, 0
    v_mov_b32 v15, 0
    v_lshlrev_b32 v{S_L8}, 3, v1
    s_cmp_lg_u32 s3, 7
    s_cbranch_scc1 FK_N7
    v_mov_b32 v10, 0x10000
    v_mov_b32 v11, 0x10000
    v_add_u32 v22, {L_PMIN}, v{S_L8}
    ds_write_b64 v22, v[10:11]
FK_N7:
    s_cmp_lg_u32 s3, 6
    s_cbranch_scc1 FK_N6
    v_lshlrev_b32 v11, 4, v1
    ds_write_b128 v11, v[12:15] offset:{L1_HIST[0]}
    ds_write_b128 v11, v[12:15] offset:{L1_HIST[1]}
FK_N6:
    s_lshl_b32 s30, s3, 6
    s_add_u32 s30, s30, {L_BM}
    v_lshl_add_u32 v11, v1, 2, s30
    v_add_u32 v22, {L_Z}, v23
    v_cmp_gt_u32 vcc, {(L_ZEND-L_Z)//16}, v0
    s_mov_b64 exec, 0xffff
    ds_write_b32 v11, v12
    s_and_b64 exec, vcc, vcc
    s_cbranch_execz FK_NOZ
    ds_write_b128 v22, v[12:15]
FK_NOZ:
    s_mov_b64 exec, -1
    """)
    rstamp(61); stamp()
    a(f"""
    s_waitcnt lgkmcnt(0)
    s_barrier
    """)
    F,Gs=opts.get("order",[0,1])
    def loads(u):
        return f"""
    s_mov_b64 exec, {sr(40+2*u,2)}
    global_load_dwordx4 {vr(D[u],4)}, v{[5,8][u]+(200 if False else 0)}, s[74:75] {LF}
    global_load_dwordx4 {vr(S[u],4)}, v{[5,8][u]}, s[72:73] {LF}
    global_load_dwordx4 {vr(EAr[u],4)}, v{[6,9][u]}, s[56:57] {LF}
    global_load_dwordx4 {vr(EAr[u]+4,4)}, v{[6,9][u]}, s[56:57] offset:16 {LF}
    s_mov_b64 exec, -1
    """
    a("s_mov_b64 s[56:57], s[70:71]")
    a(loads(F))
    if F==1: a("v_mov_b32 v8, v5\nv_mov_b32 v9, v6")
    set1=loads(1) if F==0 else loads(0).replace("v5,","v8,").replace("v6,","v9,")
    dbg(2)
    a(f"""
    s_or_b32 s30, s2, s3
    s_cbranch_scc1 FK_N0
    v_mov_b32 v12, s94
    v_mov_b32 v13, s95
    v_mov_b32 v4, 0
    s_mov_b64 exec, 1
    global_store_dwordx2 v4, v[12:13], s[88:89] sc0 sc1
    s_mov_b64 exec, -1
FK_N0:
    s_and_b32 s70, s2, 7
    s_lshl_b32 s70, s70, 5
    s_lshr_b32 s30, s2, 3
    s_or_b32 s70, s70, s30             ; bucket
    {'s_mov_b32 s70, s2' if opts.get('nomap') else ''}
    s_mov_b32 s4, s68
    s_and_b32 s5, s69, 0xffff
    s_mov_b32 s6, {N*128}
    s_mov_b32 s7, 0x20000
    s_lshr_b32 s27, s3, 1              ; nt
    s_and_b32 s28, s3, 1               ; cb
    v_lshrrev_b32 v12, 3, v1           ; r3
    v_and_b32 v13, 7, v1               ; c
    v_lshrrev_b32 v14, 2, v12
    v_xor_b32 v13, v13, v14
    v_lshlrev_b32 v13, 4, v13          ; swz0
    s_mul_i32 s29, s70, {NB}
    s_lshl_b32 s30, s27, 5
    s_add_u32 s29, s29, s30
    s_lshl_b32 s30, s28, 1
    s_add_u32 s29, s29, s30
    s_lshl_b32 s29, s29, 7
    v_lshlrev_b32 v14, 9, v12
    v_add_u32 v14, s29, v14
    s_lshl_b32 s30, s28, 6
    v_xor_b32 v15, s30, v13
    v_add_u32 v20, v14, v15
    v_xor_b32 v15, 32, v15
    v_add3_u32 v21, v14, v15, 64
    v_add_u32 v21, 64, v21
    v_lshlrev_b32 v5, 4, v1
    v_mov_b32 v7, 1
    """)
    def scale8(src, tmp):
        for i in range(4):
            a(f"v_lshlrev_b32 v{tmp+2*i}, 16, v{src+i}")
            a(f"v_and_b32 v{tmp+2*i+1}, 0xffff0000, v{src+i}")
        for i in range(8): a(f"v_mul_f32 v{tmp+i}, {NLOG2E}, v{tmp+i}")
        for i in range(4): a(f"v_cvt_pk_bf16_f32 v{src+i}, v{tmp+2*i}, v{tmp+2*i+1}")
    def hist1(u):
        a(f"s_mov_b64 exec, {sr(40+2*u,2)}")
        if u==1: a("s_cbranch_execz FK_NH1")
        for i in range(4): a(f"v_mul_u32_u24 v{BK[u]+i}, {BMAGIC}, v{D[u]+i}")
        for i in range(4): a(f"v_lshrrev_b32 v{BK[u]+i}, {BSHIFT}, v{BK[u]+i}")
        for i in range(4): a(f"v_mul_u32_u24 v{T1[u]+i}, {NB}, v{BK[u]+i}")
        for i in range(4): a(f"v_lshlrev_b32 v{BK[u]+i}, 2, v{BK[u]+i}")
        for i in range(4): a(f"ds_add_rtn_u32 v{RK[u]+i}, v{BK[u]+i}, v7 offset:{L1_HIST[u]}")
        for i in range(4): a(f"v_sub_u32 v{D[u]+i}, v{D[u]+i}, v{T1[u]+i}")
        if u==1: a("FK_NH1:")
        a("s_mov_b64 exec, -1")
    def scan1(u):
        a(f"""
        s_waitcnt lgkmcnt(0)
        v_add_u32 v{SC+5}, v{SC}, v{SC+1}
        v_add_u32 v{SC+6}, v{SC+5}, v{SC+2}
        v_add_u32 v{SC+7}, v{SC+6}, v{SC+3}
        v_mov_b32 v{SC+4}, v{SC+7}
        """)
        dpp_scan(a, SC+4)
        a(f"""
        v_sub_u32 v{SC+8}, v{SC+4}, v{SC+7}
        {'v_add_u32 v%d, 2048, v%d'%(SC+8,SC+8) if u else ''}
        v_add_u32 v{SC+9}, v{SC+8}, v{SC}
        v_add_u32 v{SC+10}, v{SC+8}, v{SC+5}
        v_add_u32 v{SC+11}, v{SC+8}, v{SC+6}
        ds_write_b128 v5, v[{SC+8}:{SC+11}] offset:{L1_BASE[u]}
        s_mov_b64 exec, {sr(40+2*u,2)}
        """)
        for i in range(4): a(f"ds_read_b32 v{T1[u]+i}, v{BK[u]+i} offset:{L1_BASE[u]}")
        a("s_mov_b64 exec, -1")
        for c in range(4): a(f"v_lshl_or_b32 v{PUB[u]+2*c}, v{SC+c}, 12, v{SC+8+c}")
    def scat1(u):
        a(f"s_mov_b64 exec, {sr(40+2*u,2)}")
        for i in range(4): a(f"v_add_u32 v{T1[u]+i}, v{T1[u]+i}, v{RK[u]+i}")
        for i in range(4): a(f"v_mul_u32_u24 v{T1[u]+i}, 12, v{T1[u]+i}")
        for i in range(4): a(f"v_lshl_or_b32 v{S[u]+i}, v{D[u]+i}, 16, v{S[u]+i}")
        for i in range(4):
            a(f"ds_write2_b32 v{T1[u]+i}, v{EAr[u]+2*i}, v{EAr[u]+1+2*i} offset0:0 offset1:1")
            a(f"ds_write_b32 v{T1[u]+i}, v{S[u]+i} offset:8")
        a("s_mov_b64 exec, -1")
    def wl():
        a(f"""
        s_lshl_b32 s30, s3, 10
        s_add_u32 m0, s30, {L_STG+8192}
        global_load_dwordx4 {vr(WBR,4)}, v23, s[78:79]
        global_load_lds_dwordx4 v23, s[84:85]
        s_add_u32 m0, s30, {L_STG+16384}
        s_lshl_b32 s31, s3, 11
        global_load_lds_dwordx4 v23, s[76:77]
        s_add_u32 m0, s30, {L_STG+24576}
        s_nop 0
        global_load_lds_dwordx4 v23, s[82:83]
        s_add_u32 m0, s31, {L_EA}
        s_nop 0
        buffer_load_dwordx4 v20, s[4:7], 0 offen lds
        s_add_u32 m0, s31, {L_EA+1024}
        s_nop 0
        buffer_load_dwordx4 v21, s[4:7], 0 offen lds
        s_mov_b32 exec_hi, 0
        global_load_dwordx4 v[12:15], v5, s[80:81]
        s_mov_b32 exec_hi, -1
        """)
    if WE==1: wl()
    a(f"""
    s_mul_i32 s26, s2, {CH_BYTES}
    s_add_u32 s26, s26, {WS_REC}
    s_add_u32 s32, s90, s26
    s_addc_u32 s33, s91, 0
    s_and_b32 s33, s33, 0xffff
    s_mov_b32 s34, {CH_BYTES}
    s_mov_b32 s35, 0x20000
    """)
    a(f"""
    s_sub_u32 s96, s68, 3072
    s_subb_u32 s97, s69, 0
    s_and_b32 s97, s97, 0xffff
    s_mov_b32 s98, {N*128+3072}
    s_mov_b32 s99, 0x20000
    v_lshrrev_b32 v233, 3, v1
    v_and_b32 v234, 7, v1
    v_lshrrev_b32 v232, 2, v233
    v_xor_b32 v234, v234, v232
    v_lshlrev_b32 v234, 4, v234
    s_mov_b32 s8, s86
    s_and_b32 s9, s87, 0xffff
    s_mov_b32 s10, {N*128}
    s_mov_b32 s11, 0x20000
    s_mov_b32 s16, 0
    s_mov_b32 s17, 0xffff
    s_mov_b32 s18, 0
    s_mov_b32 s67, 0
    v_add_u32 v{SWZ}, 3072, v234
    v_xor_b32 v{SWZ+1}, 32, v234
    v_add_u32 v{SWZ+1}, 2048, v{SWZ+1}
    v_xor_b32 v{SWZ+2}, 64, v234
    v_add_u32 v{SWZ+2}, 1024, v{SWZ+2}
    v_xor_b32 v{SWZ+3}, 96, v234
    v_and_b32 v{S_R1}, 1, v233
    v_lshrrev_b32 v{S_C1}, 1, v233
    v_lshlrev_b32 v{S_C1}, 4, v{S_C1}
    v_add_u32 v{S_C1}, {L_SF}, v{S_C1}
    v_and_b32 v2, 31, v1
    v_lshrrev_b32 v3, 5, v1
    v_lshlrev_b32 v{L4N}, 2, v2
    v_and_b32 v224, 3, v2
    v_lshrrev_b32 v231, 2, v2
    v_lshlrev_b32 v225, 10, v224
    v_lshl_add_u32 v225, v231, 7, v225
    v_lshrrev_b32 v226, 2, v231
    v_lshl_or_b32 v226, v224, 1, v226
    v_xor_b32 v226, v226, v3
    v_lshl_add_u32 v225, v226, 4, v225
    s_lshl_b32 s24, s3, 12
    s_add_u32 s24, s24, {L_STG}
    v_add_u32 v{AAD}, s24, v225
    v_xor_b32 v226, 32, v225
    v_add_u32 v{AAD+1}, s24, v226
    v_xor_b32 v226, 64, v225
    v_add_u32 v{AAD+2}, s24, v226
    v_xor_b32 v226, 96, v225
    v_add_u32 v{AAD+3}, s24, v226
    v_and_b32 v{S_HS}, 1, v231
    v_lshrrev_b32 v227, 1, v231
    v_lshl_add_u32 v228, v227, 2, v224
    v_lshlrev_b32 v{AEI}, 6, v3
    v_sub_u32 v{AEI}, 128, v{AEI}
    v_lshrrev_b32 v{S_SC}, 2, v{AEI}
    v_lshrrev_b32 v229, 4, v{AEI}
    v_mul_u32_u24 v230, {L_SF-L_EA}, v3
    v_mad_u32_u24 v{S_C0}, v228, v229, v230
    v_add_u32 v{S_C0}, {L_EA}, v{S_C0}
    v_cmp_eq_u32 s[36:37], v{S_HS}, v3
    v_mov_b32 v228, 7
    v_mov_b32 v229, 0x3f80
    v_cndmask_b32_e64 v227, v228, v227, s[36:37]
    """)
    a(f"""
    v_and_b32 v228, 1, v227
    v_lshlrev_b32 v228, 4, v228
    v_lshlrev_b32 v229, v228, v229
    v_lshrrev_b32 v227, 1, v227
    v_cmp_eq_u32 s[60:61], 0, v227
    v_cmp_eq_u32 s[62:63], 1, v227
    v_mul_u32_u24 v{S_L12}, 12, v1
    v_mov_b32 v{S_FA}, {L_FLAG}
    v_cndmask_b32_e64 v{AOH[0]}, 0, v229, s[60:61]
    v_cndmask_b32_e64 v{AOH[0]+1}, 0, v229, s[62:63]
    """)
    a(f"""
    s_lshl_b32 s31, s3, 5
    v_add_u32 v224, s31, v2
    v_mul_u32_u24 v{S_CB}, {CH_BYTES}, v224
    v_add_u32 v{S_CB}, {WS_REC}, v{S_CB}
    v_lshlrev_b32 v{S_PO}, 12, v224
    v_lshl_add_u32 v{S_PO}, v3, 11, v{S_PO}
    """)
    a(f"""
    v_and_b32 v227, 15, v1
    v_lshrrev_b32 v228, 2, v227
    v_lshlrev_b32 v228, 7, v228
    v_and_b32 v227, 3, v227
    v_lshl_add_u32 v228, v227, 3, v228
    v_lshl_add_u32 v228, v3, 10, v228
    v_and_b32 v227, 16, v1
    v_lshl_add_u32 v228, v227, 1, v228
    v_add_u32 v40, {L_STG}, v228
    s_lshr_b32 s58, s3, 2
    s_and_b32 s59, s3, 3               ; nt
    s_lshl_b32 s30, s58, 13
    v_add_u32 v41, s30, v40
    v_add_u32 v42, {L_WCL}, v228
    s_lshl_b32 s30, s59, 12
    s_sub_u32 s30, s30, s24
    s_add_u32 s30, s30, {L_EA}
    """)
    for s in range(4): a(f"v_add_u32 v{204+s}, s30, v{AAD+s}")
    stamp()
    a("s_waitcnt vmcnt(10)" if WE==1 else "s_waitcnt vmcnt(3)")
    a(set1)
    if WE==2: wl()
    if opts.get("warm",1):
        a(f"""
        s_cmp_lt_u32 s3, 5
        s_cbranch_scc1 FK_NOWARM
        v_lshlrev_b32 v10, 7, v1
        s_cmp_eq_u32 s3, 7
        s_cbranch_scc1 FK_WARM7
        s_cmp_eq_u32 s3, 5
        s_cselect_b32 s36, s78, s76
        s_cselect_b32 s37, s79, s77
        s_cselect_b32 s38, s84, s82
        s_cselect_b32 s39, s85, s83
        global_load_dword v11, v10, s[36:37]
        global_load_dword v12, v10, s[38:39]
        s_branch FK_NOWARM
FK_WARM7:
        s_mul_i32 s30, s70, {NB*128}
        buffer_load_dword v11, v10, s[4:7], s30 offen
        s_add_u32 s30, s30, 8192
        buffer_load_dword v12, v10, s[4:7], s30 offen
FK_NOWARM:
        """)
    stamp()
    NC={0:3,1:2}; OFFS={0:0,1:SUBB}
    s_lab=[0]
    def only1(u,fn):
        if u==1:
            s_lab[0]+=1; l=f"FK_O1_{s_lab[0]}"
            a(f"s_cmp_gt_u32 s3, 4\ns_cbranch_scc1 {l}"); fn(); a(f"{l}:")
        else: fn()
    hist1(F)
    a(f"s_waitcnt lgkmcnt(0)\ns_barrier\nds_read_b128 v[{SC}:{SC+3}], v5 offset:{L1_HIST[F]}")
    def part1():
        scan1(F); a("s_waitcnt vmcnt(11) lgkmcnt(0)" if WE else "s_waitcnt vmcnt(4) lgkmcnt(0)"); scat1(F)
    only1(F,part1)
    stamp()
    a("s_waitcnt vmcnt(10)" if WE==2 else "s_waitcnt vmcnt(3)")
    hist1(Gs)
    def stg():
        scale8(WBR, 240)
        a(f"""
        v_add_u32 v10, {L_STG}, v23
        ds_write_b128 v10, {vr(WBR,4)}
        s_cmp_lg_u32 s3, 7
        s_cbranch_scc1 FK_N7C
        """)
        scale8(12, 240)
        a(f"""
        v_add_u32 v10, {L_WCL}, v5
        s_mov_b32 exec_hi, 0
        ds_write_b128 v10, v[12:15]
        s_mov_b32 exec_hi, -1
FK_N7C:
        """)
    if WE==1: stg()
    a("s_waitcnt lgkmcnt(0)")
    stamp()
    a("s_barrier")
    for i in range(NC[F]): a(f"ds_read_b128 {vr(CPO[0]+4*i,4)}, v23 offset:{OFFS[F]+i*NT*16}")
    a(f"ds_read_b128 v[{SC}:{SC+3}], v5 offset:{L1_HIST[Gs]}")
    a("v_mov_b32 v37, 0\nglobal_load_dwordx2 v[38:39], v37, s[88:89] sc0 sc1")
    if F==1: a(f"s_mov_b32 s34, {CH_BYTES}")
    for i in range(NC[F]):
        a(f"s_waitcnt lgkmcnt({NC[F]-i})")
        a(f"s_mov_b32 s31, {OFFS[F]+i*NT*16}")
        a(f"buffer_store_dwordx4 {vr(CPO[0]+4*i,4)}, v23, s[32:35], s31 offen {STF}")
    stamp()
    def part2():
        scan1(Gs); a(f"s_waitcnt vmcnt({NC[F]+1+(7 if WE==2 else 0)}) lgkmcnt(0)"); scat1(Gs)
    only1(Gs,part2)
    if WE==2:
        a(f"s_waitcnt vmcnt({NC[F]+1}) lgkmcnt(0)")
        stg()
    a("s_waitcnt lgkmcnt(0)")
    stamp()
    a("s_barrier")
    for i in range(NC[Gs]): a(f"ds_read_b128 {vr(CPO[1]+4*i,4)}, v23 offset:{OFFS[Gs]+i*NT*16}")
    for i in range(NC[Gs]):
        a(f"s_waitcnt lgkmcnt({NC[Gs]-1-i})")
        a(f"s_mov_b32 s31, {OFFS[Gs]+i*NT*16}")
        a(f"buffer_store_dwordx4 {vr(CPO[1]+4*i,4)}, v23, s[32:35], s31 offen {STF}")
    if WE:
        for s in range(4): a(f"ds_read_b128 {vr(A[0]+4*s,4)}, v{204+s}")
        for cb in range(2):
            for s in range(4):
                for hh in range(2):
                    a(f"ds_read_b64_tr_b16 {vr(WAU+(cb*4+s)*4+2*hh,2)}, v41 offset:{16384+s*2048+cb*64+hh*512}")
        a(f"""
        s_waitcnt lgkmcnt(8)
        """)
        for cb in range(2):
            if cb: a("s_waitcnt lgkmcnt(0)")
            for s in range(4):
                a(f"v_mfma_f32_32x32x16_bf16 {vr(XAC+16*cb,16)}, {vr(A[0]+4*s,4)}, {vr(WAU+16*cb+4*s,4)}, {'0' if s==0 else vr(XAC+16*cb,16)}")
    stamp()
    a(f"""
    s_mov_b32 s12, s90
    s_and_b32 s13, s91, 0xffff
    s_mov_b32 s14, {WS_SIZE}
    s_mov_b32 s15, 0x20000
    """)
    a(f"""
    s_waitcnt vmcnt(5)
    s_mov_b32 s31, 400000
FK_NONCE:
    v_readfirstlane_b32 s92, v38
    v_readfirstlane_b32 s93, v39
    s_or_b32 s30, s92, s93
    s_cbranch_scc1 FK_NONCED
    s_sub_u32 s31, s31, 1
    s_cbranch_scc1 FK_NONCED
    s_sleep 1
    global_load_dwordx2 v[38:39], v37, s[88:89] sc0 sc1
    s_waitcnt vmcnt(0)
    s_branch FK_NONCE
FK_NONCED:
    s_lshr_b64 s[94:95], s[92:93], 8
    s_lshl_b32 s92, s92, 24
    s_mov_b32 s93, s94
    s_cmp_lg_u32 s3, 0
    s_cbranch_scc1 FK_NOPW
    """)
    for u in range(2):
        for c in range(4): a(f"v_or_b32 v{PUB[u]+2*c}, s92, v{PUB[u]+2*c}\nv_mov_b32 v{PUB[u]+2*c+1}, s93")
    a(f"""
    v_lshlrev_b32 v6, 5, v1
    s_lshl_b32 s29, s2, 12
    s_add_u32 s29, s29, {WS_OFF}
FK_NOPW:
    """)
    stamp()
    a("s_waitcnt vmcnt(0)")
    stamp()
    a(f"""
    s_barrier
    s_cmp_lg_u32 s3, 0
    s_cbranch_scc1 FK_NOPUB
    buffer_store_dwordx4 {vr(PUB[0],4)}, v6, s[12:15], s29 offen sc1
    buffer_store_dwordx4 {vr(PUB[0]+4,4)}, v6, s[12:15], s29 offen offset:16 sc1
    buffer_store_dwordx4 {vr(PUB[1],4)}, v6, s[12:15], s29 offen offset:2048 sc1
    buffer_store_dwordx4 {vr(PUB[1]+4,4)}, v6, s[12:15], s29 offen offset:2064 sc1
    s_lshl_b32 s29, s2, 2
    s_add_u32 s29, s29, {WS_RDY}
    s_mov_b64 exec, 1
    buffer_store_dword v{PUB[0]+1}, v37, s[12:15], s29 offen sc1
    s_mov_b64 exec, -1
FK_NOPUB:
    """)
    dbg(7)
    rstamp(55)
    a(f"""
    s_lshl_b32 s26, s70, 3
    s_add_u32 s26, s26, {WS_OFF}
    """)
    if not WE:
        a(f"""
        s_lshl_b32 s30, s3, 10
        s_add_u32 m0, s30, {L_STG+8192}
        global_load_dwordx4 {vr(WBR,4)}, v23, s[78:79]
        global_load_lds_dwordx4 v23, s[84:85]
        s_add_u32 m0, s30, {L_STG+16384}
        s_lshl_b32 s31, s3, 11
        global_load_lds_dwordx4 v23, s[76:77]
        s_add_u32 m0, s30, {L_STG+24576}
        s_nop 0
        global_load_lds_dwordx4 v23, s[82:83]
        s_add_u32 m0, s31, {L_EA}
        s_nop 0
        buffer_load_dwordx4 v20, s[4:7], 0 offen lds
        s_add_u32 m0, s31, {L_EA+1024}
        s_nop 0
        buffer_load_dwordx4 v21, s[4:7], 0 offen lds
        s_mov_b32 exec_hi, 0
        global_load_dwordx4 v[12:15], v5, s[80:81]
        s_mov_b32 exec_hi, -1
        """)

        xpf(a,0,opts.get("xpf0",0),128)
        if STAMP==2: stamp()
        a(f"s_waitcnt vmcnt({opts.get('xpf0',0)})")
        if STAMP==2: stamp()
        scale8(WBR, SC)
        a(f"""
        v_add_u32 v10, {L_STG}, v23
        ds_write_b128 v10, {vr(WBR,4)}
        s_cmp_lg_u32 s3, 7
        s_cbranch_scc1 FK_N7B
        """)
        scale8(12, SC)
        a(f"""
        v_add_u32 v10, {L_WCL}, v5
        s_mov_b32 exec_hi, 0
        ds_write_b128 v10, v[12:15]
        s_mov_b32 exec_hi, -1
FK_N7B:
        """)
        a("s_waitcnt lgkmcnt(0)\ns_barrier")
        for s in range(4): a(f"ds_read_b128 {vr(A[0]+4*s,4)}, v{204+s}")
        for cb in range(2):
            for s in range(4):
                for hh in range(2):
                    a(f"ds_read_b64_tr_b16 {vr(WAU+(cb*4+s)*4+2*hh,2)}, v41 offset:{16384+s*2048+cb*64+hh*512}")
        a(f"""
        s_waitcnt lgkmcnt(8)
        """)
        for cb in range(2):
            if cb: a("s_waitcnt lgkmcnt(0)")
            for s in range(4):
                a(f"v_mfma_f32_32x32x16_bf16 {vr(XAC+16*cb,16)}, {vr(A[0]+4*s,4)}, {vr(WAU+16*cb+4*s,4)}, {'0' if s==0 else vr(XAC+16*cb,16)}")
    if STAMP==2: stamp()
    a(f"""
    s_lshl_b32 s27, s3, 7
    s_add_u32 s27, s27, {WS_RDY}
    {'' if RP1 else 'buffer_load_dword v38, v%d, s[12:15], s27 offen sc1'%L4N}
    """)
    for m in range(2):
        for s in range(4):
            for cb in range(2):
                for hh in range(2):
                    a(f"ds_read_b64_tr_b16 {vr(WB+m*32+(s*2+cb)*4+2*hh,2)}, v40 offset:{m*8192+s*2048+cb*64+hh*512}")
    a(f"""
    ds_read_b64_tr_b16 {vr(WC[0],2)}, v42
    ds_read_b64_tr_b16 {vr(WC[1],2)}, v42 offset:64
    """)
    if STAMP==2: stamp()
    a(f"""
    s_cmp_lg_u32 s58, 0
    s_cbranch_scc1 FK_XU
    v_mul_u32_u24 v7, {4*ROWB}, v3
    v_add_u32 v7, v{L4N}, v7
    s_mul_i32 s31, s59, {32*ROWB}
    s_add_u32 s31, s31, 512
    v_add_u32 v7, s31, v7
    """)
    for i in range(32): a(f"v_mul_f32 v{XAC+i}, {NLOG2E}, v{XAC+i}")
    for i in range(16): a(f"v_cvt_pk_bf16_f32 v{XAC+i}, v{XAC+i}, v{XAC+16+i}")
    a("s_cmp_eq_u32 s59, 3\ns_cbranch_scc1 FK_XA3")
    for i in range(16): a(f"ds_write_b32 v7, v{XAC+i} offset:{((i>>2)*8+(i&3))*ROWB}")
    a(f"""
    s_branch FK_XA4
FK_XA3:
    s_mov_b32 exec_hi, 0
    ds_write_b32 v7, v{XAC} offset:0
    ds_write_b32 v7, v{XAC+1} offset:{ROWB}
    s_mov_b64 exec, -1
    s_branch FK_XA4
FK_XU:
    v_lshl_add_u32 v8, v3, 9, v{L4N}
    s_lshl_b32 s31, s2, 14
    s_lshl_b32 s30, s59, 12
    s_add_u32 s31, s31, s30
    s_add_u32 s31, s31, {WS_XU}
    """)
    XD=opts.get("xud",0)
    XS_=208 if XD else XAC
    for i in range(16): a(f"v_cvt_pk_bf16_f32 v{XS_+i}, v{XAC+i}, v{XAC+16+i}")
    def xust(lab):
        for i in range(16):
            if i==2: a(f"s_cmp_eq_u32 s59, 3\ns_cbranch_scc1 {lab}")
            a(f"buffer_store_dword v{XS_+i}, v{193 if XD else 8}, s[12:15], s{73 if XD else 31} offen offset:{((i>>2)*8+(i&3))*128} {opts.get('xuf','')}")
    if XD: a("v_mov_b32 v193, v8\ns_mov_b32 s73, s31")
    else: xust("FK_XA4")
    a(f"""
FK_XA4:
    s_waitcnt lgkmcnt(0)
    s_mov_b32 exec_lo, 0
    v_mov_b32 v{WC[0]}, {BIG16<<16}
    v_mov_b32 v{WC[0]+1}, 0
    v_mov_b32 v{WC[1]}, {BIG16<<16}
    v_mov_b32 v{WC[1]+1}, 0
    s_mov_b32 exec_lo, -1
FK_XAD:
    {'s_mov_b32 s76, s56' if opts.get('eexp') else ''}
    {'s_and_b32 s77, s57, 0xffff' if opts.get('eexp') else ''}
    {'s_mov_b32 s78, 6400000' if opts.get('eexp') else ''}
    {'s_mov_b32 s79, 0x20000' if opts.get('eexp') else ''}
    s_mov_b32 s74, 0x05040100
    s_mov_b32 s75, 0x07060302
    s_lshl_b32 s29, s3, 8
    s_add_u32 s29, s29, {L_ADJ}
    s_lshl_b32 s30, s3, 6
    s_add_u32 s30, s30, {L_BM}
    s_mov_b32 s31, 400000
    s_mov_b64 s[64:65], -1
    """)
    stamp()
    if RP1:
        a(f"""
        s_cmp_lg_u32 s67, 0
        s_cbranch_scc1 FK_RGOT
        s_cmp_lg_u32 s3, {opts.get('rpw',7)}
        s_cbranch_scc1 FK_RBAR
        v_lshlrev_b32 v12, 4, v1
        s_mov_b32 s27, {WS_RDY}
FK_RPOLL:
        buffer_load_dwordx4 v[8:11], v12, s[12:15], s27 offen sc1
        s_waitcnt vmcnt(0)
        v_cmp_ne_u32 s[34:35], s93, v8
        v_cmp_ne_u32 s[36:37], s93, v9
        v_cmp_ne_u32 s[38:39], s93, v10
        v_cmp_ne_u32 vcc, s93, v11
        s_or_b64 s[34:35], s[34:35], s[36:37]
        s_or_b64 s[38:39], s[38:39], vcc
        s_or_b64 s[34:35], s[34:35], s[38:39]
        s_cbranch_scc0 FK_RBAR
        s_sub_u32 s31, s31, 1
        s_cbranch_scc1 FK_RBAR
        s_sleep {opts.get('rsleep',8)}
        s_branch FK_RPOLL
FK_RBAR:
        s_barrier
        """)
    else:
        a(f"""
FK_RPOLL:
        s_waitcnt vmcnt(0)
        v_cmp_ne_u32 vcc, s93, v38
        s_cbranch_vccz FK_RGOT
        s_sub_u32 s31, s31, 1
        s_cbranch_scc1 FK_RGOT
        s_sleep {opts.get('sleep',2)}
        buffer_load_dword v38, v{L4N}, s[12:15], s27 offen sc1
        s_branch FK_RPOLL
        """)
    a(f"""
FK_RGOT:
    s_mov_b32 s31, 400000
    """)
    rstamp(56)
    a(f"""
    buffer_load_dwordx2 v[38:39], v{S_PO}, s[12:15], s26 offen sc1
FK_POLL:
    s_waitcnt vmcnt(0)
    v_and_b32 v8, 0xff000000, v38
    v_cmp_eq_u32 s[34:35], s93, v39
    v_cmp_eq_u32 s[36:37], s92, v8
    s_nand_b64 s[34:35], s[34:35], s[36:37]
    s_cbranch_scc0 FK_GOT
    """)
    if opts.get("pfn",0):
        a(f"""
        s_andn2_b64 s[36:37], s[64:65], s[34:35]
        s_cbranch_scc0 FK_NOPF
        s_mov_b64 s[64:65], s[34:35]
        s_mov_b64 exec, s[36:37]
        v_and_b32 v9, 0xfff, v38
        v_bfe_u32 v10, v38, 12, 12
        v_mad_u32_u24 v9, v9, 12, v{S_CB}
        v_mad_u32_u24 v10, v10, 12, v9
        buffer_load_dword v11, v9, s[12:15], 0 offen sc1
        {'buffer_load_dword v14, v10, s[12:15], 0 offen sc1' if opts['pfn']>1 else ''}
FK_NOPF:
        """)
    a(f"""
    s_sub_u32 s31, s31, 1
    s_cbranch_scc1 FK_GOT
    s_sleep {opts.get('sleep',4)}
    s_mov_b64 exec, s[34:35]
    buffer_load_dwordx2 v[38:39], v{S_PO}, s[12:15], s26 offen sc1
    s_mov_b64 exec, -1
    s_branch FK_POLL
FK_GOT:
    s_mov_b64 exec, -1
    """)
    dbg(6)
    rstamp(57)
    stamp()
    a(f"""
    v_bfe_u32 v8, v38, 12, 12
    v_and_b32 v9, 0xfff, v38
    v_mov_b32 v{T+6}, v8
    v_min_u32 v8, s17, v8
    v_subrev_u32 v8, s16, v8
    v_max_i32 v8, 0, v8
    v_mov_b32 v10, v8
    v_add_u32 v9, s16, v9
    """)
    dpp_scan(a, 10)
    B0=T+8
    a(f"""
    v_cmp_lt_u32 s[34:35], 0, v8
    v_sub_u32 v11, v10, v8
    v_readlane_b32 s20, v10, 63
    v_sub_u32 v9, v9, v11
    v_mul_i32_i24 v9, 12, v9
    v_add_u32 v9, v9, v{S_CB}
    v_mbcnt_lo_u32_b32 v12, s34, 0
    v_mbcnt_hi_u32_b32 v12, s35, v12
    v_lshl_add_u32 v12, v12, 2, s29
    v_add_u32 v13, -1, v11
    v_lshrrev_b32 v14, 5, v13
    v_min_u32 v14, 15, v14
    v_lshl_add_u32 v14, v14, 2, s30
    v_lshlrev_b32 v13, v13, 1
    v_cmp_lt_u32 s[36:37], 0, v11
    v_mov_b32 v{T+5}, s30
    s_mov_b64 exec, s[34:35]
    ds_write_b32 v12, v9
    s_and_b64 exec, s[34:35], s[36:37]
    ds_or_b32 v14, v13
    s_mov_b64 exec, -1
    ds_read_b128 {vr(B0,4)}, v{T+5}
    ds_read_b128 {vr(B0+4,4)}, v{T+5} offset:16
    ds_read_b128 {vr(B0+8,4)}, v{T+5} offset:32
    ds_read_b128 {vr(B0+12,4)}, v{T+5} offset:48
    s_lshr_b32 s31, s29, 2
    v_mov_b32 v15, s31
    """)
    for p in range(NPASS):
        a(f"""
        s_sub_i32 s31, s20, {64*p}
        v_cmp_gt_i32 {msk(p)}, s31, v1
        """)
    def adr(p):
        if p%2==0: a(f"s_waitcnt lgkmcnt({3-p//2+p})")
        lo=B0+2*p; hi=lo+1
        a(f"""
        v_mbcnt_lo_u32_b32 v{HA+p}, v{lo}, v15
        v_mbcnt_hi_u32_b32 v{HA+p}, v{hi}, v{HA+p}
        {'v_bcnt_u32_b32 v15, v%d, v15'%lo if p<NPASS-1 else ''}
        v_lshlrev_b32 v{HA+p}, 2, v{HA+p}
        {'v_bcnt_u32_b32 v15, v%d, v15'%hi if p<NPASS-1 else ''}
        ds_read_b32 v{HA+p}, v{HA+p}
        """)
    def ld(p,n):
        a(f"""
        s_waitcnt lgkmcnt({n-1-p})
        v_add_u32 v{HA+p}, v{HA+p}, v{S_L12}
        {'s_mov_b32 s31, %d'%(768*p) if p>5 else ''}
        s_mov_b64 exec, {msk(p)}
        buffer_load_dwordx3 {vr(rec(p),3)}, v{HA+p}, s[12:15], {'s31 offen' if p>5 else '0 offen offset:%d'%(768*p)} {opts.get('ldf','sc1')}
        """)
    def mid(n):
        l=f"FK_NOMAX{n}"
        a(f"""
        s_mov_b64 exec, -1
        s_cmp_gt_u32 s20, {64*NPASS}
        s_cselect_b32 s71, 0x10000, 0
        s_or_b32 s31, s71, s18
        s_cbranch_scc0 {l}
        v_or_b32 v{T+6}, s71, v{T+6}
        ds_max_u32 v{S_FA}, v{T+6}
{l}:
        v_lshl_add_u32 v8, v2, 2, s29
        v_mov_b32 v9, 0
        ds_write_b32 v8, v9
        s_mov_b32 s62, s29
        v_mov_b32 v{T+7}, 1
        v_add_u32 v{T+17}, {L_HIST}, v{S_L8}
        s_mov_b32 s31, {L_HIST}
        s_mov_b32 m0, s24
        """)
    def hs(p,n):
        q=rec(p)
        a(f"""
        s_waitcnt vmcnt({n-1-p})
        s_mov_b64 exec, {msk(p)}
        v_bfe_u32 v{HA+p}, v{q+2}, 16, 7
        v_lshl_add_u32 v{HA+p}, v{HA+p}, 2, s31
        ds_add_rtn_u32 v{q+3}, v{HA+p}, v{T+7}
        """)
    for p in range(6): adr(p)
    a("s_cmp_gt_u32 s20, 384\ns_cbranch_scc1 FK_P7")
    c0=cnt[0]
    for n in (6,7,8):
        cnt[0]=c0
        if n==7:
            a("FK_P7:"); adr(6); a("s_cmp_gt_u32 s20, 448\ns_cbranch_scc1 FK_P8")
        if n==8:
            a("FK_P8:"); adr(7)
        for p in range(n): ld(p,n)
        mid(n)
        stamp()
        for p in range(n): hs(p,n)
        if n<8: a("s_branch FK_HD")
    a(f"""
FK_HD:
    s_mov_b64 exec, -1
    s_waitcnt vmcnt(0)
    """)
    if opts.get("xud",0):
        a("s_cmp_eq_u32 s58, 0\ns_cbranch_scc1 FK_XUD\ns_cmp_lg_u32 s67, 0\ns_cbranch_scc1 FK_XUD")
        xust("FK_XUD")
        a("FK_XUD:")
    xpf(a,opts.get("xpf1",0),opts.get("xpf2",0),168)
    a("s_waitcnt lgkmcnt(0)")
    stamp()
    a("s_barrier")
    a(f"""
    ds_read_b64 v[{T+20}:{T+21}], v{T+17}
    ds_read_b32 v{T+19}, v{S_FA}
    s_waitcnt lgkmcnt(0)
    v_add_u32 v{T+2}, 3, v{T+20}
    v_add_u32 v{T+3}, 3, v{T+21}
    v_and_b32 v{T+2}, 0xfffffffc, v{T+2}
    v_and_b32 v{T+3}, 0xfffffffc, v{T+3}
    v_add_u32 v{T+3}, v{T+2}, v{T+3}
    v_mov_b32 v{T+4}, v{T+3}
    v_readfirstlane_b32 s19, v{T+19}
    """)
    dpp_scan(a, T+4)
    a(f"""
    v_sub_u32 v{T+22}, v{T+4}, v{T+3}
    v_add_u32 v{T+23}, v{T+22}, v{T+2}
    v_readlane_b32 s20, v{T+4}, 63     ; 4Q
    ds_write_b64 v{T+17}, v[{T+22}:{T+23}] offset:{L_SB-L_HIST}
    s_cmp_lg_u32 s18, 0
    s_cbranch_scc1 FK_OK
    s_cmp_ge_u32 s19, 0x10000
    s_cbranch_scc1 FK_GOSLOW
    s_cmp_le_u32 s20, {CAP}
    s_cbranch_scc1 FK_OK
FK_GOSLOW:
    s_mov_b32 s18, 1
    s_mov_b32 s17, {SLOWR}
    s_branch FK_REBATCH
FK_OK:
    """)
    for p in range(NPASS):
        a(f"""
        s_mov_b64 exec, {msk(p)}
        {'s_cbranch_execz FK_RD' if p>=5 else ''}
        ds_read_b32 v{HA+p}, v{HA+p} offset:{L_SB-L_HIST}
        """)
    a(f"""
FK_RD:
    s_mov_b64 exec, -1
    s_and_b32 s19, s19, 0xffff
    s_add_u32 s26, s20, 31
    s_lshr_b32 s26, s26, 5             ; TT
    s_lshl_b32 s29, s26, 5             ; 32TT
    s_lshr_b32 s27, s26, 3             ; NT0
    s_and_b32 s26, s26, 7              ; rem
    s_mul_i32 s22, s3, s27
    s_min_u32 s28, s3, s26
    s_add_u32 s22, s22, s28
    s_lshl_b32 s22, s22, 3             ; qs0
    s_cmp_lt_u32 s3, s26
    s_cselect_b32 s28, 1, 0
    s_add_u32 s21, s27, s28            ; NT
    s_lshl_b32 s28, s21, 2             ; 4NT
    s_add_u32 s23, s22, s28            ; qs1
    s_cmp_eq_u32 s3, 1
    s_cbranch_scc1 FK_JOBD
    s_bitcmp1_b32 s3, 0
    s_cselect_b64 s[34:35], -1, 0
    v_cndmask_b32_e64 v4, v{T+20}, v{T+21}, s[34:35]
    v_cndmask_b32_e64 v5, v{T+22}, v{T+23}, s[34:35]
    s_lshr_b32 s27, s3, 1
    v_mov_b32 v8, 0
    v_mov_b32 v9, 0
    v_mov_b32 v10, {FLAG16<<16}
    s_cmp_lg_u32 s27, 0
    s_cbranch_scc1 FK_PADJOB
    v_add_u32 v5, s20, v1
    v_cmp_ge_u32 vcc, s29, v5
    s_branch FK_PADW
FK_PADJOB:
    v_sub_u32 v6, 0, v4
    v_and_b32 v6, 3, v6
    v_add3_u32 v5, v5, v4, s27
    v_add_u32 v5, -1, v5
    v_cmp_le_u32 vcc, s27, v6
FK_PADW:
    v_lshlrev_b32 v6, 3, v5
    v_add_u32 v6, {L_EA}, v6
    v_lshlrev_b32 v7, 2, v5
    v_add_u32 v7, {L_SF}, v7
    s_mov_b64 exec, vcc
    ds_write_b64 v6, v[8:9]
    ds_write_b32 v7, v10
    s_mov_b64 exec, -1
    s_waitcnt lgkmcnt(2)
    s_branch FK_JOBE
FK_JOBD:
    s_waitcnt lgkmcnt(0)
FK_JOBE:
    s_mov_b32 s30, {L_EA}
    s_mov_b32 s31, {L_SF}
    """)
    for p in range(NPASS):
        q=rec(p); h=HA+p
        a(f"""
        s_mov_b64 exec, {msk(p)}
        {'s_cbranch_execz FK_SD' if p>=5 else ''}
        v_add_u32 v{h}, v{h}, v{q+3}
        v_lshl_add_u32 v{q+3}, v{h}, 3, s30
        ds_write_b64 v{q+3}, v[{q}:{q+1}]
        v_lshl_add_u32 v{h}, v{h}, 2, s31
        v_and_b32 v{q+2}, 0xffff, v{q+2}
        ds_write_b32 v{h}, v{q+2}
        """)
    a(f"""
FK_SD:
    s_mov_b64 exec, -1
    v_mul_u32_u24 v4, s28, v{S_R1}
    v_add_u32 v4, s22, v4
    v_lshl_add_u32 v{SRA}, v4, 4, v{S_C1}
    s_waitcnt lgkmcnt(0)
    """)
    stamp()
    a(f"""
    s_barrier
    s_cmp_eq_u32 s21, 0
    s_cbranch_scc1 FK_LOOPDONE
    ds_read_b128 {vr(SFV,4)}, v{SRA}
    v_mul_u32_u24 v4, s28, v{S_HS}
    v_add_u32 v4, s22, v4
    v_mad_u32_u24 v{AEA}, v4, v{S_SC}, v{S_C0}
    {INC_SR}
    s_waitcnt lgkmcnt(0)
    """)
    for s in dv_calc()+dma(): a(s)
    a(f"""
    ds_read2_b32 {vr(AE,2)}, v{AEA} offset0:0 offset1:1
    {INC_AE}
    s_lshl_b32 s30, s21, 3
    v_lshrrev_b32 v4, 2, v{T+22}
    v_lshrrev_b32 v5, 2, v{T+23}
    v_subrev_u32 v4, s22, v4
    v_subrev_u32 v5, s22, v5
    v_cmp_gt_u32 s[34:35], s30, v4
    v_cmp_gt_u32 s[36:37], s30, v5
    v_cmp_lt_u32 s[38:39], 0, v{T+20}
    v_cmp_lt_u32 s[58:59], 0, v{T+21}
    v_add_u32 v4, s62, v4
    v_add_u32 v5, s62, v5
    v_lshl_add_u32 v6, v1, 1, 1
    v_lshl_add_u32 v7, v1, 1, 2
    s_and_b64 exec, s[34:35], s[38:39]
    ds_write_b8 v4, v6
    s_and_b64 exec, s[36:37], s[58:59]
    ds_write_b8 v5, v7
    s_mov_b64 exec, -1
    v_mul_u32_u24 v4, s28, v3
    v_add_u32 v4, s22, v4                ; qs[h]
    v_lshl_add_u32 v{T+16}, v2, 1, v4    ; u_a
    s_sub_u32 s30, s62, s22
    v_add_u32 v{T+17}, s30, v{T+16}
    ds_read_u16 v5, v{T+17}
    """)
    if STAMP==3: stamp()
    a(f"""
    s_lshl_b32 s30, s22, 2
    s_lshl_b32 s31, s23, 2
    v_cmp_ge_u32 s[34:35], s30, v{T+22}
    v_cmp_ge_u32 s[36:37], s30, v{T+23}
    v_cmp_ge_u32 s[38:39], s31, v{T+22}
    v_cmp_ge_u32 s[58:59], s31, v{T+23}
    ds_read_b128 {vr(SFV,4)}, v{SRA}
    {INC_SR}
    v_lshlrev_b32 v{QIA}, 2, v4
    v_add_u32 v{QIA}, {L_QI}, v{QIA}
    s_bcnt1_i32_b64 s30, s[34:35]
    s_bcnt1_i32_b64 s31, s[36:37]
    s_add_u32 s56, s30, s31
    s_bcnt1_i32_b64 s30, s[38:39]
    s_bcnt1_i32_b64 s31, s[58:59]
    s_add_u32 s57, s30, s31
    v_mov_b32 v{T+18}, s56
    s_mov_b32 exec_lo, 0
    v_mov_b32 v{T+18}, s57
    s_mov_b32 exec_lo, -1
    s_lshr_b32 s20, s20, 2               ; Q
    s_mov_b32 s64, {512-ROWB}
    s_lshl_b32 s26, s3, 1
    s_add_u32 s26, s26, {R_PART}
    v_add_u32 v10, s26, v3
    v_lshlrev_b32 v11, 1, v2
    v_cmp_gt_u32 s[38:39], s28, v11
    s_waitcnt lgkmcnt(1)
    s_nop 0
    v_cndmask_b32_e64 v4, 0, v5, s[38:39]
    v_and_b32 v5, 0xff, v4
    v_lshrrev_b32 v6, 8, v4
    v_max_u32 v7, v5, v6
    v_readlane_b32 s30, v5, 0
    v_readlane_b32 s31, v5, 32
    """)
    dpp_scan(a, 7, op="v_max_u32", full=False)
    a(f"""
    v_mov_b32 v8, 0
    s_cmp_eq_u32 s30, 0
    s_cselect_b32 s34, -1, 0
    s_cmp_lt_u32 s22, s20
    s_cselect_b32 s34, s34, 0
    v_mov_b32_dpp v8, v7 wave_shr:1 row_mask:0xf bank_mask:0xf
    s_cmp_eq_u32 s31, 0
    s_cselect_b32 s35, -1, 0
    s_cmp_lt_u32 s23, s20
    s_cselect_b32 s35, s35, 0
    v_max3_u32 v8, v8, v5, v{T+18}
    v_max_u32 v7, v7, v{T+18}
    v_add_u32 v12, 1, v10
    v_cmp_eq_u32 s[36:37], v8, v{T+18}
    v_cmp_eq_u32 s[58:59], v7, v{T+18}
    s_and_b64 s[36:37], s[36:37], s[34:35]
    s_and_b64 s[58:59], s[58:59], s[34:35]
    v_cndmask_b32_e64 v8, v8, v12, s[36:37]
    v_cndmask_b32_e64 v7, v7, v12, s[58:59]
    v_add_u32 v13, 1, v{T+16}
    v_mov_b32 v12, {R_ZERO+1}
    v_cmp_gt_u32 s[36:37], s20, v{T+16}
    v_cmp_gt_u32 s[66:67], s20, v13
    v_cmp_eq_u32 s[58:59], 0, v5
    v_cmp_eq_u32 s[60:61], 0, v6
    v_cmp_lt_u32 s[62:63], 0, v2
    v_cndmask_b32_e64 v8, v12, v8, s[36:37]
    v_cndmask_b32_e64 v7, v12, v7, s[66:67]
    s_and_b64 s[58:59], s[58:59], s[36:37]
    s_and_b64 s[58:59], s[58:59], s[62:63]
    s_and_b64 s[60:61], s[60:61], s[66:67]
    v_mul_u32_u24 v{T}, {ROWB}, v8
    v_mul_u32_u24 v{T+1}, {ROWB}, v7
    v_add_u32 v{T}, {-ROWB}, v{T}
    v_add_u32 v{T+1}, {-ROWB}, v{T+1}
    v_cndmask_b32_e64 v{T+2}, 0, 1.0, s[58:59]
    v_cndmask_b32_e64 v{T+3}, 0, 1.0, s[60:61]
    v_lshlrev_b32 v13, 2, v{T+16}
    v_add_u32 v13, {L_QI}, v13
    s_mov_b64 exec, s[38:39]
    ds_write_b64 v13, v[{T}:{T+1}]
    ds_write_b64 v13, v[{T+2}:{T+3}] offset:{QKOFF}
    s_and_b64 exec, s[34:35], s[34:35]
    s_cbranch_execz FK_NOCONT
    v_mul_u32_u24 v14, {ROWB}, v{T+18}
    v_add3_u32 v14, v14, v{L4N}, s64
    ds_read_b32 v15, v14
    v_mul_u32_u24 v14, {ROWB}, v10
    v_add_u32 v14, v14, v{L4N}
    v_lshlrev_b32 v13, 2, v{T+18}
    v_add_u32 v13, {L_PMAX-4}, v13
    s_waitcnt lgkmcnt(0)
    ds_write_b32 v14, v15 offset:512
    s_and_b32 exec_lo, exec_lo, 1
    s_and_b32 exec_hi, exec_hi, 1
    ds_max_u32 v13, v10
    ds_min_u32 v13, v10 offset:{L_PMIN-L_PMAX}
FK_NOCONT:
    s_mov_b64 exec, -1
    """)
    for s in xaf_read(0)+kp_read(0,0): a(s)
    a(f"""
    s_nand_b32 s30, s60, s61
    s_nand_b32 s31, s58, s59
    s_lshr_b32 s31, s31, 1
    s_bitreplicate_b64_b32 s[44:45], s30
    s_bitreplicate_b64_b32 s[46:47], s31
    s_mov_b32 s30, 0x55555555
    s_mov_b32 s31, 0x55555555
    s_and_b64 s[44:45], s[44:45], s[30:31]
    s_andn2_b64 s[46:47], s[46:47], s[30:31]
    s_or_b64 s[44:45], s[44:45], s[46:47]
    s_sub_u32 s30, s28, 1
    s_bitset1_b64 s[44:45], s30
    """)
    for r in (ACD[0]+3,ACD[1]+3,ACN[0]+3,ACN[1]+3): a(f"v_mov_b32 v{r}, 0")
    a("s_waitcnt lgkmcnt(0)")
    for s in xaf_adds()+bx_reads(): a(s)
    if STAMP==3: stamp()
    a("s_waitcnt vmcnt(0)")
    if STAMP==3: stamp()
    for s in a_reads(0)+dv_calc(): a(s)
    a("s_waitcnt lgkmcnt(0)")
    a("s_cmp_lt_u32 s21, 2\ns_cbranch_scc1 FK_SKD0")
    for s in dma(): a(s)
    a("FK_SKD0:")
    for s in bx_pack()+xaf_read(1)+src_read()+g_mfmas(0,0)+[INC_SR]+g_mfmas(1,0): a(s)
    a("s_waitcnt lgkmcnt(0)")
    for s in xaf_adds()+ae_read()+bx_reads()+dv_calc(): a(s)
    for i in range(16): a(f"v_exp_f32 v{EE[0]+i}, v{GA[0]+i}")
    if STAMP==3: stamp()
    a("s_waitcnt vmcnt(0)")
    if STAMP==3: stamp()
    for s in a_reads(1): a(s)
    for i in range(16): a(f"v_add_f32 v{EE[0]+i}, 1.0, v{EE[0]+i}")
    a("s_waitcnt lgkmcnt(0)")
    a("s_cmp_lt_u32 s21, 3\ns_cbranch_scc1 FK_SKD1")
    for s in dma(): a(s)
    a("FK_SKD1:")
    for s in src_read(): a(s)
    stamp(); rstamp(59); dbg(3)
    a("s_sub_u32 s25, s21, 1")
    a("FK_LOOP:")
    for par in range(2):
        a(f"s_cmp_eq_u32 s25, 0\ns_cbranch_scc1 FK_LAST{par}")
        tile(a,0,par,False)
        a("s_sub_u32 s25, s25, 1")
    a("s_branch FK_LOOP")
    for x in lp4.STUBS: a(x)
    lp4.STUBS.clear()
    for par in range(2):
        a(f"FK_LAST{par}:")
        tile(a,0,par,True)
        a("s_branch FK_LOOPDONE")
    for x in lp4.STUBS: a(x)
    a(f"""
FK_LOOPDONE:
    s_setprio 0
    """)
    rstamp(60); stamp(); dbg(4)
    XR=128; X=[136,224]; B=[144,176]; M=[4,10]
    a(f"""
    v_lshlrev_b32 v20, 4, v0
    s_mul_i32 s26, s70, {NB*128}
    v_add_u32 v20, s26, v20
    v_add_u32 v21, 8192, v20
    v_lshrrev_b32 v22, 3, v0
    v_lshlrev_b32 v22, 7, v22
    v_and_b32 v23, 3, v0
    v_lshl_add_u32 v22, v23, 5, v22
    s_lshl_b32 s27, s2, 14
    s_add_u32 s27, s27, {WS_XU}
    s_add_u32 s28, s27, 8192
    v_cmp_gt_u32 vcc, {NB*8-512}, v0
    s_mov_b64 s[34:35], vcc
    buffer_load_dwordx4 v[{XR}:{XR+3}], v20, s[4:7], 0 offen
    buffer_load_dwordx4 {vr(X[0],4)}, v22, s[12:15], s27 offen
    buffer_load_dwordx4 {vr(X[0]+4,4)}, v22, s[12:15], s27 offen offset:16
    s_mov_b64 exec, s[34:35]
    buffer_load_dwordx4 v[{XR+4}:{XR+7}], v21, s[4:7], 0 offen
    buffer_load_dwordx4 {vr(X[1],4)}, v22, s[12:15], s28 offen
    buffer_load_dwordx4 {vr(X[1]+4,4)}, v22, s[12:15], s28 offen offset:16
    s_mov_b64 exec, -1
    v_and_b32 v23, 7, v0
    v_and_b32 v22, 4, v0
    v_lshlrev_b32 v22, 2, v22
    v_sub_u32 v22, 16, v22
    v_lshlrev_b32 v23, 5, v23
    """)
    for it in range(2):
        m=M[it]
        a(f"""
        v_lshrrev_b32 v{m}, 3, v0
        {'v_add_u32 v%d, 64, v%d'%(m,m) if it else ''}
        v_lshlrev_b32 v{m+1}, 2, v{m}
        v_add_u32 v{m+1}, {L_HIST}, v{m+1}
        ds_read_b32 v{m+5}, v{m+1}
        """)
    a(f"v_mov_b32 v37, {R_ZERO}\ns_waitcnt lgkmcnt(0)")
    for it in range(2):
        m=M[it]
        a(f"""
        v_cmp_eq_u32 s[36:37], 0, v{m+5}
        s_nop 1
        v_cndmask_b32_e64 v{m}, v{m}, v37, s[36:37]
        v_mul_u32_u24 v{m}, {ROWB}, v{m}
        v_add_u32 v{m}, v{m}, v23
        """)
    a("s_barrier")
    stamp()
    for it in range(2):
        m=M[it]; b=B[it]
        if it==1: a("s_mov_b64 exec, s[34:35]")
        a(f"""
        ds_read_b32 v{m+2}, v{m+1} offset:{L_PMAX-L_HIST}
        ds_read_b32 v{m+3}, v{m+1} offset:{L_PMIN-L_HIST}
        """)
    for it in range(2):
        m=M[it]; b=B[it]
        a("s_mov_b64 exec, s[34:35]" if it else "s_mov_b64 exec, -1")
        a(f"""
        ds_read_b128 {vr(b,4)}, v{m}
        ds_read_b128 {vr(b+4,4)}, v{m} offset:16
        ds_read_b128 {vr(b+8,4)}, v{m} offset:256
        ds_read_b128 {vr(b+12,4)}, v{m} offset:272
        """)
    a("s_waitcnt lgkmcnt(8)")
    for it in range(2):
        m=M[it]; b=B[it]; x=X[it]; xr=XR+4*it
        if it==1:
            a(f"""
            s_cmp_eq_u64 s[34:35], 0
            s_cbranch_scc1 FK_FIN
            s_mov_b64 exec, s[34:35]
            """)
        else: a("s_mov_b64 exec, -1")
        a(f"""
FK_PL{it}:
        v_cmp_le_u32 s[36:37], v{m+3}, v{m+2}
        s_nop 1
        v_cndmask_b32_e64 v{m+5}, v37, v{m+3}, s[36:37]
        v_mul_u32_u24 v{m+5}, {ROWB}, v{m+5}
        v_add_u32 v{m+5}, v{m+5}, v23
        ds_read_b128 {vr(b+16,4)}, v{m+5}
        ds_read_b128 {vr(b+20,4)}, v{m+5} offset:16
        ds_read_b128 {vr(b+24,4)}, v{m+5} offset:256
        ds_read_b128 {vr(b+28,4)}, v{m+5} offset:272
        v_add_u32 v{m+3}, 1, v{m+3}
        v_cmp_le_u32 vcc, v{m+3}, v{m+2}
        s_waitcnt lgkmcnt(0)
        """)
        for i in range(16): a(f"v_add_f32 v{b+i}, v{b+i}, v{b+16+i}")
        a(f"s_cbranch_vccnz FK_PL{it}")
        a(f"""
        s_cmp_eq_u32 s18, 0
        s_cbranch_scc1 FK_NOSLOW{it}
        s_mul_i32 s26, s2, {NB*512}
        s_add_u32 s26, s26, {WS_TOT+it*512*64}
        v_lshlrev_b32 v{m+5}, 6, v0
        s_cmp_eq_u32 s16, 0
        s_cbranch_scc1 FK_NOLD{it}
        """)
        for j in range(4): a(f"buffer_load_dwordx4 {vr(b+16+4*j,4)}, v{m+5}, s[12:15], s26 offen offset:{16*j} sc1")
        a("s_waitcnt vmcnt(0)")
        for i in range(16): a(f"v_add_f32 v{b+i}, v{b+i}, v{b+16+i}")
        a(f"FK_NOLD{it}:")
        for j in range(4): a(f"buffer_store_dwordx4 {vr(b+4*j,4)}, v{m+5}, s[12:15], s26 offen offset:{16*j} sc1")
        a(f"s_waitcnt vmcnt(0)\nFK_NOSLOW{it}:")
        for i in range(8): a(f"v_add_f32 v{b+i}, 0x358637bd, v{b+i}")
        for i in range(8): a(f"v_rcp_f32 v{b+i}, v{b+i}")
        a("s_waitcnt vmcnt(3)" if it==0 else "s_waitcnt vmcnt(1)")
        for i in range(8): a(f"v_lshlrev_b32 v{x+i}, v22, v{x+i}")
        for i in range(8): a(f"v_and_b32 v{x+i}, 0xffff0000, v{x+i}")
        for i in range(8): a(f"v_fma_f32 v{b+i}, v{b+i}, v{b+8+i}, v{x+i}")
        for i in range(4):
            a(f"v_lshlrev_b32 v{b+8+2*i}, 16, v{xr+i}")
            a(f"v_and_b32 v{b+9+2*i}, 0xffff0000, v{xr+i}")
        for i in range(8): a(f"v_max_f32 v{b+i}, 0, v{b+i}")
        for i in range(8): a(f"v_add_f32 v{b+i}, v{b+i}, v{b+8+i}")
        for i in range(4): a(f"v_cvt_pk_bf16_f32 v{b+8+i}, v{b+2*i}, v{b+1+2*i}")
        a(f"buffer_store_dwordx4 {vr(b+8,4)}, v{20+it}, s[8:11], 0 offen {opts.get('outf','')}")
    a(f"""
FK_FIN:
    s_mov_b64 exec, -1
    """)
    if opts.get("dbg"): a("s_waitcnt vmcnt(0)")
    dbg(5)
    stamp()
    if STAMP:
        a("s_waitcnt vmcnt(0)")
        stamp(); rstamp(62)
        a(f"""
        v_writelane_b32 v{SV}, s21, 63
        s_lshl_b32 s26, s2, 3
        s_add_u32 s26, s26, s3
        s_lshl_b32 s26, s26, 8
        s_add_u32 s26, s26, {WS_STAMP}
        v_lshlrev_b32 v4, 2, v1
        buffer_store_dword v{SV}, v4, s[12:15], s26 offen
        """)
    a(f"""
    s_cmp_eq_u32 s18, 0
    s_cbranch_scc1 FK_END
    s_add_u32 s16, s16, {SLOWR}
    s_add_u32 s17, s17, {SLOWR}
    s_cmp_ge_u32 s16, s19
    s_cbranch_scc1 FK_END
FK_REBATCH:
    s_waitcnt vmcnt(0) lgkmcnt(0)
    s_barrier
    v_mov_b32 v4, 0
    v_mov_b32 v5, 0
    v_mov_b32 v6, 0
    v_mov_b32 v7, 0
    v_mov_b32 v8, 0x10000
    v_mov_b32 v9, 0x10000
    v_add_u32 v11, {L_PMIN}, v{S_L8}
    ds_write_b64 v11, v[8:9]
    s_lshl_b32 s30, s3, 6
    s_add_u32 s30, s30, {L_BM}
    v_lshl_add_u32 v11, v1, 2, s30
    v_lshlrev_b32 v10, 4, v0
    v_add_u32 v10, {L_Z}, v10
    v_cmp_gt_u32 vcc, {(L_ZEND-L_Z)//16}, v0
    s_mov_b64 exec, 0xffff
    ds_write_b32 v11, v4
    s_and_b64 exec, vcc, vcc
    ds_write_b128 v10, v[4:7]
    s_mov_b64 exec, -1
    s_lshl_b32 s26, s70, 3
    s_add_u32 s26, s26, {WS_OFF}
    v_mov_b32 v38, s93
    s_mov_b32 s67, 1
    s_waitcnt lgkmcnt(0)
    s_barrier
    s_branch FK_XAD
FK_END:
    s_endpgm
    """)
    a(kd(name, 256, 102))
    return f"; @launch grid=({NBUCK},1,1) block=(512,1,1) lds={L_END}"
```
